```python
import torch

def _softmax(x, axis=-1):
    return torch.softmax(x, dim=axis)
def _gelu(x):
    return torch.nn.functional.gelu(x, approximate="tanh")
def _silu(x):
    return torch.nn.functional.silu(x)
def _sigmoid(x):
    return torch.sigmoid(x)
def _layernorm(x, axis=-1, eps=1e-5):
    m = x.mean(dim=axis, keepdim=True)
    v = x.var(dim=axis, keepdim=True, unbiased=False)
    return (x - m) / torch.sqrt(v + eps)
def _scatter_add(tgt, idx, src, axis=0):
    return tgt.clone().index_add_(axis, idx, src)
def _segment_sum(src, seg, n):
    out = torch.zeros((n,) + src.shape[1:], dtype=src.dtype)
    return out.index_add_(0, seg, src)
def _pad(x, pw):
    flat = tuple(v for pair in reversed(pw) for v in pair)
    return torch.nn.functional.pad(x, flat)

kernel_name = 'standalone__mixer_token_mlp__prompt'

def setup_inputs():

    _w = (lambda a: (lambda t: t.to(torch.bfloat16) if t.is_floating_point() else t)(torch.as_tensor(a)))
    B, S, D, F = 1, 2048, 1024, 3584
    return {
        "x": _w((lambda *s: torch.randn(*s, dtype=torch.bfloat16) * 0.05)(B, S, D)),
        "w1": _w((lambda *s: torch.randn(*s, dtype=torch.bfloat16) * 0.2)(S, F) * (S ** -0.5)),
        "b1": _w((lambda *s: torch.randn(*s, dtype=torch.bfloat16) * 1.6)(F) * 0.02),
        "w2": _w((lambda *s: torch.randn(*s, dtype=torch.bfloat16) * 0.05)(F, S) * (F ** -0.5)),
        "b2": _w((lambda *s: torch.randn(*s, dtype=torch.bfloat16) * 0.1)(S) * 0.02),
    }

def reference(x, w1, b1, w2, b2):
    B, S, D = x.shape
    h = _layernorm(x, axis=-1)
    u = torch.einsum("bsd,sf->bdf", h, w1) + b1
    u = _gelu(u)
    y = torch.einsum("bdf,fs->bds", u, w2) + b2
    return (lambda x, *d: x.permute(*d))(y, 0, 2, 1)
```

```python
import sys, struct, math

S, D, F = 2048, 1024, 3584
WS_H   = 0
WS_U   = 4 << 20
WS_XCH = 12 << 20
WS_FLG = 20 << 20
H_BYTES, U_BYTES, XCH_BYTES, FLG_BYTES = D*S*2, D*F*2, 256*4*8192, 256*128
R = 4

def f32(x): return "0x%08x" % struct.unpack("<I", struct.pack("<f", x))[0]

class Asm:
    def __init__(self): self.L = []
    def __call__(self, s):
        for l in s.split("\n"):
            l = l.strip()
            if l: self.L.append(l if (l.endswith(":") or l.startswith(".") or l.startswith(";")) else "    " + l)
    def text(self): return "\n".join(self.L) + "\n"

def srd(A, r, base, off, nbytes):
    if off:
        A(f"s_add_u32 s{r}, s{base}, {off}\ns_addc_u32 s{r+1}, s{base+1}, 0")
    else:
        A(f"s_mov_b32 s{r}, s{base}\ns_mov_b32 s{r+1}, s{base+1}")
    A(f"s_mov_b32 s{r+2}, {nbytes}\ns_mov_b32 s{r+3}, 0x20000")

def header(A, name):
    A(f".globl {name}\n.p2align 8\n.type {name},@function\n{name}:")

def descriptor(A, name, vgpr, sgpr=96):
    acc = (vgpr + 3) // 4 * 4
    A(f".amdhsa_kernel {name}\n  .amdhsa_next_free_vgpr {vgpr}\n  .amdhsa_next_free_sgpr {sgpr}\n  .amdhsa_accum_offset {acc}\n"
      "  .amdhsa_group_segment_fixed_size 0\n  .amdhsa_kernarg_size 64\n  .amdhsa_user_sgpr_count 2\n"
      "  .amdhsa_user_sgpr_kernarg_segment_ptr 1\n  .amdhsa_system_sgpr_workgroup_id_x 1\n.end_amdhsa_kernel")

def gen_ln(A, o):
    name = "ln_kernel"
    header(A, name)
    A("s_cmp_ge_u32 s2, 256\ns_cbranch_scc1 L_ln_end")
    A("s_load_dwordx2 s[4:5], s[0:1], 0\ns_load_dwordx2 s[6:7], s[0:1], 56")
    A("s_lshr_b32 s20, s2, 2\ns_and_b32 s21, s2, 3")
    A("s_lshl_b32 s22, s20, 5\ns_lshl_b32 s23, s21, 2\ns_add_u32 s22, s22, s23\ns_lshl_b32 s22, s22, 11")
    A("v_lshlrev_b32 v1, 3, v0")
    A("s_waitcnt lgkmcnt(0)")
    srd(A, 8, 4, 0, S*D*2)
    A("s_add_u32 s24, s4, s22\ns_addc_u32 s25, s5, 0")
    rowoff = [(16*(j//4) + j % 4) * 2048 for j in range(8)]
    for j in range(8):
        A(f"s_add_u32 s{30+j}, s22, {rowoff[j]}")
    for j in range(8):
        A(f"buffer_load_dwordx2 v[{2+2*j}:{3+2*j}], v1, s[8:11], s{30+j} offen")
    for j in range(8):
        A(f"s_load_dword s{40+j}, s[24:25], {rowoff[j]}")
    srd(A, 12, 6, WS_H, H_BYTES)
    srd(A, 16, 6, WS_FLG, FLG_BYTES)
    A("v_mov_b32 v60, 0\nv_lshlrev_b32 v61, 2, v0\ns_lshl_b32 s26, s2, 7")
    A("v_cmp_gt_u32 vcc, 32, v0\ns_and_saveexec_b64 s[28:29], vcc\ns_cbranch_execz L_ln_noflag")
    A("buffer_store_dword v60, v61, s[16:19], s26 offen")
    A("L_ln_noflag:\ns_mov_b64 exec, s[28:29]")
    A("v_lshrrev_b32 v62, 5, v0\nv_lshlrev_b32 v62, 19, v62")
    A("v_bfe_u32 v63, v0, 4, 1\nv_lshlrev_b32 v63, 12, v63\nv_add_u32 v62, v62, v63")
    A("v_and_b32 v63, 15, v0\nv_lshlrev_b32 v63, 4, v63\nv_add_u32 v62, v62, v63")
    A("s_lshl_b32 s26, s20, 13\ns_lshl_b32 s27, s21, 8\ns_add_u32 s26, s26, s27")
    A("v_lshrrev_b32 v64, 4, v0\nv_lshlrev_b32 v64, 4, v64")
    A("v_and_b32 v65, 3, v0\nv_lshlrev_b32 v65, 4, v65\nv_bfe_u32 v66, v0, 2, 1\nv_lshlrev_b32 v66, 2, v66\nv_add_u32 v65, v65, v66")
    A("s_waitcnt lgkmcnt(0)")
    for j in range(8): A(f"s_lshl_b32 s{40+j}, s{40+j}, 16")
    for j in range(8):
        A(f"s_waitcnt vmcnt({7-j})")
        for c in range(4):
            src = 2 + 2*j + c//2
            d = 70 + 4*j + c
            if c % 2 == 0: A(f"v_lshlrev_b32 v{d}, 16, v{src}")
            else: A(f"v_and_b32 v{d}, 0xffff0000, v{src}")
        for c in range(4):
            d = 70 + 4*j + c
            A(f"v_subrev_f32 v{d}, s{40+j}, v{d}")
        b = 70 + 4*j
        A(f"v_add_f32 v{20+j}, v{b}, v{b+1}\nv_mul_f32 v{28+j}, v{b}, v{b}")
        A(f"v_add_f32 v{20+j}, v{20+j}, v{b+2}\nv_fmac_f32 v{28+j}, v{b+1}, v{b+1}")
        A(f"v_add_f32 v{20+j}, v{20+j}, v{b+3}\nv_fmac_f32 v{28+j}, v{b+2}, v{b+2}\nv_fmac_f32 v{28+j}, v{b+3}, v{b+3}")
    A("s_nop 1")
    for p in range(8): A(f"v_permlane32_swap_b32 v{20+2*p}, v{21+2*p}")
    for p in range(8): A(f"v_add_f32 v{20+2*p}, v{20+2*p}, v{21+2*p}")
    A("s_nop 1")
    for q in range(4): A(f"v_permlane16_swap_b32 v{20+4*q}, v{22+4*q}")
    for q in range(4): A(f"v_add_f32 v{40+q}, v{20+4*q}, v{22+4*q}")
    for sh in (8, 4, 2, 1):
        A("s_nop 1")
        for q in range(4): A(f"v_add_f32_dpp v{40+q}, v{40+q}, v{40+q} row_ror:{sh} row_mask:0xf bank_mask:0xf")
    A("ds_write_b128 v64, v[40:43]")
    A("s_waitcnt lgkmcnt(0)\ns_barrier")
    for w in range(4): A(f"ds_read2_b32 v[{44+2*w}:{45+2*w}], v65 offset0:{16*w} offset1:{16*w+2}")
    A("s_waitcnt lgkmcnt(0)")
    A("v_add_f32 v44, v44, v46\nv_add_f32 v45, v45, v47\nv_add_f32 v48, v48, v50\nv_add_f32 v49, v49, v51\nv_add_f32 v44, v44, v48\nv_add_f32 v45, v45, v49")
    A(f"v_mul_f32 v44, {f32(1.0/D)}, v44\nv_mul_f32 v45, {f32(1.0/D)}, v45")
    A("v_fma_f32 v45, -v44, v44, v45\nv_max_f32 v45, 0, v45")
    A(f"v_add_f32 v45, {f32(1e-5)}, v45\nv_rsq_f32 v45, v45\ns_nop 0\nv_mul_f32 v44, v44, v45\nv_sub_f32 v44, 0, v44")
    A("s_nop 1")
    gmap = [0, 2, 1, 3]
    for e in range(8):
        j = gmap[e % 4] + 4*(e // 4)
        A(f"v_readlane_b32 s{50+j}, v45, {e}\nv_readlane_b32 s{60+j}, v44, {e}")
    A("s_nop 1")
    for j in range(8): A(f"v_mov_b32 v{20+j}, s{60+j}")
    for j in range(8):
        for c in range(4):
            d = 70 + 4*j + c
            A(f"v_fma_f32 v{d}, v{d}, s{50+j}, v{20+j}")
    for t in range(4):
        for jj in range(4):
            A(f"v_cvt_pk_bf16_f32 v{44+4*t+jj}, v{70+4*(2*jj)+t}, v{70+4*(2*jj+1)+t}")
        A(f"buffer_store_dwordx4 v[{44+4*t}:{47+4*t}], v62, s[12:15], s26 offen offset:{t*1024}")
    A("L_ln_end:\ns_endpgm")
    return name

ACC, XW, XH, YW, YH = 64, 128, 144, 160, 176
VWA, VHA = 8, 16

def substep(A, o, cur, nxt, slot, ks, barrier, reads=True):
    cw, ch = cur; nw, nh = nxt
    hi = slot >= 2
    base = (slot % 2) * 32768
    rd = []
    def wread(fb):
        for r_ in range(2):
            rd.append(f"ds_read_b64_tr_b16 v[{nw+4*fb+2*r_}:{nw+4*fb+2*r_+1}], v{VWA+4*hi+fb} offset:{base + ks*8192 + r_*4096}")
    def hread(t):
        rd.append(f"ds_read_b128 v[{nh+4*t}:{nh+4*t+3}], v{VHA+hi} offset:{base + 16384 + ks*8192 + t*1024}")
    wread(0)
    for t in range(4): hread(t)
    for fb in range(1, 4): wread(fb)
    if not reads: rd = []
    A("s_waitcnt lgkmcnt(0)")
    if barrier: A("s_barrier")
    k = 0
    per = o.get("rdper", 2)
    for m in range(16):
        fb, t = m // 4, m % 4
        a = ACC + 16*fb + 4*t
        A(f"v_mfma_f32_16x16x32_bf16 v[{a}:{a+3}], v[{cw+4*fb}:{cw+4*fb+3}], v[{ch+4*t}:{ch+4*t+3}], v[{a}:{a+3}]")
        for _ in range(per):
            if k < len(rd): A(rd[k]); k += 1

def gen_gemm(A, o, which):
    g1 = which == 1
    name = "g1_kernel" if g1 else "g2_kernel"
    P = name[:2]
    nwg = 224 if g1 else 256
    N = 32 if g1 else 28
    pitch = F*2 if g1 else S*2
    nkb = 64 if g1 else 112
    header(A, name)
    A(f"s_cmp_ge_u32 s2, {nwg}\ns_cbranch_scc1 L_{P}_end")
    A(f"s_load_dwordx4 s[4:7], s[0:1], {8 if g1 else 24}\ns_load_dwordx2 s[28:29], s[0:1], 56\ns_load_dwordx2 s[30:31], s[0:1], 40")
    A("v_lshrrev_b32 v1, 6, v0\nv_and_b32 v2, 63, v0\nv_readfirstlane_b32 s3, v1")
    A("s_and_b32 s20, s2, 7\ns_lshr_b32 s21, s2, 3")
    if g1:
        A("s_mul_i32 s22, s21, 37\ns_lshr_b32 s22, s22, 8\ns_mul_i32 s23, s22, 7\ns_sub_u32 s23, s21, s23")
        A("s_and_b32 s24, s20, 3\ns_mul_i32 s24, s24, 7\ns_add_u32 s24, s24, s23")
        A("s_lshr_b32 s25, s20, 2\ns_lshl_b32 s25, s25, 2\ns_add_u32 s25, s25, s22")
        A("s_mov_b32 s26, 0")
    else:
        A("s_and_b32 s26, s21, 1\ns_lshr_b32 s22, s21, 1")
        A("s_and_b32 s24, s20, 3\ns_lshl_b32 s24, s24, 2\ns_and_b32 s23, s22, 3\ns_add_u32 s24, s24, s23")
        A("s_lshr_b32 s25, s20, 2\ns_lshl_b32 s25, s25, 2\ns_lshr_b32 s23, s22, 2\ns_add_u32 s25, s25, s23")
    A("s_waitcnt lgkmcnt(0)")
    srd(A, 8, 4, 0, S*F*2)
    srd(A, 12, 28, WS_H if g1 else WS_U, H_BYTES if g1 else U_BYTES)
    srd(A, 16, 6, 0, (F if g1 else S)*2)
    if g1: srd(A, 32, 28, WS_U, U_BYTES)
    else:
        srd(A, 32, 28, WS_XCH, XCH_BYTES); srd(A, 36, 28, WS_FLG, FLG_BYTES); srd(A, 40, 30, 0, S*D*2)
    A(f"s_cmp_ge_u32 s3, 4\ns_cbranch_scc1 L_{P}_loader")
    A("s_and_b32 s44, s3, 1\ns_lshr_b32 s45, s3, 1")
    A("v_lshrrev_b32 v3, 4, v2\nv_and_b32 v4, 15, v2")
    A("s_lshl_b32 s46, s24, 8\ns_lshl_b32 s47, s45, 7\ns_add_u32 s46, s46, s47\ns_lshl_b32 s47, s26, 6")
    A("v_lshlrev_b32 v5, 3, v3")
    nb = 4 if g1 else 2
    for fb in range(nb):
        A(f"s_xor_b32 s48, s47, {fb*32}\ns_add_u32 s48, s48, s46")
        A(f"buffer_load_dwordx2 v[{20+2*fb}:{21+2*fb}], v5, s[16:19], s48 offen")
    A("v_lshrrev_b32 v6, 2, v4\nv_lshl_add_u32 v7, v3, 2, v6")
    A("v_and_b32 v18, 7, v7\nv_lshlrev_b32 v7, 8, v7\nv_and_b32 v19, 3, v4\nv_lshl_add_u32 v7, v19, 3, v7")
    A("s_lshl_b32 s48, s45, 2\ns_lshl_b32 s49, s26, 1\ns_xor_b32 s48, s48, s49")
    for fb in range(4):
        A(f"s_xor_b32 s49, s48, {fb}\nv_xor_b32 v19, s49, v18\nv_lshl_add_u32 v{VWA+fb}, v19, 5, v7\nv_add_u32 v{VWA+4+fb}, 0x10000, v{VWA+fb}")
    A(f"s_lshl_b32 s48, s44, 12\nv_lshl_add_u32 v{VHA}, v2, 4, s48\nv_add_u32 v{VHA+1}, 0x10000, v{VHA}")
    A("s_waitcnt vmcnt(0)")
    for fb in range(4):
        for r_ in range(4):
            a = ACC + 16*fb + r_
            if fb < nb:
                src = 20 + 2*fb + r_//2
                A(f"v_lshlrev_b32 v{a}, 16, v{src}" if r_ % 2 == 0 else f"v_and_b32 v{a}, 0xffff0000, v{src}")
            else: A(f"v_mov_b32 v{a}, 0")
            for t in range(1, 4): A(f"v_mov_b32 v{a+4*t}, v{a}")
    if o.get("prio"): A("s_setprio 1")
    A("s_barrier")
    X, Y = (XW, XH), (YW, YH)
    for fb in range(4):
        for r_ in range(2): A(f"ds_read_b64_tr_b16 v[{XW+4*fb+2*r_}:{XW+4*fb+2*r_+1}], v{VWA+fb} offset:{r_*4096}")
    for t in range(4): A(f"ds_read_b128 v[{XH+4*t}:{XH+4*t+3}], v{VHA} offset:{16384+t*1024}")
    A(f"s_mov_b32 s50, {N//R}")
    A(f".p2align 6\nL_{P}_cloop:")
    for r_ in range(R):
        substep(A, o, X, Y, r_, 1, False)
        substep(A, o, Y, X, (r_+1) % R, 0, True)
    A(f"s_sub_u32 s50, s50, 1\ns_cmp_lg_u32 s50, 0\ns_cbranch_scc1 L_{P}_cloop")
    A("s_waitcnt lgkmcnt(0)\ns_nop 7")
    if g1:
        c0 = -2.0*math.sqrt(2.0/math.pi)*math.log2(math.e); c1 = c0*0.044715
        A(f"s_mov_b32 s52, {f32(c1)}\nv_mov_b32 v3, {f32(c0)}")
        A(f"s_mul_i32 s48, s25, 112\ns_lshl_b32 s49, s24, 2\ns_add_u32 s48, s48, s49\ns_lshl_b32 s49, s45, 1\ns_add_u32 s48, s48, s49\ns_lshl_b32 s48, s48, 13")
        A("s_lshl_b32 s49, s44, 12\ns_add_u32 s48, s48, s49\ns_add_u32 s49, s48, 8192\nv_lshlrev_b32 v4, 4, v2")
        T = 128
        for kbl in range(2):
            for t in range(4):
                regs = [ACC + 16*(2*kbl + h) + 4*t + r_ for h in range(2) for r_ in range(4)]
                tb = T + ((kbl*4 + t) % 2) * 16
                for e, a in enumerate(regs): A(f"v_mul_f32 v{tb+e}, v{a}, v{a}")
                for e, a in enumerate(regs): A(f"v_fma_f32 v{tb+e}, v{tb+e}, s52, v3")
                for e, a in enumerate(regs): A(f"v_mul_f32 v{tb+e}, v{tb+e}, v{a}")
                for e, a in enumerate(regs): A(f"v_exp_f32 v{tb+e}, v{tb+e}")
                for e, a in enumerate(regs): A(f"v_add_f32 v{tb+e}, 1.0, v{tb+e}")
                for e, a in enumerate(regs): A(f"v_rcp_f32 v{tb+e}, v{tb+e}")
                for e, a in enumerate(regs): A(f"v_mul_f32 v{tb+e}, v{tb+e}, v{a}")
                for e in range(4): A(f"v_cvt_pk_bf16_f32 v{tb+8+e}, v{tb+2*e}, v{tb+2*e+1}")
                A(f"buffer_store_dwordx4 v[{tb+8}:{tb+11}], v4, s[32:35], s{48+kbl} offen offset:{t*1024} {o.get('uflag','')}")
    else:
        A("s_lshl_b32 s48, s2, 2\ns_add_u32 s48, s48, s3\ns_lshl_b32 s48, s48, 13\ns_add_u32 s49, s48, 4096")
        A("s_xor_b32 s52, s48, 0x40000\ns_add_u32 s53, s52, 4096")
        A("v_lshlrev_b32 v4, 4, v2")
        for q in range(8):
            a = ACC + 32 + 4*q
            A(f"buffer_store_dwordx4 v[{a}:{a+3}], v4, s[32:35], s{48+q//4} offen offset:{(q%4)*1024} sc1")
        A("s_lshl_b32 s54, s2, 7\ns_lshl_b32 s55, s3, 2\ns_add_u32 s54, s54, s55\ns_xor_b32 s55, s54, 0x400")
        A("v_mov_b32 v5, 0\nv_mov_b32 v6, 1")
        A("v_lshrrev_b32 v3, 4, v2\nv_and_b32 v7, 15, v2\nv_lshlrev_b32 v3, 13, v3\nv_lshl_add_u32 v7, v7, 3, v3")
        A("s_lshl_b32 s56, s24, 7\ns_lshl_b32 s57, s45, 6\ns_add_u32 s56, s56, s57\ns_lshl_b32 s57, s26, 5\ns_add_u32 s56, s56, s57\ns_lshl_b32 s56, s56, 11")
        A("s_lshl_b32 s57, s25, 8\ns_add_u32 s56, s56, s57\ns_lshl_b32 s57, s44, 7\ns_add_u32 s56, s56, s57")
        A("s_waitcnt vmcnt(0)")
        A("s_mov_b64 exec, 1\nbuffer_store_dword v6, v5, s[36:39], s54 offen sc1")
        A("s_mov_b32 s59, 0x400000")
        A(f"L_{P}_poll:\nbuffer_load_dword v18, v5, s[36:39], s55 offen sc1\ns_sub_u32 s59, s59, 1\ns_cbranch_scc1 L_{P}_polled\ns_waitcnt vmcnt(0)\nv_readfirstlane_b32 s58, v18\ns_cmp_eq_u32 s58, 1\ns_cbranch_scc0 L_{P}_poll\nL_{P}_polled:")
        A("s_mov_b64 exec, -1")
        for q in range(8):
            A(f"buffer_load_dwordx4 v[{128+4*q}:{131+4*q}], v4, s[32:35], s{52+q//4} offen offset:{(q%4)*1024} sc1")
        for sb in range(2):
            A(f"s_waitcnt vmcnt({4 if sb == 0 else 4})")
            for t in range(4):
                for r_ in range(4):
                    a = ACC + 16*sb + 4*t + r_
                    A(f"v_add_f32 v{a}, v{a}, v{128+16*sb+4*t+r_}")
            for r_ in range(4):
                a = ACC + 16*sb + r_
                d = 160 + 8*sb + 2*r_
                A(f"v_cvt_pk_bf16_f32 v{d}, v{a}, v{a+4}\nv_cvt_pk_bf16_f32 v{d+1}, v{a+8}, v{a+12}")
                A(f"s_add_u32 s57, s56, {(16*sb + r_)*2048}")
                A(f"buffer_store_dwordx2 v[{d}:{d+1}], v7, s[40:43], s57 offen")
    A("s_endpgm")
    A(f"L_{P}_loader:")
    A("s_sub_u32 s44, s3, 4")
    A("v_lshrrev_b32 v3, 4, v2\nv_and_b32 v4, 15, v2\nv_lshrrev_b32 v5, 1, v4\nv_and_b32 v4, 1, v4\nv_lshlrev_b32 v4, 4, v4")
    A(f"s_mov_b32 s45, {pitch}\ns_lshl_b32 s46, s44, 4\ns_lshl_b32 s47, s24, 8")
    for j in range(4):
        A(f"v_add_u32 v6, {4*(j%2)}, v3\nv_xor_b32 v6, v6, v5\nv_lshl_add_u32 v6, v6, 5, v4")
        A(f"s_add_u32 s48, s46, {4*j}\nv_add_u32 v7, s48, v3\nv_mul_lo_u32 v7, v7, s45\nv_add3_u32 v{8+j}, v7, v6, s47")
        if j: A(f"v_subrev_u32 v{8+j}, {j*1024}, v{8+j}")
    A(f"s_mul_i32 s48, s25, {nkb*8192}\ns_lshl_b32 s49, s44, 12\ns_add_u32 s48, s48, s49\nv_lshl_add_u32 v12, v2, 4, s48")
    A(f"s_mul_i32 s50, s26, {N*64*pitch}\ns_mul_i32 s51, s26, {N*16384}")
    A("s_lshl_b32 s52, s44, 12")
    def issue(m0expr):
        A(m0expr + "\ns_nop 0")
        for j in range(4): A(f"buffer_load_dwordx4 v{8+j}, s[8:11], s50 offen offset:{j*1024} lds")
        A("s_add_u32 m0, m0, 16384\n" + f"s_add_u32 s50, s50, {64*pitch}")
        for j in range(4): A(f"buffer_load_dwordx4 v12, s[12:15], s51 offen offset:{j*1024} lds")
        A("s_add_u32 s51, s51, 16384")
    for st_ in range(R): issue(f"s_add_u32 m0, s52, {st_*32768}")
    A(f"s_waitcnt vmcnt({8*(R-1)})\ns_barrier")
    A("s_mov_b32 s53, 0")
    A(f"L_{P}_lloop:")
    A(f"s_and_b32 s54, s53, {R-1}\ns_lshl_b32 s54, s54, 15")
    A(f"s_waitcnt vmcnt({8*(R-2)})\ns_barrier")
    issue("s_add_u32 m0, s52, s54")
    A(f"s_add_u32 s53, s53, 1\ns_cmp_lt_u32 s53, {N-R}\ns_cbranch_scc1 L_{P}_lloop")
    for n in range(N-R, N):
        A(f"s_waitcnt vmcnt({8*max(0, N-1-(n+1))})\ns_barrier")
    A(f"L_{P}_end:\ns_endpgm")
    return name

HEAD = open(__file__.replace("gen.py", "head.txt")).read()

def build(o):
    A = Asm()
    A.L.append(HEAD.rstrip("\n"))
    A("; @launch kernel=ln_kernel grid=(256,1,1) block=(256,1,1) lds=256")
    A(f"; @launch kernel=g1_kernel grid=(224,1,1) block=(512,1,1) lds={R*32768}")
    A(f"; @launch kernel=g2_kernel grid=(256,1,1) block=(512,1,1) lds={R*32768}")
    A('.amdgcn_target "amdgcn-amd-amdhsa--gfx950"\n.text')
    gen_ln(A, o); gen_gemm(A, o, 1); gen_gemm(A, o, 2)
    A('.section .rodata,"a"\n.p2align 6')
    descriptor(A, "ln_kernel", 104); A(".p2align 6"); descriptor(A, "g1_kernel", 192); A(".p2align 6"); descriptor(A, "g2_kernel", 192)
    return A.text()

if __name__ == "__main__":
    o = {}
    out = sys.argv[1]
    for kv in sys.argv[2:]:
        k, v = kv.split("=", 1)
        o[k] = int(v) if v.lstrip("-").isdigit() else v
    open(out, "w").write(build(o))
```

```python
import sys, struct, math

S, D, F = 2048, 1024, 3584
WS_H   = 0
WS_U   = 4 << 20
WS_XCH = 12 << 20
WS_FLG = 20 << 20
H_BYTES, U_BYTES, XCH_BYTES, FLG_BYTES = D*S*2, D*F*2, 256*4*8192, 256*128
R = 4

def f32(x): return "0x%08x" % struct.unpack("<I", struct.pack("<f", x))[0]

class Asm:
    def __init__(self): self.L = []
    def __call__(self, s):
        for l in s.split("\n"):
            l = l.strip()
            if l: self.L.append(l if (l.endswith(":") or l.startswith(".") or l.startswith(";")) else "    " + l)
    def text(self): return "\n".join(self.L) + "\n"

def srd(A, r, base, off, nbytes):
    if off:
        A(f"s_add_u32 s{r}, s{base}, {off}\ns_addc_u32 s{r+1}, s{base+1}, 0")
    else:
        A(f"s_mov_b32 s{r}, s{base}\ns_mov_b32 s{r+1}, s{base+1}")
    A(f"s_mov_b32 s{r+2}, {nbytes}\ns_mov_b32 s{r+3}, 0x20000")

def header(A, name):
    A(f".globl {name}\n.p2align 8\n.type {name},@function\n{name}:")

def descriptor(A, name, vgpr, sgpr=96):
    acc = (vgpr + 3) // 4 * 4
    A(f".amdhsa_kernel {name}\n  .amdhsa_next_free_vgpr {vgpr}\n  .amdhsa_next_free_sgpr {sgpr}\n  .amdhsa_accum_offset {acc}\n"
      "  .amdhsa_group_segment_fixed_size 0\n  .amdhsa_kernarg_size 64\n  .amdhsa_user_sgpr_count 2\n"
      "  .amdhsa_user_sgpr_kernarg_segment_ptr 1\n  .amdhsa_system_sgpr_workgroup_id_x 1\n.end_amdhsa_kernel")

def gen_ln(A, o):
    name = "ln_kernel"
    header(A, name)
    A("s_cmp_ge_u32 s2, 256\ns_cbranch_scc1 L_ln_end")
    A("s_load_dwordx2 s[4:5], s[0:1], 0\ns_load_dwordx2 s[6:7], s[0:1], 56")
    A("s_lshr_b32 s20, s2, 2\ns_and_b32 s21, s2, 3")
    A("s_lshl_b32 s22, s20, 5\ns_lshl_b32 s23, s21, 2\ns_add_u32 s22, s22, s23\ns_lshl_b32 s22, s22, 11")
    A("v_lshlrev_b32 v1, 3, v0")
    A("s_waitcnt lgkmcnt(0)")
    srd(A, 8, 4, 0, S*D*2)
    A("s_add_u32 s24, s4, s22\ns_addc_u32 s25, s5, 0")
    rowoff = [(16*(j//4) + j % 4) * 2048 for j in range(8)]
    for j in range(8):
        A(f"s_add_u32 s{30+j}, s22, {rowoff[j]}")
    for j in range(8):
        A(f"buffer_load_dwordx2 v[{2+2*j}:{3+2*j}], v1, s[8:11], s{30+j} offen")
    for j in range(8):
        A(f"s_load_dword s{40+j}, s[24:25], {rowoff[j]}")
    srd(A, 12, 6, WS_H, H_BYTES)
    srd(A, 16, 6, WS_FLG, FLG_BYTES)
    A("v_mov_b32 v60, 0\nv_lshlrev_b32 v61, 2, v0\ns_lshl_b32 s26, s2, 7")
    A("v_cmp_gt_u32 vcc, 32, v0\ns_and_saveexec_b64 s[28:29], vcc\ns_cbranch_execz L_ln_noflag")
    A("buffer_store_dword v60, v61, s[16:19], s26 offen")
    A("L_ln_noflag:\ns_mov_b64 exec, s[28:29]")
    A("v_lshrrev_b32 v62, 5, v0\nv_lshlrev_b32 v62, 19, v62")
    A("v_bfe_u32 v63, v0, 4, 1\nv_lshlrev_b32 v63, 12, v63\nv_add_u32 v62, v62, v63")
    A("v_and_b32 v63, 15, v0\nv_lshlrev_b32 v63, 4, v63\nv_add_u32 v62, v62, v63")
    A("s_lshl_b32 s26, s20, 13\ns_lshl_b32 s27, s21, 8\ns_add_u32 s26, s26, s27")
    A("v_lshrrev_b32 v64, 4, v0\nv_lshlrev_b32 v64, 4, v64")
    A("v_and_b32 v65, 3, v0\nv_lshlrev_b32 v65, 4, v65\nv_bfe_u32 v66, v0, 2, 1\nv_lshlrev_b32 v66, 2, v66\nv_add_u32 v65, v65, v66")
    A("s_waitcnt lgkmcnt(0)")
    for j in range(8): A(f"s_lshl_b32 s{40+j}, s{40+j}, 16")
    for j in range(8):
        A(f"s_waitcnt vmcnt({7-j})")
        for c in range(4):
            src = 2 + 2*j + c//2
            d = 70 + 4*j + c
            if c % 2 == 0: A(f"v_lshlrev_b32 v{d}, 16, v{src}")
            else: A(f"v_and_b32 v{d}, 0xffff0000, v{src}")
        for c in range(4):
            d = 70 + 4*j + c
            A(f"v_subrev_f32 v{d}, s{40+j}, v{d}")
        b = 70 + 4*j
        A(f"v_add_f32 v{20+j}, v{b}, v{b+1}\nv_mul_f32 v{28+j}, v{b}, v{b}")
        A(f"v_add_f32 v{20+j}, v{20+j}, v{b+2}\nv_fmac_f32 v{28+j}, v{b+1}, v{b+1}")
        A(f"v_add_f32 v{20+j}, v{20+j}, v{b+3}\nv_fmac_f32 v{28+j}, v{b+2}, v{b+2}\nv_fmac_f32 v{28+j}, v{b+3}, v{b+3}")
    A("s_nop 1")
    for p in range(8): A(f"v_permlane32_swap_b32 v{20+2*p}, v{21+2*p}")
    for p in range(8): A(f"v_add_f32 v{20+2*p}, v{20+2*p}, v{21+2*p}")
    A("s_nop 1")
    for q in range(4): A(f"v_permlane16_swap_b32 v{20+4*q}, v{22+4*q}")
    for q in range(4): A(f"v_add_f32 v{40+q}, v{20+4*q}, v{22+4*q}")
    for sh in (8, 4, 2, 1):
        A("s_nop 1")
        for q in range(4): A(f"v_add_f32_dpp v{40+q}, v{40+q}, v{40+q} row_ror:{sh} row_mask:0xf bank_mask:0xf")
    A("ds_write_b128 v64, v[40:43]")
    A("s_waitcnt lgkmcnt(0)\ns_barrier")
    for w in range(4): A(f"ds_read2_b32 v[{44+2*w}:{45+2*w}], v65 offset0:{16*w} offset1:{16*w+2}")
    A("s_waitcnt lgkmcnt(0)")
    A("v_add_f32 v44, v44, v46\nv_add_f32 v45, v45, v47\nv_add_f32 v48, v48, v50\nv_add_f32 v49, v49, v51\nv_add_f32 v44, v44, v48\nv_add_f32 v45, v45, v49")
    A(f"v_mul_f32 v44, {f32(1.0/D)}, v44\nv_mul_f32 v45, {f32(1.0/D)}, v45")
    A("v_fma_f32 v45, -v44, v44, v45\nv_max_f32 v45, 0, v45")
    A(f"v_add_f32 v45, {f32(1e-5)}, v45\nv_rsq_f32 v45, v45\ns_nop 0\nv_mul_f32 v44, v44, v45\nv_sub_f32 v44, 0, v44")
    A("s_nop 1")
    gmap = [0, 2, 1, 3]
    for e in range(8):
        j = gmap[e % 4] + 4*(e // 4)
        A(f"v_readlane_b32 s{50+j}, v45, {e}\nv_readlane_b32 s{60+j}, v44, {e}")
    A("s_nop 1")
    for j in range(8): A(f"v_mov_b32 v{20+j}, s{60+j}")
    for j in range(8):
        for c in range(4):
            d = 70 + 4*j + c
            A(f"v_fma_f32 v{d}, v{d}, s{50+j}, v{20+j}")
    for t in range(4):
        for jj in range(4):
            A(f"v_cvt_pk_bf16_f32 v{44+4*t+jj}, v{70+4*(2*jj)+t}, v{70+4*(2*jj+1)+t}")
        A(f"buffer_store_dwordx4 v[{44+4*t}:{47+4*t}], v62, s[12:15], s26 offen offset:{t*1024}")
    A("L_ln_end:\ns_endpgm")
    return name

ACC, XW, XH, YW, YH = 64, 128, 144, 160, 176
VWA, VHA = 8, 16

def substep(A, o, cur, nxt, slot, ks, barrier, reads=True):
    cw, ch = cur; nw, nh = nxt
    hi = slot >= 2
    base = (slot % 2) * 32768
    rd = []
    def wread(fb):
        for r_ in range(2):
            rd.append(f"ds_read_b64_tr_b16 v[{nw+4*fb+2*r_}:{nw+4*fb+2*r_+1}], v{VWA+4*hi+fb} offset:{base + ks*8192 + r_*4096}")
    def hread(t):
        rd.append(f"ds_read_b128 v[{nh+4*t}:{nh+4*t+3}], v{VHA+hi} offset:{base + 16384 + ks*8192 + t*1024}")
    wread(0)
    for t in range(4): hread(t)
    for fb in range(1, 4): wread(fb)
    if not reads: rd = []
    A("s_waitcnt lgkmcnt(0)")
    if barrier: A("s_barrier")
    k = 0
    per = o.get("rdper", 2)
    for m in range(16):
        fb, t = m // 4, m % 4
        a = ACC + 16*fb + 4*t
        A(f"v_mfma_f32_16x16x32_bf16 v[{a}:{a+3}], v[{cw+4*fb}:{cw+4*fb+3}], v[{ch+4*t}:{ch+4*t+3}], v[{a}:{a+3}]")
        for _ in range(per):
            if k < len(rd): A(rd[k]); k += 1

def gen_gemm(A, o, which):
    g1 = which == 1
    name = "g1_kernel" if g1 else "g2_kernel"
    P = name[:2]
    nwg = 224 if g1 else 256
    N = 32 if g1 else 28
    pitch = F*2 if g1 else S*2
    nkb = 64 if g1 else 112
    header(A, name)
    A(f"s_cmp_ge_u32 s2, {nwg}\ns_cbranch_scc1 L_{P}_end")
    A(f"s_load_dwordx4 s[4:7], s[0:1], {8 if g1 else 24}\ns_load_dwordx2 s[28:29], s[0:1], 56\ns_load_dwordx2 s[30:31], s[0:1], 40")
    A("v_lshrrev_b32 v1, 6, v0\nv_and_b32 v2, 63, v0\nv_readfirstlane_b32 s3, v1")
    A("s_and_b32 s20, s2, 7\ns_lshr_b32 s21, s2, 3")
    if g1:
        A("s_mul_i32 s22, s21, 37\ns_lshr_b32 s22, s22, 8\ns_mul_i32 s23, s22, 7\ns_sub_u32 s23, s21, s23")
        A("s_and_b32 s24, s20, 3\ns_mul_i32 s24, s24, 7\ns_add_u32 s24, s24, s23")
        A("s_lshr_b32 s25, s20, 2\ns_lshl_b32 s25, s25, 2\ns_add_u32 s25, s25, s22")
        A("s_mov_b32 s26, 0")
    else:
        A("s_and_b32 s26, s21, 1\ns_lshr_b32 s22, s21, 1")
        A("s_and_b32 s24, s20, 3\ns_lshl_b32 s24, s24, 2\ns_and_b32 s23, s22, 3\ns_add_u32 s24, s24, s23")
        A("s_lshr_b32 s25, s20, 2\ns_lshl_b32 s25, s25, 2\ns_lshr_b32 s23, s22, 2\ns_add_u32 s25, s25, s23")
    A("s_waitcnt lgkmcnt(0)")
    srd(A, 8, 4, 0, S*F*2)
    srd(A, 12, 28, WS_H if g1 else WS_U, H_BYTES if g1 else U_BYTES)
    srd(A, 16, 6, 0, (F if g1 else S)*2)
    if g1: srd(A, 32, 28, WS_U, U_BYTES)
    else:
        srd(A, 32, 28, WS_XCH, XCH_BYTES); srd(A, 36, 28, WS_FLG, FLG_BYTES); srd(A, 40, 30, 0, S*D*2)
    A(f"s_cmp_ge_u32 s3, 4\ns_cbranch_scc1 L_{P}_loader")
    A("s_and_b32 s44, s3, 1\ns_lshr_b32 s45, s3, 1")
    A("v_lshrrev_b32 v3, 4, v2\nv_and_b32 v4, 15, v2")
    A("s_lshl_b32 s46, s24, 8\ns_lshl_b32 s47, s45, 7\ns_add_u32 s46, s46, s47\ns_lshl_b32 s47, s26, 6")
    A("v_lshlrev_b32 v5, 3, v3")
    nb = 4 if g1 else 2
    for fb in range(nb):
        A(f"s_xor_b32 s48, s47, {fb*32}\ns_add_u32 s48, s48, s46")
        A(f"buffer_load_dwordx2 v[{20+2*fb}:{21+2*fb}], v5, s[16:19], s48 offen")
    A("v_lshrrev_b32 v6, 2, v4\nv_lshl_add_u32 v7, v3, 2, v6")
    A("v_and_b32 v18, 7, v7\nv_lshlrev_b32 v7, 8, v7\nv_and_b32 v19, 3, v4\nv_lshl_add_u32 v7, v19, 3, v7")
    A("s_lshl_b32 s48, s45, 2\ns_lshl_b32 s49, s26, 1\ns_xor_b32 s48, s48, s49")
    for fb in range(4):
        A(f"s_xor_b32 s49, s48, {fb}\nv_xor_b32 v19, s49, v18\nv_lshl_add_u32 v{VWA+fb}, v19, 5, v7\nv_add_u32 v{VWA+4+fb}, 0x10000, v{VWA+fb}")
    A(f"s_lshl_b32 s48, s44, 12\nv_lshl_add_u32 v{VHA}, v2, 4, s48\nv_add_u32 v{VHA+1}, 0x10000, v{VHA}")
    A("s_waitcnt vmcnt(0)")
    for fb in range(4):
        for r_ in range(4):
            a = ACC + 16*fb + r_
            if fb < nb:
                src = 20 + 2*fb + r_//2
                A(f"v_lshlrev_b32 v{a}, 16, v{src}" if r_ % 2 == 0 else f"v_and_b32 v{a}, 0xffff0000, v{src}")
            else: A(f"v_mov_b32 v{a}, 0")
            for t in range(1, 4): A(f"v_mov_b32 v{a+4*t}, v{a}")
    if o.get("prio"): A("s_setprio 1")
    A("s_barrier")
    X, Y = (XW, XH), (YW, YH)
    for fb in range(4):
        for r_ in range(2): A(f"ds_read_b64_tr_b16 v[{XW+4*fb+2*r_}:{XW+4*fb+2*r_+1}], v{VWA+fb} offset:{r_*4096}")
    for t in range(4): A(f"ds_read_b128 v[{XH+4*t}:{XH+4*t+3}], v{VHA} offset:{16384+t*1024}")
    A(f"s_mov_b32 s50, {N//R}")
    A(f".p2align 6\nL_{P}_cloop:")
    for r_ in range(R):
        substep(A, o, X, Y, r_, 1, False)
        substep(A, o, Y, X, (r_+1) % R, 0, True)
    A(f"s_sub_u32 s50, s50, 1\ns_cmp_lg_u32 s50, 0\ns_cbranch_scc1 L_{P}_cloop")
    A("s_waitcnt lgkmcnt(0)\ns_nop 7")
    if g1:
        c0 = -2.0*math.sqrt(2.0/math.pi)*math.log2(math.e); c1 = c0*0.044715
        A(f"s_mov_b32 s52, {f32(c1)}\nv_mov_b32 v3, {f32(c0)}")
        A(f"s_mul_i32 s48, s25, 112\ns_lshl_b32 s49, s24, 2\ns_add_u32 s48, s48, s49\ns_lshl_b32 s49, s45, 1\ns_add_u32 s48, s48, s49\ns_lshl_b32 s48, s48, 13")
        A("s_lshl_b32 s49, s44, 12\ns_add_u32 s48, s48, s49\ns_add_u32 s49, s48, 8192\nv_lshlrev_b32 v4, 4, v2")
        T = 128
        for kbl in range(2):
            for t in range(4):
                regs = [ACC + 16*(2*kbl + h) + 4*t + r_ for h in range(2) for r_ in range(4)]
                tb = T + ((kbl*4 + t) % 2) * 16
                for e, a in enumerate(regs): A(f"v_mul_f32 v{tb+e}, v{a}, v{a}")
                for e, a in enumerate(regs): A(f"v_fma_f32 v{tb+e}, v{tb+e}, s52, v3")
                for e, a in enumerate(regs): A(f"v_mul_f32 v{tb+e}, v{tb+e}, v{a}")
                for e, a in enumerate(regs): A(f"v_exp_f32 v{tb+e}, v{tb+e}")
                for e, a in enumerate(regs): A(f"v_add_f32 v{tb+e}, 1.0, v{tb+e}")
                for e, a in enumerate(regs): A(f"v_rcp_f32 v{tb+e}, v{tb+e}")
                for e, a in enumerate(regs): A(f"v_mul_f32 v{tb+e}, v{tb+e}, v{a}")
                for e in range(4): A(f"v_cvt_pk_bf16_f32 v{tb+8+e}, v{tb+2*e}, v{tb+2*e+1}")
                A(f"buffer_store_dwordx4 v[{tb+8}:{tb+11}], v4, s[32:35], s{48+kbl} offen offset:{t*1024} {o.get('uflag','')}")
    else:
        A("s_lshl_b32 s48, s2, 2\ns_add_u32 s48, s48, s3\ns_lshl_b32 s48, s48, 13\ns_add_u32 s49, s48, 4096")
        A("s_xor_b32 s52, s48, 0x40000\ns_add_u32 s53, s52, 4096")
        A("v_lshlrev_b32 v4, 4, v2")
        for q in range(8):
            a = ACC + 32 + 4*q
            A(f"buffer_store_dwordx4 v[{a}:{a+3}], v4, s[32:35], s{48+q//4} offen offset:{(q%4)*1024} sc1")
        A("s_lshl_b32 s54, s2, 7\ns_lshl_b32 s55, s3, 2\ns_add_u32 s54, s54, s55\ns_xor_b32 s55, s54, 0x400")
        A("v_mov_b32 v5, 0\nv_mov_b32 v6, 1")
        A("v_lshrrev_b32 v3, 4, v2\nv_and_b32 v7, 15, v2\nv_lshlrev_b32 v3, 13, v3\nv_lshl_add_u32 v7, v7, 3, v3")
        A("s_lshl_b32 s56, s24, 7\ns_lshl_b32 s57, s45, 6\ns_add_u32 s56, s56, s57\ns_lshl_b32 s57, s26, 5\ns_add_u32 s56, s56, s57\ns_lshl_b32 s56, s56, 11")
        A("s_lshl_b32 s57, s25, 8\ns_add_u32 s56, s56, s57\ns_lshl_b32 s57, s44, 7\ns_add_u32 s56, s56, s57")
        A("s_waitcnt vmcnt(0)")
        A("s_mov_b64 exec, 1\nbuffer_store_dword v6, v5, s[36:39], s54 offen sc1")
        A("s_mov_b32 s59, 0x400000")
        A(f"L_{P}_poll:\nbuffer_load_dword v18, v5, s[36:39], s55 offen sc1\ns_sub_u32 s59, s59, 1\ns_cbranch_scc1 L_{P}_polled\ns_waitcnt vmcnt(0)\nv_readfirstlane_b32 s58, v18\ns_cmp_eq_u32 s58, 1\ns_cbranch_scc0 L_{P}_poll\nL_{P}_polled:")
        A("s_mov_b64 exec, -1")
        for q in range(8):
            A(f"buffer_load_dwordx4 v[{128+4*q}:{131+4*q}], v4, s[32:35], s{52+q//4} offen offset:{(q%4)*1024} sc1")
        for sb in range(2):
            A(f"s_waitcnt vmcnt({4 if sb == 0 else 4})")
            for t in range(4):
                for r_ in range(4):
                    a = ACC + 16*sb + 4*t + r_
                    A(f"v_add_f32 v{a}, v{a}, v{128+16*sb+4*t+r_}")
            for r_ in range(4):
                a = ACC + 16*sb + r_
                d = 160 + 8*sb + 2*r_
                A(f"v_cvt_pk_bf16_f32 v{d}, v{a}, v{a+4}\nv_cvt_pk_bf16_f32 v{d+1}, v{a+8}, v{a+12}")
                A(f"s_add_u32 s57, s56, {(16*sb + r_)*2048}")
                A(f"buffer_store_dwordx2 v[{d}:{d+1}], v7, s[40:43], s57 offen")
    A("s_endpgm")
    A(f"L_{P}_loader:")
    A("s_sub_u32 s44, s3, 4")
    A("v_lshrrev_b32 v3, 4, v2\nv_and_b32 v4, 15, v2\nv_lshrrev_b32 v5, 1, v4\nv_and_b32 v4, 1, v4\nv_lshlrev_b32 v4, 4, v4")
    A(f"s_mov_b32 s45, {pitch}\ns_lshl_b32 s46, s44, 4\ns_lshl_b32 s47, s24, 8")
    for j in range(4):
        A(f"v_add_u32 v6, {4*(j%2)}, v3\nv_xor_b32 v6, v6, v5\nv_lshl_add_u32 v6, v6, 5, v4")
        A(f"s_add_u32 s48, s46, {4*j}\nv_add_u32 v7, s48, v3\nv_mul_lo_u32 v7, v7, s45\nv_add3_u32 v{8+j}, v7, v6, s47")
        if j: A(f"v_subrev_u32 v{8+j}, {j*1024}, v{8+j}")
    A(f"s_mul_i32 s48, s25, {nkb*8192}\ns_lshl_b32 s49, s44, 12\ns_add_u32 s48, s48, s49\nv_lshl_add_u32 v12, v2, 4, s48")
    A(f"s_mul_i32 s50, s26, {N*64*pitch}\ns_mul_i32 s51, s26, {N*16384}")
    A("s_lshl_b32 s52, s44, 12")
    def issue(m0expr):
        A(m0expr + "\ns_nop 0")
        for j in range(4): A(f"buffer_load_dwordx4 v{8+j}, s[8:11], s50 offen offset:{j*1024} lds")
        A("s_add_u32 m0, m0, 16384\n" + f"s_add_u32 s50, s50, {64*pitch}")
        for j in range(4): A(f"buffer_load_dwordx4 v12, s[12:15], s51 offen offset:{j*1024} lds")
        A("s_add_u32 s51, s51, 16384")
    for st_ in range(R): issue(f"s_add_u32 m0, s52, {st_*32768}")
    A(f"s_waitcnt vmcnt({8*(R-1)})\ns_barrier")
    A("s_mov_b32 s53, 0")
    A(f"L_{P}_lloop:")
    A(f"s_and_b32 s54, s53, {R-1}\ns_lshl_b32 s54, s54, 15")
    A(f"s_waitcnt vmcnt({8*(R-2)})\ns_barrier")
    issue("s_add_u32 m0, s52, s54")
    A(f"s_add_u32 s53, s53, 1\ns_cmp_lt_u32 s53, {N-R}\ns_cbranch_scc1 L_{P}_lloop")
    for n in range(N-R, N):
        A(f"s_waitcnt vmcnt({8*max(0, N-1-(n+1))})\ns_barrier")
    A(f"L_{P}_end:\ns_endpgm")
    return name

HEAD = open(__file__.replace("gen.py", "head.txt")).read()

def build(o):
    A = Asm()
    A.L.append(HEAD.rstrip("\n"))
    for c in o.get("seq", "l12"):
        if c == "l": A("; @launch kernel=ln_kernel grid=(256,1,1) block=(256,1,1) lds=256")
        if c == "1": A(f"; @launch kernel=g1_kernel grid=(224,1,1) block=(512,1,1) lds={R*32768}")
        if c == "2": A(f"; @launch kernel=g2_kernel grid=(256,1,1) block=(512,1,1) lds={R*32768}")
        if c == "e": A("; @launch kernel=empty_kernel grid=(256,1,1) block=(64,1,1) lds=0")
    A('.amdgcn_target "amdgcn-amd-amdhsa--gfx950"\n.text')
    gen_ln(A, o); gen_gemm(A, o, 1); gen_gemm(A, o, 2)
    if "e" in o.get("seq", ""): header(A, "empty_kernel"); A("s_endpgm")
    A('.section .rodata,"a"\n.p2align 6')
    if "e" in o.get("seq", ""): descriptor(A, "empty_kernel", 8); A(".p2align 6")
    descriptor(A, "ln_kernel", 104); A(".p2align 6"); descriptor(A, "g1_kernel", 192); A(".p2align 6"); descriptor(A, "g2_kernel", 192)
    return A.text()

if __name__ == "__main__":
    o = {}
    out = sys.argv[1]
    for kv in sys.argv[2:]:
        k, v = kv.split("=", 1)
        o[k] = int(v) if v.lstrip("-").isdigit() else v
    open(out, "w").write(build(o))
```

```python
import sys, struct, math

S, D, F = 2048, 1024, 3584
WS_H   = 0
WS_U   = 4 << 20
WS_XCH = 12 << 20
WS_FLG = 20 << 20
H_BYTES, U_BYTES, XCH_BYTES, FLG_BYTES = D*S*2, D*F*2, 256*4*8192, 256*1024
WS_STAMP = 24 << 20
R = 4

def f32(x): return "0x%08x" % struct.unpack("<I", struct.pack("<f", x))[0]

class Asm:
    def __init__(self): self.L = []
    def __call__(self, s):
        for l in s.split("\n"):
            l = l.strip()
            if l: self.L.append(l if (l.endswith(":") or l.startswith(".") or l.startswith(";")) else "    " + l)
    def text(self): return "\n".join(self.L) + "\n"

def srd(A, r, base, off, nbytes):
    if off:
        A(f"s_add_u32 s{r}, s{base}, {off}\ns_addc_u32 s{r+1}, s{base+1}, 0")
    else:
        A(f"s_mov_b32 s{r}, s{base}\ns_mov_b32 s{r+1}, s{base+1}")
    A(f"s_mov_b32 s{r+2}, {nbytes}\ns_mov_b32 s{r+3}, 0x20000")

def header(A, name):
    A(f".globl {name}\n.p2align 8\n.type {name},@function\n{name}:")

def descriptor(A, name, vgpr, sgpr=96):
    acc = (vgpr + 3) // 4 * 4
    A(f".amdhsa_kernel {name}\n  .amdhsa_next_free_vgpr {vgpr}\n  .amdhsa_next_free_sgpr {sgpr}\n  .amdhsa_accum_offset {acc}\n"
      "  .amdhsa_group_segment_fixed_size 0\n  .amdhsa_kernarg_size 64\n  .amdhsa_user_sgpr_count 2\n"
      "  .amdhsa_user_sgpr_kernarg_segment_ptr 1\n  .amdhsa_system_sgpr_workgroup_id_x 1\n.end_amdhsa_kernel")

def stamp(A, o, i):
    if o.get("stamp"):
        A(f"s_memrealtime s[{70+2*i}:{71+2*i}]")
        if i in (1, 2): A(f"s_memtime s[{62+2*i}:{63+2*i}]")
def stamp_flush(A, o, kidx, wsreg, n):
    if not o.get("stamp"): return
    A("s_waitcnt vmcnt(0)")
    stamp(A, o, n-1)
    A("s_waitcnt lgkmcnt(0)")
    A(f"s_add_u32 s90, s{wsreg}, {WS_STAMP + kidx*16384}\ns_addc_u32 s91, s{wsreg+1}, 0\ns_lshl_b32 s92, s2, 6\nv_mov_b32 v1, s92\ns_mov_b64 exec, 1")
    for i in range(n): A(f"v_mov_b32 v2, s{70+2*i}\nglobal_store_dword v1, v2, s[90:91] offset:{4*i}")
    A("s_sub_u32 s64, s66, s64\nv_mov_b32 v2, s64\nglobal_store_dword v1, v2, s[90:91] offset:60")
    A("s_getreg_b32 s64, hwreg(HW_REG_XCC_ID, 0, 4)\nv_mov_b32 v2, s64\nglobal_store_dword v1, v2, s[90:91] offset:56")
    A("s_getreg_b32 s64, hwreg(HW_REG_HW_ID)\nv_mov_b32 v2, s64\nglobal_store_dword v1, v2, s[90:91] offset:52")
def gen_spin(A, o):
    header(A, "spin_kernel")
    A("s_cmp_ge_u32 s2, 1\ns_cbranch_scc1 L_sp_end\ns_load_dwordx2 s[6:7], s[0:1], 56\ns_waitcnt lgkmcnt(0)")
    A(f"s_add_u32 s6, s6, {WS_STAMP}\ns_addc_u32 s7, s7, 0")
    def red(dst, spec):
        k, i, op = int(spec[0]), int(spec[1]), spec[2:]
        nw = (256, 224, 256)[k]
        for q in range(4):
            A(f"v_add_u32 v1, {64*q}, v0\nv_min_u32 v1, {nw-1}, v1\nv_lshlrev_b32 v1, 6, v1\nv_add_u32 v1, {k*16384 + 4*i}, v1\nglobal_load_dword v{2+q}, v1, s[6:7]")
        A("s_waitcnt vmcnt(0)")
        for q in range(1, 4): A(f"v_{op}_u32 v2, v2, v{2+q}")
        A(f"s_nop 1\nv_readlane_b32 s{dst}, v2, 0")
        for l in range(1, 64): A(f"v_readlane_b32 s20, v2, {l}\ns_nop 0\ns_{op}_u32 s{dst}, s{dst}, s20")
    red(10, "00min")
    a, b = o["spin"].split("-")
    red(11, a); red(12, b)
    A("s_sub_u32 s11, s11, s12\ns_add_u32 s10, s10, s11\ns_add_u32 s10, s10, 20000")
    A("s_mov_b32 s17, 200000\nL_sp_loop:\ns_sub_u32 s17, s17, 1\ns_cbranch_scc1 L_sp_end\ns_memrealtime s[14:15]\ns_waitcnt lgkmcnt(0)\ns_sub_u32 s16, s14, s10\ns_cmp_lt_i32 s16, 0\ns_cbranch_scc1 L_sp_loop")
    A("L_sp_end:\ns_endpgm")

def gen_ln(A, o):
    name = "ln_kernel"
    header(A, name)
    A("s_cmp_ge_u32 s2, 256\ns_cbranch_scc1 L_ln_end")
    stamp(A, o, 0)
    A("s_load_dwordx2 s[4:5], s[0:1], 0\ns_load_dwordx2 s[6:7], s[0:1], 56")
    A("s_lshr_b32 s20, s2, 2\ns_and_b32 s21, s2, 3")
    A("s_lshl_b32 s22, s20, 5\ns_lshl_b32 s23, s21, 2\ns_add_u32 s22, s22, s23\ns_lshl_b32 s22, s22, 11")
    A("v_lshlrev_b32 v1, 3, v0")
    A("s_waitcnt lgkmcnt(0)")
    srd(A, 8, 4, 0, S*D*2)
    A("s_add_u32 s24, s4, s22\ns_addc_u32 s25, s5, 0")
    rowoff = [(16*(j//4) + j % 4) * 2048 for j in range(8)]
    for j in range(8):
        A(f"s_add_u32 s{30+j}, s22, {rowoff[j]}")
    for j in range(8):
        A(f"buffer_load_dwordx2 v[{2+2*j}:{3+2*j}], v1, s[8:11], s{30+j} offen")
    for j in range(8):
        A(f"s_load_dword s{40+j}, s[24:25], {rowoff[j]}")
    zl = o.get("lnpf", 0)
    if zl:
        A("s_load_dwordx2 s[52:53], s[0:1], 8\nv_lshrrev_b32 v66, 6, v0\nv_and_b32 v67, 63, v0\nv_min_u32 v67, 55, v67\nv_lshlrev_b32 v67, 7, v67")
        A(f"s_lshl_b32 s54, s2, 2\nv_add_u32 v66, s54, v66\ns_mov_b32 s54, {F*2}\nv_mul_lo_u32 v66, v66, s54\nv_add_u32 v67, v67, v66\ns_waitcnt lgkmcnt(0)")
        srd(A, 56, 52, 0, S*F*2)
        for z in range(zl):
            A(f"s_mov_b32 s54, {z*1024*F*2}\nbuffer_load_dword v68, v67, s[56:59], s54 offen")
    srd(A, 12, 6, WS_H, H_BYTES)
    srd(A, 16, 6, WS_FLG, FLG_BYTES)
    A("v_lshrrev_b32 v62, 5, v0\nv_lshlrev_b32 v62, 19, v62")
    A("v_bfe_u32 v63, v0, 4, 1\nv_lshlrev_b32 v63, 12, v63\nv_add_u32 v62, v62, v63")
    A("v_and_b32 v63, 15, v0\nv_lshlrev_b32 v63, 4, v63\nv_add_u32 v62, v62, v63")
    A("s_lshl_b32 s26, s20, 13\ns_lshl_b32 s27, s21, 8\ns_add_u32 s26, s26, s27")
    A("v_lshrrev_b32 v64, 4, v0\nv_lshlrev_b32 v64, 4, v64")
    A("v_and_b32 v65, 3, v0\nv_lshlrev_b32 v65, 4, v65\nv_bfe_u32 v66, v0, 2, 1\nv_lshlrev_b32 v66, 2, v66\nv_add_u32 v65, v65, v66")
    A("s_waitcnt lgkmcnt(0)")
    for j in range(8): A(f"s_lshl_b32 s{40+j}, s{40+j}, 16")
    for j in range(8):
        A(f"s_waitcnt vmcnt({7-j+zl})")
        for c in range(4):
            src = 2 + 2*j + c//2
            d = 70 + 4*j + c
            if c % 2 == 0: A(f"v_lshlrev_b32 v{d}, 16, v{src}")
            else: A(f"v_and_b32 v{d}, 0xffff0000, v{src}")
        for c in range(4):
            d = 70 + 4*j + c
            A(f"v_subrev_f32 v{d}, s{40+j}, v{d}")
        b = 70 + 4*j
        A(f"v_add_f32 v{20+j}, v{b}, v{b+1}\nv_mul_f32 v{28+j}, v{b}, v{b}")
        A(f"v_add_f32 v{20+j}, v{20+j}, v{b+2}\nv_fmac_f32 v{28+j}, v{b+1}, v{b+1}")
        A(f"v_add_f32 v{20+j}, v{20+j}, v{b+3}\nv_fmac_f32 v{28+j}, v{b+2}, v{b+2}\nv_fmac_f32 v{28+j}, v{b+3}, v{b+3}")
    stamp(A, o, 1)
    A("s_nop 1")
    for p in range(8): A(f"v_permlane32_swap_b32 v{20+2*p}, v{21+2*p}")
    for p in range(8): A(f"v_add_f32 v{20+2*p}, v{20+2*p}, v{21+2*p}")
    A("s_nop 1")
    for q in range(4): A(f"v_permlane16_swap_b32 v{20+4*q}, v{22+4*q}")
    for q in range(4): A(f"v_add_f32 v{40+q}, v{20+4*q}, v{22+4*q}")
    for sh in (8, 4, 2, 1):
        A("s_nop 1")
        for q in range(4): A(f"v_add_f32_dpp v{40+q}, v{40+q}, v{40+q} row_ror:{sh} row_mask:0xf bank_mask:0xf")
    A("ds_write_b128 v64, v[40:43]")
    A("s_waitcnt lgkmcnt(0)\ns_barrier")
    for w in range(4): A(f"ds_read2_b32 v[{44+2*w}:{45+2*w}], v65 offset0:{16*w} offset1:{16*w+2}")
    A("s_waitcnt lgkmcnt(0)")
    A("v_add_f32 v44, v44, v46\nv_add_f32 v45, v45, v47\nv_add_f32 v48, v48, v50\nv_add_f32 v49, v49, v51\nv_add_f32 v44, v44, v48\nv_add_f32 v45, v45, v49")
    A(f"v_mul_f32 v44, {f32(1.0/D)}, v44\nv_mul_f32 v45, {f32(1.0/D)}, v45")
    A("v_fma_f32 v45, -v44, v44, v45\nv_max_f32 v45, 0, v45")
    A(f"v_add_f32 v45, {f32(1e-5)}, v45\nv_rsq_f32 v45, v45\ns_nop 0\nv_mul_f32 v44, v44, v45\nv_sub_f32 v44, 0, v44")
    A("s_nop 1")
    gmap = [0, 2, 1, 3]
    for e in range(8):
        j = gmap[e % 4] + 4*(e // 4)
        A(f"v_readlane_b32 s{50+j}, v45, {e}\nv_readlane_b32 s{60+j}, v44, {e}")
    A("s_nop 1")
    for j in range(8): A(f"v_mov_b32 v{20+j}, s{60+j}")
    for j in range(8):
        for c in range(4):
            d = 70 + 4*j + c
            A(f"v_fma_f32 v{d}, v{d}, s{50+j}, v{20+j}")
    for t in range(4):
        for jj in range(4):
            A(f"v_cvt_pk_bf16_f32 v{44+4*t+jj}, v{70+4*(2*jj)+t}, v{70+4*(2*jj+1)+t}")
        A(f"buffer_store_dwordx4 v[{44+4*t}:{47+4*t}], v62, s[12:15], s26 offen offset:{t*1024}")
    A("v_mov_b32 v60, 0\nv_lshlrev_b32 v61, 7, v0\ns_lshl_b32 s26, s2, 10")
    A("v_cmp_gt_u32 vcc, 8, v0\ns_and_saveexec_b64 s[28:29], vcc\ns_cbranch_execz L_ln_noflag")
    A("buffer_store_dword v60, v61, s[16:19], s26 offen")
    A("L_ln_noflag:\ns_mov_b64 exec, s[28:29]")
    if o.get("stamp"):
        A("v_readfirstlane_b32 s3, v0\ns_nop 1\ns_cmp_ge_u32 s3, 64\ns_cbranch_scc1 L_ln_end")
        stamp_flush(A, o, 0, 6, 3)
    A("L_ln_end:\ns_endpgm")
    return name

ACC, XW, XH, YW, YH = 32, 96, 112, 128, 144
VWA, VHA = 8, 16

def substep(A, o, cur, nxt, slot, ks, barrier, reads=True):
    cw, ch = cur; nw, nh = nxt
    hi = slot >= 2
    base = (slot % 2) * 32768
    rd = []
    def wread(fb):
        for r_ in range(2):
            rd.append(f"ds_read_b64_tr_b16 v[{nw+4*fb+2*r_}:{nw+4*fb+2*r_+1}], v{VWA+4*hi+fb} offset:{base + ks*8192 + r_*4096}")
    def hread(t):
        rd.append(f"ds_read_b128 v[{nh+4*t}:{nh+4*t+3}], v{VHA+hi} offset:{base + 16384 + ks*8192 + t*1024}")
    wread(0)
    for t in range(4): hread(t)
    for fb in range(1, 4): wread(fb)
    if not reads: rd = []
    A("s_waitcnt lgkmcnt(0)")
    if barrier: A("s_barrier")
    k = 0
    per = o.get("rdper", 2)
    for m in range(16):
        fb, t = m // 4, m % 4
        a = ACC + 16*fb + 4*t
        A(f"v_mfma_f32_16x16x32_bf16 v[{a}:{a+3}], v[{cw+4*fb}:{cw+4*fb+3}], v[{ch+4*t}:{ch+4*t+3}], v[{a}:{a+3}]")
        for _ in range(per):
            if k < len(rd): A(rd[k]); k += 1

def gen_gemm(A, o, which):
    g1 = which == 1
    name = "g1_kernel" if g1 else "g2_kernel"
    P = name[:2]
    nwg = 224 if g1 else 256
    N = 32 if g1 else 28
    pitch = F*2 if g1 else S*2
    nkb = 64 if g1 else 112
    header(A, name)
    spare = g1 and o.get("spare", 0)
    A(f"s_cmp_ge_u32 s2, {nwg}\ns_cbranch_scc1 L_{P}_{'spare' if spare else 'end'}")
    stamp(A, o, 0)
    A(f"s_load_dwordx4 s[4:7], s[0:1], {8 if g1 else 24}\ns_load_dwordx2 s[28:29], s[0:1], 56\ns_load_dwordx2 s[30:31], s[0:1], 40")
    A("v_lshrrev_b32 v1, 6, v0\nv_and_b32 v2, 63, v0\nv_readfirstlane_b32 s3, v1")
    A("s_and_b32 s20, s2, 7\ns_lshr_b32 s21, s2, 3")
    if g1:
        A("s_mul_i32 s22, s21, 37\ns_lshr_b32 s22, s22, 8\ns_mul_i32 s23, s22, 7\ns_sub_u32 s23, s21, s23")
        A("s_and_b32 s24, s20, 3\ns_mul_i32 s24, s24, 7\ns_add_u32 s24, s24, s23")
        A("s_lshr_b32 s25, s20, 2\ns_lshl_b32 s25, s25, 2\ns_add_u32 s25, s25, s22")
        A("s_mov_b32 s26, 0")
    else:
        A("s_and_b32 s26, s21, 1\ns_lshr_b32 s22, s21, 1")
        A("s_and_b32 s24, s20, 3\ns_lshl_b32 s24, s24, 2\ns_and_b32 s23, s22, 3\ns_add_u32 s24, s24, s23")
        A("s_lshr_b32 s25, s20, 2\ns_lshl_b32 s25, s25, 2\ns_lshr_b32 s23, s22, 2\ns_add_u32 s25, s25, s23")
    A("s_waitcnt lgkmcnt(0)")
    srd(A, 8, 4, 0, S*F*2)
    srd(A, 12, 28, WS_H if g1 else WS_U, H_BYTES if g1 else U_BYTES)
    srd(A, 16, 6, 0, (F if g1 else S)*2)
    if g1: srd(A, 32, 28, WS_U, U_BYTES)
    else:
        srd(A, 32, 28, WS_XCH, XCH_BYTES); srd(A, 36, 28, WS_FLG, FLG_BYTES); srd(A, 40, 30, 0, S*D*2)
    A(f"s_cmp_ge_u32 s3, 4\ns_cbranch_scc1 L_{P}_loader")
    A("s_and_b32 s44, s3, 1\ns_lshr_b32 s45, s3, 1")
    A("v_lshrrev_b32 v3, 4, v2\nv_and_b32 v4, 15, v2")
    A("s_lshl_b32 s46, s24, 8\ns_lshl_b32 s47, s45, 7\ns_add_u32 s46, s46, s47\ns_lshl_b32 s47, s26, 6")
    A("v_lshlrev_b32 v5, 3, v3")
    nb = 4 if g1 else 2
    for fb in range(nb):
        A(f"s_xor_b32 s48, s47, {fb*32}\ns_add_u32 s48, s48, s46")
        A(f"buffer_load_dwordx2 v[{20+2*fb}:{21+2*fb}], v5, s[16:19], s48 offen")
    if not g1:
        A("s_lshl_b32 s54, s2, 10\ns_lshl_b32 s55, s3, 8\ns_add_u32 s54, s54, s55\ns_xor_b32 s55, s54, 0x2000")
        if o.get("fastx", 0):
            A("s_getreg_b32 s60, hwreg(HW_REG_XCC_ID, 0, 4)\ns_add_u32 s60, s60, 1\nv_mov_b32 v6, s60\nv_mov_b32 v7, 128")
            A("s_mov_b64 exec, 1\nbuffer_store_dword v6, v7, s[36:39], s54 offen sc1\ns_mov_b64 exec, -1")
    A("v_lshrrev_b32 v6, 2, v4\nv_lshl_add_u32 v7, v3, 2, v6")
    A("v_and_b32 v18, 7, v7\nv_lshlrev_b32 v7, 8, v7\nv_and_b32 v19, 3, v4\nv_lshl_add_u32 v7, v19, 3, v7")
    A("s_lshl_b32 s48, s45, 2\ns_lshl_b32 s49, s26, 1\ns_xor_b32 s48, s48, s49")
    for fb in range(4):
        A(f"s_xor_b32 s49, s48, {fb}\nv_xor_b32 v19, s49, v18\nv_lshl_add_u32 v{VWA+fb}, v19, 5, v7\nv_add_u32 v{VWA+4+fb}, 0x10000, v{VWA+fb}")
    A(f"s_lshl_b32 s48, s44, 12\nv_lshl_add_u32 v{VHA}, v2, 4, s48\nv_add_u32 v{VHA+1}, 0x10000, v{VHA}")
    A("s_waitcnt vmcnt(0)")
    for fb in range(4):
        for r_ in range(4):
            a = ACC + 16*fb + r_
            if fb < nb:
                src = 20 + 2*fb + r_//2
                A(f"v_lshlrev_b32 v{a}, 16, v{src}" if r_ % 2 == 0 else f"v_and_b32 v{a}, 0xffff0000, v{src}")
            else: A(f"v_mov_b32 v{a}, 0")
            for t in range(1, 4): A(f"v_mov_b32 v{a+4*t}, v{a}")
    fast = (not g1) and o.get("fastx", 0)
    if o.get("prio"): A("s_setprio 1")
    A("s_barrier")
    if fast: A("v_mov_b32 v5, 128\nbuffer_load_dword v30, v5, s[36:39], s55 offen sc1")
    stamp(A, o, 1)
    X, Y = (XW, XH), (YW, YH)
    for fb in range(4):
        for r_ in range(2): A(f"ds_read_b64_tr_b16 v[{XW+4*fb+2*r_}:{XW+4*fb+2*r_+1}], v{VWA+fb} offset:{r_*4096}")
    for t in range(4): A(f"ds_read_b128 v[{XH+4*t}:{XH+4*t+3}], v{VHA} offset:{16384+t*1024}")
    A(f"s_mov_b32 s50, {N//R}")
    A(f".p2align 6\nL_{P}_cloop:")
    for r_ in range(R):
        substep(A, o, X, Y, r_, 1, False)
        substep(A, o, Y, X, (r_+1) % R, 0, True)
    A(f"s_sub_u32 s50, s50, 1\ns_cmp_lg_u32 s50, 0\ns_cbranch_scc1 L_{P}_cloop")
    stamp(A, o, 2)
    A("s_waitcnt lgkmcnt(0)\ns_nop 7")
    if g1:
        c0 = -2.0*math.sqrt(2.0/math.pi)*math.log2(math.e); c1 = c0*0.044715
        A(f"s_mov_b32 s52, {f32(c1)}\nv_mov_b32 v3, {f32(c0)}")
        A(f"s_mul_i32 s48, s25, 112\ns_lshl_b32 s49, s24, 2\ns_add_u32 s48, s48, s49\ns_lshl_b32 s49, s45, 1\ns_add_u32 s48, s48, s49\ns_lshl_b32 s48, s48, 13")
        A("s_lshl_b32 s49, s44, 12\ns_add_u32 s48, s48, s49\ns_add_u32 s49, s48, 8192\nv_lshlrev_b32 v4, 4, v2")
        T = XW
        for kbl in range(2):
            for t in range(4):
                regs = [ACC + 16*(2*kbl + h) + 4*t + r_ for h in range(2) for r_ in range(4)]
                tb = T + ((kbl*4 + t) % 2) * 16
                for e, a in enumerate(regs): A(f"v_mul_f32 v{tb+e}, v{a}, v{a}")
                for e, a in enumerate(regs): A(f"v_fma_f32 v{tb+e}, v{tb+e}, s52, v3")
                for e, a in enumerate(regs): A(f"v_mul_f32 v{tb+e}, v{tb+e}, v{a}")
                for e, a in enumerate(regs): A(f"v_exp_f32 v{tb+e}, v{tb+e}")
                for e, a in enumerate(regs): A(f"v_add_f32 v{tb+e}, 1.0, v{tb+e}")
                for e, a in enumerate(regs): A(f"v_rcp_f32 v{tb+e}, v{tb+e}")
                for e, a in enumerate(regs): A(f"v_mul_f32 v{tb+e}, v{tb+e}, v{a}")
                for e in range(4): A(f"v_cvt_pk_bf16_f32 v{tb+8+e}, v{tb+2*e}, v{tb+2*e+1}")
                A(f"buffer_store_dwordx4 v[{tb+8}:{tb+11}], v4, s[32:35], s{48+kbl} offen offset:{t*1024} {o.get('uflag','')}")
    else:
        A("s_lshl_b32 s48, s2, 2\ns_add_u32 s48, s48, s3\ns_lshl_b32 s48, s48, 13\ns_add_u32 s49, s48, 4096")
        A("s_xor_b32 s52, s48, 0x40000\ns_add_u32 s53, s52, 4096")
        A("v_lshlrev_b32 v4, 4, v2")
        A("v_lshrrev_b32 v3, 4, v2\nv_and_b32 v7, 15, v2\nv_lshlrev_b32 v3, 13, v3\nv_lshl_add_u32 v7, v7, 3, v3")
        A("s_lshl_b32 s56, s24, 7\ns_lshl_b32 s57, s45, 6\ns_add_u32 s56, s56, s57\ns_lshl_b32 s57, s26, 5\ns_add_u32 s56, s56, s57\ns_lshl_b32 s56, s56, 11")
        A("s_lshl_b32 s57, s25, 8\ns_add_u32 s56, s56, s57\ns_lshl_b32 s57, s44, 7\ns_add_u32 s56, s56, s57")
        A("v_mov_b32 v5, 0\nv_mov_b32 v6, 1")
        def send(flag):
            for q in range(8):
                a = ACC + 32 + 4*q
                A(f"buffer_store_dwordx4 v[{a}:{a+3}], v4, s[32:35], s{48+q//4} offen offset:{(q%4)*1024} {flag}")
            A("s_waitcnt vmcnt(0)")
            stamp(A, o, 3)
            A(f"s_mov_b64 exec, 1\nbuffer_store_dword v6, v5, s[36:39], s54 offen {flag}")
        if fast:
            A("s_waitcnt vmcnt(0)\nv_readfirstlane_b32 s61, v30\ns_cmp_eq_u32 s61, s60\ns_cbranch_scc0 L_g2_far")
            send(o.get("nearflag", ""))
            A("s_branch L_g2_sent\nL_g2_far:")
        send("sc1")
        A("L_g2_sent:")
        A("s_mov_b32 s59, 0x400000")
        A(f"L_{P}_poll:\nbuffer_load_dword v18, v5, s[36:39], s55 offen sc1\ns_sub_u32 s59, s59, 1\ns_cbranch_scc1 L_{P}_polled\ns_waitcnt vmcnt(0)\nv_readfirstlane_b32 s58, v18\ns_cmp_eq_u32 s58, 1\ns_cbranch_scc0 L_{P}_poll\nL_{P}_polled:")
        A("s_mov_b64 exec, -1")
        stamp(A, o, 4)
        for q in range(8):
            A(f"buffer_load_dwordx4 v[{XW+4*q}:{XW+3+4*q}], v4, s[32:35], s{52+q//4} offen offset:{(q%4)*1024} {o.get('rdflag', 'sc1')}")
        for sb in range(2):
            A(f"s_waitcnt vmcnt(4)")
            if sb == 1: stamp(A, o, 5)
            for t in range(4):
                for r_ in range(4):
                    a = ACC + 16*sb + 4*t + r_
                    A(f"v_add_f32 v{a}, v{a}, v{XW+16*sb+4*t+r_}")
            for r_ in range(4):
                a = ACC + 16*sb + r_
                d = YW + 8*sb + 2*r_
                A(f"v_cvt_pk_bf16_f32 v{d}, v{a}, v{a+4}\nv_cvt_pk_bf16_f32 v{d+1}, v{a+8}, v{a+12}")
                A(f"s_add_u32 s57, s56, {(16*sb + r_)*2048}")
                A(f"buffer_store_dwordx2 v[{d}:{d+1}], v7, s[40:43], s57 offen")
    if o.get("stamp"):
        A(f"s_cmp_lg_u32 s3, 0\ns_cbranch_scc1 L_{P}_end")
        if g1: stamp(A, o, 3)
        stamp_flush(A, o, which, 28, 5 if g1 else 7)
    A("s_endpgm")
    A(f"L_{P}_loader:")
    PF = o.get("pf", 0)
    if PF: A(f"s_cmp_eq_u32 s3, 8\ns_cbranch_scc1 L_{P}_pf")
    A("s_sub_u32 s44, s3, 4")
    A("v_lshrrev_b32 v3, 4, v2\nv_and_b32 v4, 15, v2\nv_lshrrev_b32 v5, 1, v4\nv_and_b32 v4, 1, v4\nv_lshlrev_b32 v4, 4, v4")
    A(f"s_mov_b32 s45, {pitch}\ns_lshl_b32 s46, s44, 4\ns_lshl_b32 s47, s24, 8")
    for j in range(4):
        A(f"v_add_u32 v6, {4*(j%2)}, v3\nv_xor_b32 v6, v6, v5\nv_lshl_add_u32 v6, v6, 5, v4")
        A(f"s_add_u32 s48, s46, {4*j}\nv_add_u32 v7, s48, v3\nv_mul_lo_u32 v7, v7, s45\nv_add3_u32 v{8+j}, v7, v6, s47")
        if j: A(f"v_subrev_u32 v{8+j}, {j*1024}, v{8+j}")
    A(f"s_mul_i32 s48, s25, {nkb*8192}\ns_lshl_b32 s49, s44, 12\ns_add_u32 s48, s48, s49\nv_lshl_add_u32 v12, v2, 4, s48")
    A(f"s_mul_i32 s50, s26, {N*64*pitch}\ns_mul_i32 s51, s26, {N*16384}")
    A("s_lshl_b32 s52, s44, 12")
    def issue(m0expr):
        A(m0expr + "\ns_nop 0")
        for j in range(4): A(f"buffer_load_dwordx4 v{8+j}, s[8:11], s50 offen offset:{j*1024} lds")
        A("s_add_u32 m0, m0, 16384\n" + f"s_add_u32 s50, s50, {64*pitch}")
        for j in range(4): A(f"buffer_load_dwordx4 v12, s[12:15], s51 offen offset:{j*1024} lds")
        A("s_add_u32 s51, s51, 16384")
        if o.get("wrapw"): A(f"s_cmp_ge_u32 s50, {o['wrapw']*64*pitch}\ns_cselect_b32 s50, 0, s50")
        if o.get("wraph"): A(f"s_cmp_ge_u32 s51, {o['wraph']*16384}\ns_cselect_b32 s51, 0, s51")
    for st_ in range(R): issue(f"s_add_u32 m0, s52, {st_*32768}")
    A(f"s_waitcnt vmcnt({8*(R-1)})\ns_barrier")
    A("s_mov_b32 s53, 0")
    A(f"L_{P}_lloop:")
    A(f"s_and_b32 s54, s53, {R-1}\ns_lshl_b32 s54, s54, 15")
    A(f"s_waitcnt vmcnt({8*(R-2)})\ns_barrier")
    issue("s_add_u32 m0, s52, s54")
    A(f"s_add_u32 s53, s53, 1\ns_cmp_lt_u32 s53, {N-R}\ns_cbranch_scc1 L_{P}_lloop")
    tail = g1 and o.get("tailpf", 0)
    if tail:
        A("s_load_dwordx2 s[4:5], s[0:1], 24\ns_lshl_b32 s46, s2, 2\ns_add_u32 s46, s46, s44")
        A(f"v_and_b32 v4, 31, v2\nv_lshlrev_b32 v4, 7, v4\nv_lshrrev_b32 v5, 5, v2\nv_mul_u32_u24 v5, 1792, v5\nv_add_u32 v5, s46, v5\nv_lshl_add_u32 v4, v5, 12, v4")
        A("s_waitcnt lgkmcnt(0)")
        srd(A, 16, 4, 0, S*F*2)
        A("buffer_load_dword v6, v4, s[16:19], 0 offen")
    for n in range(N-R, N):
        A(f"s_waitcnt vmcnt({8*max(0, N-1-(n+1)) + (1 if tail else 0)})\ns_barrier")
    if PF:
        A("s_endpgm")
        A(f"L_{P}_pf:")
        p0 = o.get("pfstart", 1)
        A("s_and_b32 s44, s25, 3\ns_lshl_b32 s44, s44, 4")
        A(f"v_lshrrev_b32 v3, 1, v2\nv_add_u32 v3, s44, v3\ns_mov_b32 s45, {pitch}\nv_mul_lo_u32 v3, v3, s45")
        A("v_and_b32 v4, 1, v2\nv_lshlrev_b32 v4, 7, v4\ns_lshl_b32 s47, s24, 8\nv_add3_u32 v8, v3, v4, s47")
        per = 19 if g1 else 32
        if g1: A(f"s_mul_i32 s46, s23, {per}")
        else: A(f"s_and_b32 s46, s24, 3\ns_mul_i32 s46, s46, {per}")
        A(f"v_add_u32 v5, s46, v2\nv_min_u32 v5, 127, v5\nv_lshlrev_b32 v5, 7, v5\ns_mul_i32 s48, s25, {nkb*8192}\nv_add_u32 v9, s48, v5")
        A(f"s_mul_i32 s50, s26, {N*64*pitch}\ns_add_u32 s50, s50, {p0*64*pitch}\ns_mul_i32 s51, s26, {N*16384}\ns_add_u32 s51, s51, {p0*16384}")
        A("s_mov_b32 exec_hi, 0")
        def pf():
            A("s_mov_b32 exec_lo, -1\nbuffer_load_dword v10, v8, s[8:11], s50 offen")
            A(f"s_mov_b32 exec_lo, {(1 << per) - 1 if per < 32 else -1}\nbuffer_load_dword v11, v9, s[12:15], s51 offen")
            A(f"s_add_u32 s50, s50, {64*pitch}\ns_add_u32 s51, s51, 16384")
        for z in range(p0, R + PF): pf()
        A("s_barrier\ns_mov_b32 s53, 0")
        A(f"L_{P}_ploop:\ns_barrier")
        pf()
        A(f"s_add_u32 s53, s53, 1\ns_cmp_lt_u32 s53, {N-R-PF}\ns_cbranch_scc1 L_{P}_ploop")
    if spare:
        A("s_endpgm\nL_g1_spare:\ns_cmp_ge_u32 s2, 256\ns_cbranch_scc1 L_g1_end")
        A("s_load_dwordx2 s[4:5], s[0:1], 8\ns_load_dwordx2 s[6:7], s[0:1], 24")
        A("v_readfirstlane_b32 s3, v0\ns_nop 1\ns_cmp_ge_u32 s3, 64\ns_cbranch_scc1 L_g1_end")
        A("s_sub_u32 s3, s2, 224\ns_lshl_b32 s16, s3, 13\nv_lshl_add_u32 v3, v0, 7, s16")
        A(f"v_and_b32 v4, 31, v0\nv_lshlrev_b32 v4, 7, v4\nv_lshrrev_b32 v5, 5, v0\nv_mul_u32_u24 v5, 1792, v5\nv_add_u32 v5, s3, v5\nv_lshl_add_u32 v4, v5, 12, v4")
        A("s_waitcnt lgkmcnt(0)")
        srd(A, 8, 4, 0, S*F*2); srd(A, 12, 6, 0, S*F*2)
        r0 = o.get("lnrows", 1024 * o.get("lnpf", 0))
        if r0 < S:
            A(f"s_mov_b32 s3, {r0*F*2}\nL_g1_sp1:\nbuffer_load_dword v6, v3, s[8:11], s3 offen\ns_add_u32 s3, s3, {32*8192}\ns_cmp_lt_u32 s3, {S*F*2}\ns_cbranch_scc1 L_g1_sp1")
        a0, a1 = (896 if o.get("tailpf") else 0), o.get("sparew2", 1792)
        if a0 < a1:
            A(f"s_mov_b32 s3, {a0*S*2}\nL_g1_sp2:\nbuffer_load_dword v6, v4, s[12:15], s3 offen\ns_add_u32 s3, s3, {32*S*2}\ns_cmp_lt_u32 s3, {a1*S*2}\ns_cbranch_scc1 L_g1_sp2")
        if o.get("stamp"):
            A("s_load_dwordx2 s[28:29], s[0:1], 56\ns_waitcnt lgkmcnt(0)")
            stamp_flush(A, o, which, 28, 1)
    A(f"L_{P}_end:\ns_endpgm")
    return name

HEAD = open(__file__.replace("gen.py", "head.txt")).read()

def build(o):
    A = Asm()
    A.L.append(HEAD.rstrip("\n"))
    for c in o.get("seq", "l12"):
        if c == "l": A("; @launch kernel=ln_kernel grid=(256,1,1) block=(256,1,1) lds=256")
        if c == "1": A(f"; @launch kernel=g1_kernel grid=({256 if o.get('spare') else 224},1,1) block=({576 if o.get('pf') else 512},1,1) lds={R*32768}")
        if c == "2": A(f"; @launch kernel=g2_kernel grid=(256,1,1) block=({576 if o.get('pf') else 512},1,1) lds={R*32768}")
        if c == "s": A("; @launch kernel=spin_kernel grid=(1,1,1) block=(64,1,1) lds=0")
        if c == "e": A("; @launch kernel=empty_kernel grid=(256,1,1) block=(64,1,1) lds=0")
    A('.amdgcn_target "amdgcn-amd-amdhsa--gfx950"\n.text')
    gen_ln(A, o); gen_gemm(A, o, 1); gen_gemm(A, o, 2)
    if "e" in o.get("seq", ""): header(A, "empty_kernel"); A("s_endpgm")
    if "s" in o.get("seq", ""): gen_spin(A, o)
    A('.section .rodata,"a"\n.p2align 6')
    if "e" in o.get("seq", ""): descriptor(A, "empty_kernel", 8); A(".p2align 6")
    if "s" in o.get("seq", ""): descriptor(A, "spin_kernel", 16); A(".p2align 6")
    descriptor(A, "ln_kernel", 104); A(".p2align 6"); descriptor(A, "g1_kernel", 160); A(".p2align 6"); descriptor(A, "g2_kernel", 160)
    return A.text()

if __name__ == "__main__":
    o = {}
    out = sys.argv[1]
    for kv in sys.argv[2:]:
        k, v = kv.split("=", 1)
        o[k] = int(v) if v.lstrip("-").isdigit() else v
    open(out, "w").write(build(o))
```

```python
import sys, struct, math

S, D, F = 2048, 1024, 3584
WS_H   = 0
WS_U   = 4 << 20
WS_XCH = 12 << 20
WS_FLG = 20 << 20
H_BYTES, U_BYTES, XCH_BYTES, FLG_BYTES = D*S*2, D*F*2, 256*4*8192, 256*1024
WS_STAMP = 24 << 20
R = 4

def f32(x): return "0x%08x" % struct.unpack("<I", struct.pack("<f", x))[0]

class Asm:
    def __init__(self): self.L = []
    def __call__(self, s):
        for l in s.split("\n"):
            l = l.strip()
            if l: self.L.append(l if (l.endswith(":") or l.startswith(".") or l.startswith(";")) else "    " + l)
    def text(self): return "\n".join(self.L) + "\n"

def srd(A, r, base, off, nbytes):
    if off:
        A(f"s_add_u32 s{r}, s{base}, {off}\ns_addc_u32 s{r+1}, s{base+1}, 0")
    else:
        A(f"s_mov_b32 s{r}, s{base}\ns_mov_b32 s{r+1}, s{base+1}")
    A(f"s_mov_b32 s{r+2}, {nbytes}\ns_mov_b32 s{r+3}, 0x20000")

def header(A, name):
    A(f".globl {name}\n.p2align 8\n.type {name},@function\n{name}:")

def descriptor(A, name, vgpr, sgpr=96):
    acc = (vgpr + 3) // 4 * 4
    A(f".amdhsa_kernel {name}\n  .amdhsa_next_free_vgpr {vgpr}\n  .amdhsa_next_free_sgpr {sgpr}\n  .amdhsa_accum_offset {acc}\n"
      "  .amdhsa_group_segment_fixed_size 0\n  .amdhsa_kernarg_size 64\n  .amdhsa_user_sgpr_count 2\n"
      "  .amdhsa_user_sgpr_kernarg_segment_ptr 1\n  .amdhsa_system_sgpr_workgroup_id_x 1\n.end_amdhsa_kernel")

def stamp(A, o, i):
    if o.get("stamp"):
        A(f"s_memrealtime s[{70+2*i}:{71+2*i}]")
        if i in (1, 2): A(f"s_memtime s[{62+2*i}:{63+2*i}]")
def stamp_flush(A, o, kidx, wsreg, n):
    if not o.get("stamp"): return
    A("s_waitcnt vmcnt(0)")
    stamp(A, o, n-1)
    A("s_waitcnt lgkmcnt(0)")
    A(f"s_add_u32 s90, s{wsreg}, {WS_STAMP + kidx*16384}\ns_addc_u32 s91, s{wsreg+1}, 0\ns_lshl_b32 s92, s2, 6\nv_mov_b32 v1, s92\ns_mov_b64 exec, 1")
    for i in range(n): A(f"v_mov_b32 v2, s{70+2*i}\nglobal_store_dword v1, v2, s[90:91] offset:{4*i}")
    A("s_sub_u32 s64, s66, s64\nv_mov_b32 v2, s64\nglobal_store_dword v1, v2, s[90:91] offset:60")
    A("s_getreg_b32 s64, hwreg(HW_REG_XCC_ID, 0, 4)\nv_mov_b32 v2, s64\nglobal_store_dword v1, v2, s[90:91] offset:56")
    A("s_getreg_b32 s64, hwreg(HW_REG_HW_ID)\nv_mov_b32 v2, s64\nglobal_store_dword v1, v2, s[90:91] offset:52")
def gen_spin(A, o):
    header(A, "spin_kernel")
    A("s_cmp_ge_u32 s2, 1\ns_cbranch_scc1 L_sp_end\ns_load_dwordx2 s[6:7], s[0:1], 56\ns_waitcnt lgkmcnt(0)")
    A(f"s_add_u32 s6, s6, {WS_STAMP}\ns_addc_u32 s7, s7, 0")
    def red(dst, spec):
        k, i, op = int(spec[0]), int(spec[1], 16), spec[2:]
        nw = (256, 224, 256)[k]
        for q in range(4):
            A(f"v_add_u32 v1, {64*q}, v0\nv_min_u32 v1, {nw-1}, v1\nv_lshlrev_b32 v1, 6, v1\nv_add_u32 v1, {k*16384 + 4*i}, v1\nglobal_load_dword v{2+q}, v1, s[6:7]")
        A("s_waitcnt vmcnt(0)")
        for q in range(1, 4): A(f"v_{op}_u32 v2, v2, v{2+q}")
        A(f"s_nop 1\nv_readlane_b32 s{dst}, v2, 0")
        for l in range(1, 64): A(f"v_readlane_b32 s20, v2, {l}\ns_nop 0\ns_{op}_u32 s{dst}, s{dst}, s20")
    red(10, "00min")
    if o["spin"].startswith("xcc"):
        k = int(o["spin"][3])
        A("s_mov_b32 s11, 0\ns_mov_b32 s12, 0")
        for q in range(3):
            A(f"v_add_u32 v1, {64*q}, v0\nv_xor_b32 v4, 8, v1\nv_lshlrev_b32 v1, 6, v1\nv_lshlrev_b32 v4, 6, v4\nv_add_u32 v1, {k*16384 + 56}, v1\nv_add_u32 v4, {k*16384 + 56}, v4")
            A("global_load_dword v2, v1, s[6:7]\nglobal_load_dword v3, v4, s[6:7]\ns_waitcnt vmcnt(0)\nv_cmp_eq_u32 vcc, v2, v3\ns_nop 4\ns_bcnt1_i32_b64 s13, vcc\ns_mul_i32 s13, s13, 10\ns_add_u32 s11, s11, s13")
    elif o["spin"].startswith("cyc"):
        red(11, o["spin"][3] + "f" + o["spin"][4:]); A("s_lshr_b32 s11, s11, 2\ns_mov_b32 s12, 0")
    else:
        a, b = o["spin"].split("-")
        red(11, a); red(12, b)
    A("s_sub_u32 s11, s11, s12\ns_add_u32 s10, s10, s11\ns_add_u32 s10, s10, 20000")
    A("s_mov_b32 s17, 200000\nL_sp_loop:\ns_sub_u32 s17, s17, 1\ns_cbranch_scc1 L_sp_end\ns_memrealtime s[14:15]\ns_waitcnt lgkmcnt(0)\ns_sub_u32 s16, s14, s10\ns_cmp_lt_i32 s16, 0\ns_cbranch_scc1 L_sp_loop")
    A("L_sp_end:\ns_endpgm")

def gen_ln(A, o):
    name = "ln_kernel"
    header(A, name)
    A("s_cmp_ge_u32 s2, 256\ns_cbranch_scc1 L_ln_end")
    stamp(A, o, 0)
    A("s_load_dwordx2 s[4:5], s[0:1], 0\ns_load_dwordx2 s[6:7], s[0:1], 56")
    A("s_lshr_b32 s20, s2, 2\ns_and_b32 s21, s2, 3")
    A("s_lshl_b32 s22, s20, 5\ns_lshl_b32 s23, s21, 2\ns_add_u32 s22, s22, s23\ns_lshl_b32 s22, s22, 11")
    A("v_lshlrev_b32 v1, 3, v0")
    A("s_waitcnt lgkmcnt(0)")
    srd(A, 8, 4, 0, S*D*2)
    A("s_add_u32 s24, s4, s22\ns_addc_u32 s25, s5, 0")
    rowoff = [(16*(j//4) + j % 4) * 2048 for j in range(8)]
    for j in range(8):
        A(f"s_add_u32 s{30+j}, s22, {rowoff[j]}")
    for j in range(8):
        A(f"buffer_load_dwordx2 v[{2+2*j}:{3+2*j}], v1, s[8:11], s{30+j} offen")
    for j in range(8):
        A(f"s_load_dword s{40+j}, s[24:25], {rowoff[j]}")
    zl = o.get("lnpf", 0)
    if zl:
        A("s_load_dwordx2 s[52:53], s[0:1], 8\nv_lshrrev_b32 v66, 6, v0\nv_and_b32 v67, 63, v0\nv_min_u32 v67, 55, v67\nv_lshlrev_b32 v67, 7, v67")
        A(f"s_lshl_b32 s54, s2, 2\nv_add_u32 v66, s54, v66\ns_mov_b32 s54, {F*2}\nv_mul_lo_u32 v66, v66, s54\nv_add_u32 v67, v67, v66\ns_waitcnt lgkmcnt(0)")
        srd(A, 56, 52, 0, S*F*2)
        for z in range(zl):
            A(f"s_mov_b32 s54, {z*1024*F*2}\nbuffer_load_dword v68, v67, s[56:59], s54 offen")
    srd(A, 12, 6, WS_H, H_BYTES)
    srd(A, 16, 6, WS_FLG, FLG_BYTES)
    A("v_lshrrev_b32 v62, 5, v0\nv_lshlrev_b32 v62, 19, v62")
    A("v_bfe_u32 v63, v0, 4, 1\nv_lshlrev_b32 v63, 12, v63\nv_add_u32 v62, v62, v63")
    A("v_and_b32 v63, 15, v0\nv_lshlrev_b32 v63, 4, v63\nv_add_u32 v62, v62, v63")
    A("s_lshl_b32 s26, s20, 13\ns_lshl_b32 s27, s21, 8\ns_add_u32 s26, s26, s27")
    A("v_lshrrev_b32 v64, 4, v0\nv_lshlrev_b32 v64, 4, v64")
    A("v_and_b32 v65, 3, v0\nv_lshlrev_b32 v65, 4, v65\nv_bfe_u32 v66, v0, 2, 1\nv_lshlrev_b32 v66, 2, v66\nv_add_u32 v65, v65, v66")
    A("s_waitcnt lgkmcnt(0)")
    for j in range(8): A(f"s_lshl_b32 s{40+j}, s{40+j}, 16")
    for j in range(8):
        A(f"s_waitcnt vmcnt({7-j+zl})")
        for c in range(4):
            src = 2 + 2*j + c//2
            d = 70 + 4*j + c
            if c % 2 == 0: A(f"v_lshlrev_b32 v{d}, 16, v{src}")
            else: A(f"v_and_b32 v{d}, 0xffff0000, v{src}")
        for c in range(4):
            d = 70 + 4*j + c
            A(f"v_subrev_f32 v{d}, s{40+j}, v{d}")
        b = 70 + 4*j
        A(f"v_add_f32 v{20+j}, v{b}, v{b+1}\nv_mul_f32 v{28+j}, v{b}, v{b}")
        A(f"v_add_f32 v{20+j}, v{20+j}, v{b+2}\nv_fmac_f32 v{28+j}, v{b+1}, v{b+1}")
        A(f"v_add_f32 v{20+j}, v{20+j}, v{b+3}\nv_fmac_f32 v{28+j}, v{b+2}, v{b+2}\nv_fmac_f32 v{28+j}, v{b+3}, v{b+3}")
    stamp(A, o, 1)
    A("s_nop 1")
    for p in range(8): A(f"v_permlane32_swap_b32 v{20+2*p}, v{21+2*p}")
    for p in range(8): A(f"v_add_f32 v{20+2*p}, v{20+2*p}, v{21+2*p}")
    A("s_nop 1")
    for q in range(4): A(f"v_permlane16_swap_b32 v{20+4*q}, v{22+4*q}")
    for q in range(4): A(f"v_add_f32 v{40+q}, v{20+4*q}, v{22+4*q}")
    for sh in (8, 4, 2, 1):
        A("s_nop 1")
        for q in range(4): A(f"v_add_f32_dpp v{40+q}, v{40+q}, v{40+q} row_ror:{sh} row_mask:0xf bank_mask:0xf")
    A("ds_write_b128 v64, v[40:43]")
    A("s_waitcnt lgkmcnt(0)\ns_barrier")
    for w in range(4): A(f"ds_read2_b32 v[{44+2*w}:{45+2*w}], v65 offset0:{16*w} offset1:{16*w+2}")
    A("s_waitcnt lgkmcnt(0)")
    A("v_add_f32 v44, v44, v46\nv_add_f32 v45, v45, v47\nv_add_f32 v48, v48, v50\nv_add_f32 v49, v49, v51\nv_add_f32 v44, v44, v48\nv_add_f32 v45, v45, v49")
    A(f"v_mul_f32 v44, {f32(1.0/D)}, v44\nv_mul_f32 v45, {f32(1.0/D)}, v45")
    A("v_fma_f32 v45, -v44, v44, v45\nv_max_f32 v45, 0, v45")
    A(f"v_add_f32 v45, {f32(1e-5)}, v45\nv_rsq_f32 v45, v45\ns_nop 0\nv_mul_f32 v44, v44, v45\nv_sub_f32 v44, 0, v44")
    A("s_nop 1")
    gmap = [0, 2, 1, 3]
    for e in range(8):
        j = gmap[e % 4] + 4*(e // 4)
        A(f"v_readlane_b32 s{50+j}, v45, {e}\nv_readlane_b32 s{60+j}, v44, {e}")
    A("s_nop 1")
    for j in range(8): A(f"v_mov_b32 v{20+j}, s{60+j}")
    for j in range(8):
        for c in range(4):
            d = 70 + 4*j + c
            A(f"v_fma_f32 v{d}, v{d}, s{50+j}, v{20+j}")
    for t in range(4):
        for jj in range(4):
            A(f"v_cvt_pk_bf16_f32 v{44+4*t+jj}, v{70+4*(2*jj)+t}, v{70+4*(2*jj+1)+t}")
        A(f"buffer_store_dwordx4 v[{44+4*t}:{47+4*t}], v62, s[12:15], s26 offen offset:{t*1024}")
    A("v_mov_b32 v60, 0\nv_lshlrev_b32 v61, 7, v0\ns_lshl_b32 s26, s2, 10")
    A("v_cmp_gt_u32 vcc, 8, v0\ns_and_saveexec_b64 s[28:29], vcc\ns_cbranch_execz L_ln_noflag")
    A("buffer_store_dword v60, v61, s[16:19], s26 offen")
    A("L_ln_noflag:\ns_mov_b64 exec, s[28:29]")
    if o.get("stamp"):
        A("v_readfirstlane_b32 s3, v0\ns_nop 1\ns_cmp_ge_u32 s3, 64\ns_cbranch_scc1 L_ln_end")
        stamp_flush(A, o, 0, 6, 3)
    A("L_ln_end:\ns_endpgm")
    return name

ACC, XW, XH, YW, YH = 32, 96, 112, 128, 144
VWA, VHA = 8, 16

def substep(A, o, cur, nxt, slot, ks, barrier, reads=True):
    cw, ch = cur; nw, nh = nxt
    hi = slot >= 2
    base = (slot % 2) * 32768
    rd = []
    def wread(fb):
        for r_ in range(2):
            rd.append(f"ds_read_b64_tr_b16 v[{nw+4*fb+2*r_}:{nw+4*fb+2*r_+1}], v{VWA+4*hi+fb} offset:{base + ks*8192 + r_*4096}")
    def hread(t):
        rd.append(f"ds_read_b128 v[{nh+4*t}:{nh+4*t+3}], v{VHA+hi} offset:{base + 16384 + ks*8192 + t*1024}")
    wread(0)
    for t in range(4): hread(t)
    for fb in range(1, 4): wread(fb)
    if not reads: rd = []
    A("s_waitcnt lgkmcnt(0)")
    if barrier: A("s_barrier")
    k = 0
    per = o.get("rdper", 2)
    for m in range(16):
        fb, t = m // 4, m % 4
        a = ACC + 16*fb + 4*t
        A(f"v_mfma_f32_16x16x32_bf16 v[{a}:{a+3}], v[{cw+4*fb}:{cw+4*fb+3}], v[{ch+4*t}:{ch+4*t+3}], v[{a}:{a+3}]")
        for _ in range(per):
            if k < len(rd): A(rd[k]); k += 1

def gen_gemm(A, o, which):
    g1 = which == 1
    name = "g1_kernel" if g1 else "g2_kernel"
    P = name[:2]
    nwg = 224 if g1 else 256
    N = 32 if g1 else 28
    pitch = F*2 if g1 else S*2
    nkb = 64 if g1 else 112
    header(A, name)
    spare = g1 and o.get("spare", 0)
    A(f"s_cmp_ge_u32 s2, {nwg}\ns_cbranch_scc1 L_{P}_{'spare' if spare else 'end'}")
    stamp(A, o, 0)
    A(f"s_load_dwordx4 s[4:7], s[0:1], {8 if g1 else 24}\ns_load_dwordx2 s[28:29], s[0:1], 56\ns_load_dwordx2 s[30:31], s[0:1], 40")
    A("v_lshrrev_b32 v1, 6, v0\nv_and_b32 v2, 63, v0\nv_readfirstlane_b32 s3, v1")
    A("s_and_b32 s20, s2, 7\ns_lshr_b32 s21, s2, 3")
    if g1:
        A("s_mul_i32 s22, s21, 37\ns_lshr_b32 s22, s22, 8\ns_mul_i32 s23, s22, 7\ns_sub_u32 s23, s21, s23")
        A("s_and_b32 s24, s20, 3\ns_mul_i32 s24, s24, 7\ns_add_u32 s24, s24, s23")
        A("s_lshr_b32 s25, s20, 2\ns_lshl_b32 s25, s25, 2\ns_add_u32 s25, s25, s22")
        A("s_mov_b32 s26, 0")
    else:
        A("s_and_b32 s26, s21, 1\ns_lshr_b32 s22, s21, 1")
        A("s_and_b32 s24, s20, 3\ns_lshl_b32 s24, s24, 2\ns_and_b32 s23, s22, 3\ns_add_u32 s24, s24, s23")
        A("s_lshr_b32 s25, s20, 2\ns_lshl_b32 s25, s25, 2\ns_lshr_b32 s23, s22, 2\ns_add_u32 s25, s25, s23")
    A("s_waitcnt lgkmcnt(0)")
    srd(A, 8, 4, 0, S*F*2)
    srd(A, 12, 28, WS_H if g1 else WS_U, H_BYTES if g1 else U_BYTES)
    srd(A, 16, 6, 0, (F if g1 else S)*2)
    if g1: srd(A, 32, 28, WS_U, U_BYTES)
    else:
        srd(A, 32, 28, WS_XCH, XCH_BYTES); srd(A, 36, 28, WS_FLG, FLG_BYTES); srd(A, 40, 30, 0, S*D*2)
    A(f"s_cmp_ge_u32 s3, 4\ns_cbranch_scc1 L_{P}_loader")
    A("s_and_b32 s44, s3, 1\ns_lshr_b32 s45, s3, 1")
    A("v_lshrrev_b32 v3, 4, v2\nv_and_b32 v4, 15, v2")
    A("s_lshl_b32 s46, s24, 8\ns_lshl_b32 s47, s45, 7\ns_add_u32 s46, s46, s47\ns_lshl_b32 s47, s26, 6")
    A("v_lshlrev_b32 v5, 3, v3")
    nb = 4 if g1 else 2
    for fb in range(nb):
        A(f"s_xor_b32 s48, s47, {fb*32}\ns_add_u32 s48, s48, s46")
        A(f"buffer_load_dwordx2 v[{20+2*fb}:{21+2*fb}], v5, s[16:19], s48 offen")
    if not g1:
        A("s_lshl_b32 s54, s2, 10\ns_lshl_b32 s55, s3, 8\ns_add_u32 s54, s54, s55\ns_xor_b32 s55, s54, 0x2000")
        if o.get("fastx", 0):
            A("s_getreg_b32 s60, hwreg(HW_REG_XCC_ID, 0, 4)\ns_add_u32 s60, s60, 1\nv_mov_b32 v6, s60\nv_mov_b32 v7, 128")
            A("s_mov_b64 exec, 1\nbuffer_store_dword v6, v7, s[36:39], s54 offen sc1\ns_mov_b64 exec, -1")
    A("v_lshrrev_b32 v6, 2, v4\nv_lshl_add_u32 v7, v3, 2, v6")
    A("v_and_b32 v18, 7, v7\nv_lshlrev_b32 v7, 8, v7\nv_and_b32 v19, 3, v4\nv_lshl_add_u32 v7, v19, 3, v7")
    A("s_lshl_b32 s48, s45, 2\ns_lshl_b32 s49, s26, 1\ns_xor_b32 s48, s48, s49")
    for fb in range(4):
        A(f"s_xor_b32 s49, s48, {fb}\nv_xor_b32 v19, s49, v18\nv_lshl_add_u32 v{VWA+fb}, v19, 5, v7\nv_add_u32 v{VWA+4+fb}, 0x10000, v{VWA+fb}")
    A(f"s_lshl_b32 s48, s44, 12\nv_lshl_add_u32 v{VHA}, v2, 4, s48\nv_add_u32 v{VHA+1}, 0x10000, v{VHA}")
    A("s_waitcnt vmcnt(0)")
    for fb in range(4):
        for r_ in range(4):
            a = ACC + 16*fb + r_
            if fb < nb:
                src = 20 + 2*fb + r_//2
                A(f"v_lshlrev_b32 v{a}, 16, v{src}" if r_ % 2 == 0 else f"v_and_b32 v{a}, 0xffff0000, v{src}")
            else: A(f"v_mov_b32 v{a}, 0")
            for t in range(1, 4): A(f"v_mov_b32 v{a+4*t}, v{a}")
    fast = (not g1) and o.get("fastx", 0)
    if o.get("prio"): A("s_setprio 1")
    A("s_barrier")
    if fast: A("v_mov_b32 v5, 128\nbuffer_load_dword v30, v5, s[36:39], s55 offen sc1")
    stamp(A, o, 1)
    X, Y = (XW, XH), (YW, YH)
    for fb in range(4):
        for r_ in range(2): A(f"ds_read_b64_tr_b16 v[{XW+4*fb+2*r_}:{XW+4*fb+2*r_+1}], v{VWA+fb} offset:{r_*4096}")
    for t in range(4): A(f"ds_read_b128 v[{XH+4*t}:{XH+4*t+3}], v{VHA} offset:{16384+t*1024}")
    A(f"s_mov_b32 s50, {N//R}")
    A(f".p2align 6\nL_{P}_cloop:")
    for r_ in range(R):
        substep(A, o, X, Y, r_, 1, False)
        substep(A, o, Y, X, (r_+1) % R, 0, True)
    A(f"s_sub_u32 s50, s50, 1\ns_cmp_lg_u32 s50, 0\ns_cbranch_scc1 L_{P}_cloop")
    stamp(A, o, 2)
    A("s_waitcnt lgkmcnt(0)\ns_nop 7")
    if g1:
        c0 = -2.0*math.sqrt(2.0/math.pi)*math.log2(math.e); c1 = c0*0.044715
        A(f"s_mov_b32 s52, {f32(c1)}\nv_mov_b32 v3, {f32(c0)}")
        A(f"s_mul_i32 s48, s25, 112\ns_lshl_b32 s49, s24, 2\ns_add_u32 s48, s48, s49\ns_lshl_b32 s49, s45, 1\ns_add_u32 s48, s48, s49\ns_lshl_b32 s48, s48, 13")
        A("s_lshl_b32 s49, s44, 12\ns_add_u32 s48, s48, s49\ns_add_u32 s49, s48, 8192\nv_lshlrev_b32 v4, 4, v2")
        T = XW
        for kbl in range(2):
            for t in range(4):
                regs = [ACC + 16*(2*kbl + h) + 4*t + r_ for h in range(2) for r_ in range(4)]
                tb = T + ((kbl*4 + t) % 2) * 16
                for e, a in enumerate(regs): A(f"v_mul_f32 v{tb+e}, v{a}, v{a}")
                for e, a in enumerate(regs): A(f"v_fma_f32 v{tb+e}, v{tb+e}, s52, v3")
                for e, a in enumerate(regs): A(f"v_mul_f32 v{tb+e}, v{tb+e}, v{a}")
                for e, a in enumerate(regs): A(f"v_exp_f32 v{tb+e}, v{tb+e}")
                for e, a in enumerate(regs): A(f"v_add_f32 v{tb+e}, 1.0, v{tb+e}")
                for e, a in enumerate(regs): A(f"v_rcp_f32 v{tb+e}, v{tb+e}")
                for e, a in enumerate(regs): A(f"v_mul_f32 v{tb+e}, v{tb+e}, v{a}")
                for e in range(4): A(f"v_cvt_pk_bf16_f32 v{tb+8+e}, v{tb+2*e}, v{tb+2*e+1}")
                A(f"buffer_store_dwordx4 v[{tb+8}:{tb+11}], v4, s[32:35], s{48+kbl} offen offset:{t*1024} {o.get('uflag','')}")
    else:
        if o.get('xout', 0):
            A("v_lshrrev_b32 v3, 4, v2\nv_and_b32 v7, 15, v2\nv_lshlrev_b32 v3, 13, v3\nv_lshl_add_u32 v7, v7, 3, v3")
            A("s_lshl_b32 s56, s24, 7\ns_lshl_b32 s57, s45, 6\ns_add_u32 s56, s56, s57\ns_lshl_b32 s57, s26, 5\ns_add_u32 s56, s56, s57\ns_lshl_b32 s56, s56, 11")
            A("s_lshl_b32 s57, s25, 8\ns_add_u32 s56, s56, s57\ns_lshl_b32 s57, s44, 7\ns_add_u32 s56, s56, s57")
            A("s_xor_b32 s52, s56, 0x10000\nv_add_u32 v8, 4096, v7\ns_add_u32 s53, s52, 32768\ns_add_u32 s57, s56, 32768")
            A("v_mov_b32 v5, 0\nv_mov_b32 v6, 1")
            def oaddr(sb, r_, base):
                return f"v{7 + r_//2}, s[40:43], s{base + sb} offen offset:{(r_%2)*2048}"
            for sb in range(2):
                for r_ in range(4):
                    a = ACC + 32 + 16*sb + r_; d = YW + 8*sb + 2*r_
                    A(f"v_cvt_pk_bf16_f32 v{d}, v{a}, v{a+4}\nv_cvt_pk_bf16_f32 v{d+1}, v{a+8}, v{a+12}")
            def send(flag):
                for sb in range(2):
                    for r_ in range(4):
                        d = YW + 8*sb + 2*r_
                        A(f"buffer_store_dwordx2 v[{d}:{d+1}], {oaddr(sb, r_, 52)} {flag}")
                A("s_waitcnt vmcnt(0)")
                stamp(A, o, 3)
                A(f"s_mov_b64 exec, 1\nbuffer_store_dword v6, v5, s[36:39], s54 offen {flag}")
            if fast:
                A("s_waitcnt vmcnt(0)\nv_readfirstlane_b32 s61, v30\ns_cmp_eq_u32 s61, s60\ns_cbranch_scc0 L_g2_far")
                send(o.get("nearflag", ""))
                A("s_branch L_g2_sent\nL_g2_far:")
            send("sc1")
            A("L_g2_sent:")
            A("s_mov_b32 s59, 0x400000")
            A(f"L_{P}_poll:\nbuffer_load_dword v18, v5, s[36:39], s55 offen sc1\ns_sub_u32 s59, s59, 1\ns_cbranch_scc1 L_{P}_polled\ns_waitcnt vmcnt(0)\nv_readfirstlane_b32 s58, v18\ns_cmp_eq_u32 s58, 1\ns_cbranch_scc0 L_{P}_poll\nL_{P}_polled:")
            A("s_mov_b64 exec, -1")
            stamp(A, o, 4)
            for sb in range(2):
                for r_ in range(4):
                    d = XW + 8*sb + 2*r_
                    A(f"buffer_load_dwordx2 v[{d}:{d+1}], {oaddr(sb, r_, 56)} sc1")
            for sb in range(2):
                for r_ in range(4):
                    q = 4*sb + r_
                    A(f"s_waitcnt vmcnt(7)")
                    if q == 7: stamp(A, o, 5)
                    a = ACC + 16*sb + r_; d = XW + 8*sb + 2*r_; t_ = XW + 16 + 4*(q % 2)
                    A(f"v_lshlrev_b32 v{t_}, 16, v{d}\nv_and_b32 v{t_+1}, 0xffff0000, v{d}\nv_lshlrev_b32 v{t_+2}, 16, v{d+1}\nv_and_b32 v{t_+3}, 0xffff0000, v{d+1}")
                    for t in range(4): A(f"v_add_f32 v{a+4*t}, v{a+4*t}, v{t_+t}")
                    A(f"v_cvt_pk_bf16_f32 v{d}, v{a}, v{a+4}\nv_cvt_pk_bf16_f32 v{d+1}, v{a+8}, v{a+12}")
                    A(f"buffer_store_dwordx2 v[{d}:{d+1}], {oaddr(sb, r_, 56)} {o.get('outflag', '')}")
        else:
            A("s_lshl_b32 s48, s2, 2\ns_add_u32 s48, s48, s3\ns_lshl_b32 s48, s48, 13\ns_add_u32 s49, s48, 4096")
            A("s_xor_b32 s52, s48, 0x40000\ns_add_u32 s53, s52, 4096")
            A("v_lshlrev_b32 v4, 4, v2")
            A("v_lshrrev_b32 v3, 4, v2\nv_and_b32 v7, 15, v2\nv_lshlrev_b32 v3, 13, v3\nv_lshl_add_u32 v7, v7, 3, v3")
            A("s_lshl_b32 s56, s24, 7\ns_lshl_b32 s57, s45, 6\ns_add_u32 s56, s56, s57\ns_lshl_b32 s57, s26, 5\ns_add_u32 s56, s56, s57\ns_lshl_b32 s56, s56, 11")
            A("s_lshl_b32 s57, s25, 8\ns_add_u32 s56, s56, s57\ns_lshl_b32 s57, s44, 7\ns_add_u32 s56, s56, s57")
            A("v_mov_b32 v5, 0\nv_mov_b32 v6, 1")
            def send(flag):
                for q in range(8):
                    a = ACC + 32 + 4*q
                    A(f"buffer_store_dwordx4 v[{a}:{a+3}], v4, s[32:35], s{48+q//4} offen offset:{(q%4)*1024} {flag}")
                A("s_waitcnt vmcnt(0)")
                stamp(A, o, 3)
                A(f"s_mov_b64 exec, 1\nbuffer_store_dword v6, v5, s[36:39], s54 offen {flag}")
            if fast:
                A("s_waitcnt vmcnt(0)\nv_readfirstlane_b32 s61, v30\ns_cmp_eq_u32 s61, s60\ns_cbranch_scc0 L_g2_far")
                send(o.get("nearflag", ""))
                A("s_branch L_g2_sent\nL_g2_far:")
            send("sc1")
            A("L_g2_sent:")
            A("s_mov_b32 s59, 0x400000")
            A(f"L_{P}_poll:\nbuffer_load_dword v18, v5, s[36:39], s55 offen sc1\ns_sub_u32 s59, s59, 1\ns_cbranch_scc1 L_{P}_polled\ns_waitcnt vmcnt(0)\nv_readfirstlane_b32 s58, v18\ns_cmp_eq_u32 s58, 1\ns_cbranch_scc0 L_{P}_poll\nL_{P}_polled:")
            A("s_mov_b64 exec, -1")
            stamp(A, o, 4)
            for q in range(8):
                A(f"buffer_load_dwordx4 v[{XW+4*q}:{XW+3+4*q}], v4, s[32:35], s{52+q//4} offen offset:{(q%4)*1024} {o.get('rdflag', 'sc1')}")
            for sb in range(2):
                A(f"s_waitcnt vmcnt(4)")
                if sb == 1: stamp(A, o, 5)
                for t in range(4):
                    for r_ in range(4):
                        a = ACC + 16*sb + 4*t + r_
                        A(f"v_add_f32 v{a}, v{a}, v{XW+16*sb+4*t+r_}")
                for r_ in range(4):
                    a = ACC + 16*sb + r_
                    d = YW + 8*sb + 2*r_
                    A(f"v_cvt_pk_bf16_f32 v{d}, v{a}, v{a+4}\nv_cvt_pk_bf16_f32 v{d+1}, v{a+8}, v{a+12}")
                    A(f"s_add_u32 s57, s56, {(16*sb + r_)*2048}")
                    A(f"buffer_store_dwordx2 v[{d}:{d+1}], v7, s[40:43], s57 offen")
    if o.get("stamp"):
        A(f"s_cmp_lg_u32 s3, 0\ns_cbranch_scc1 L_{P}_end")
        if g1: stamp(A, o, 3)
        stamp_flush(A, o, which, 28, 5 if g1 else 7)
    A("s_endpgm")
    A(f"L_{P}_loader:")
    PF = o.get("pf", 0)
    if PF: A(f"s_cmp_eq_u32 s3, 8\ns_cbranch_scc1 L_{P}_pf")
    A("s_sub_u32 s44, s3, 4")
    A("v_lshrrev_b32 v3, 4, v2\nv_and_b32 v4, 15, v2\nv_lshrrev_b32 v5, 1, v4\nv_and_b32 v4, 1, v4\nv_lshlrev_b32 v4, 4, v4")
    A(f"s_mov_b32 s45, {pitch}\ns_lshl_b32 s46, s44, 4\ns_lshl_b32 s47, s24, 8")
    for j in range(4):
        A(f"v_add_u32 v6, {4*(j%2)}, v3\nv_xor_b32 v6, v6, v5\nv_lshl_add_u32 v6, v6, 5, v4")
        A(f"s_add_u32 s48, s46, {4*j}\nv_add_u32 v7, s48, v3\nv_mul_lo_u32 v7, v7, s45\nv_add3_u32 v{8+j}, v7, v6, s47")
        if j: A(f"v_subrev_u32 v{8+j}, {j*1024}, v{8+j}")
    A(f"s_mul_i32 s48, s25, {nkb*8192}\ns_lshl_b32 s49, s44, 12\ns_add_u32 s48, s48, s49\nv_lshl_add_u32 v12, v2, 4, s48")
    A(f"s_mul_i32 s50, s26, {N*64*pitch}\ns_mul_i32 s51, s26, {N*16384}")
    A("s_lshl_b32 s52, s44, 12")
    def issue(m0expr):
        A(m0expr + "\ns_nop 0")
        for j in range(4): A(f"buffer_load_dwordx4 v{8+j}, s[8:11], s50 offen offset:{j*1024} lds")
        A("s_add_u32 m0, m0, 16384\n" + f"s_add_u32 s50, s50, {64*pitch}")
        for j in range(4): A(f"buffer_load_dwordx4 v12, s[12:15], s51 offen offset:{j*1024} lds")
        A("s_add_u32 s51, s51, 16384")
        if o.get("wrapw"): A(f"s_cmp_ge_u32 s50, {o['wrapw']*64*pitch}\ns_cselect_b32 s50, 0, s50")
        if o.get("wraph"): A(f"s_cmp_ge_u32 s51, {o['wraph']*16384}\ns_cselect_b32 s51, 0, s51")
    for st_ in range(R): issue(f"s_add_u32 m0, s52, {st_*32768}")
    A(f"s_waitcnt vmcnt({8*(R-1)})\ns_barrier")
    A("s_mov_b32 s53, 0")
    A(f"L_{P}_lloop:")
    A(f"s_and_b32 s54, s53, {R-1}\ns_lshl_b32 s54, s54, 15")
    A(f"s_waitcnt vmcnt({8*(R-2)})\ns_barrier")
    issue("s_add_u32 m0, s52, s54")
    A(f"s_add_u32 s53, s53, 1\ns_cmp_lt_u32 s53, {N-R}\ns_cbranch_scc1 L_{P}_lloop")
    tail = g1 and o.get("tailpf", 0)
    if tail:
        A("s_load_dwordx2 s[4:5], s[0:1], 24\ns_lshl_b32 s46, s2, 2\ns_add_u32 s46, s46, s44")
        A(f"v_and_b32 v4, 31, v2\nv_lshlrev_b32 v4, 7, v4\nv_lshrrev_b32 v5, 5, v2\nv_mul_u32_u24 v5, 1792, v5\nv_add_u32 v5, s46, v5\nv_lshl_add_u32 v4, v5, 12, v4")
        A("s_waitcnt lgkmcnt(0)")
        srd(A, 16, 4, 0, S*F*2)
        A("buffer_load_dword v6, v4, s[16:19], 0 offen")
    for n in range(N-R, N):
        A(f"s_waitcnt vmcnt({8*max(0, N-1-(n+1)) + (1 if tail else 0)})\ns_barrier")
    if PF:
        A("s_endpgm")
        A(f"L_{P}_pf:")
        p0 = o.get("pfstart", 1)
        A("s_and_b32 s44, s25, 3\ns_lshl_b32 s44, s44, 4")
        A(f"v_lshrrev_b32 v3, 1, v2\nv_add_u32 v3, s44, v3\ns_mov_b32 s45, {pitch}\nv_mul_lo_u32 v3, v3, s45")
        A("v_and_b32 v4, 1, v2\nv_lshlrev_b32 v4, 7, v4\ns_lshl_b32 s47, s24, 8\nv_add3_u32 v8, v3, v4, s47")
        per = 19 if g1 else 32
        if g1: A(f"s_mul_i32 s46, s23, {per}")
        else: A(f"s_and_b32 s46, s24, 3\ns_mul_i32 s46, s46, {per}")
        A(f"v_add_u32 v5, s46, v2\nv_min_u32 v5, 127, v5\nv_lshlrev_b32 v5, 7, v5\ns_mul_i32 s48, s25, {nkb*8192}\nv_add_u32 v9, s48, v5")
        A(f"s_mul_i32 s50, s26, {N*64*pitch}\ns_add_u32 s50, s50, {p0*64*pitch}\ns_mul_i32 s51, s26, {N*16384}\ns_add_u32 s51, s51, {p0*16384}")
        A("s_mov_b32 exec_hi, 0")
        def pf():
            A("s_mov_b32 exec_lo, -1\nbuffer_load_dword v10, v8, s[8:11], s50 offen")
            A(f"s_mov_b32 exec_lo, {(1 << per) - 1 if per < 32 else -1}\nbuffer_load_dword v11, v9, s[12:15], s51 offen")
            A(f"s_add_u32 s50, s50, {64*pitch}\ns_add_u32 s51, s51, 16384")
        for z in range(p0, R + PF): pf()
        A("s_barrier\ns_mov_b32 s53, 0")
        A(f"L_{P}_ploop:\ns_barrier")
        pf()
        A(f"s_add_u32 s53, s53, 1\ns_cmp_lt_u32 s53, {N-R-PF}\ns_cbranch_scc1 L_{P}_ploop")
    if spare:
        A("s_endpgm\nL_g1_spare:\ns_cmp_ge_u32 s2, 256\ns_cbranch_scc1 L_g1_end")
        A("s_load_dwordx2 s[4:5], s[0:1], 8\ns_load_dwordx2 s[6:7], s[0:1], 24")
        A("v_readfirstlane_b32 s3, v0\ns_nop 1\ns_cmp_ge_u32 s3, 64\ns_cbranch_scc1 L_g1_end")
        A("s_sub_u32 s3, s2, 224\ns_lshl_b32 s16, s3, 13\nv_lshl_add_u32 v3, v0, 7, s16")
        A(f"v_and_b32 v4, 31, v0\nv_lshlrev_b32 v4, 7, v4\nv_lshrrev_b32 v5, 5, v0\nv_mul_u32_u24 v5, 1792, v5\nv_add_u32 v5, s3, v5\nv_lshl_add_u32 v4, v5, 12, v4")
        A("s_waitcnt lgkmcnt(0)")
        srd(A, 8, 4, 0, S*F*2); srd(A, 12, 6, 0, S*F*2)
        r0 = o.get("lnrows", 1024 * o.get("lnpf", 0))
        if r0 < S:
            A(f"s_mov_b32 s3, {r0*F*2}\nL_g1_sp1:\nbuffer_load_dword v6, v3, s[8:11], s3 offen\ns_add_u32 s3, s3, {32*8192}\ns_cmp_lt_u32 s3, {S*F*2}\ns_cbranch_scc1 L_g1_sp1")
        a0, a1 = (896 if o.get("tailpf") else 0), o.get("sparew2", 1792)
        if a0 < a1:
            A(f"s_mov_b32 s3, {a0*S*2}\nL_g1_sp2:\nbuffer_load_dword v6, v4, s[12:15], s3 offen\ns_add_u32 s3, s3, {32*S*2}\ns_cmp_lt_u32 s3, {a1*S*2}\ns_cbranch_scc1 L_g1_sp2")
        if o.get("stamp"):
            A("s_load_dwordx2 s[28:29], s[0:1], 56\ns_waitcnt lgkmcnt(0)")
            stamp_flush(A, o, which, 28, 1)
    A(f"L_{P}_end:\ns_endpgm")
    return name

HEAD = open(__file__.replace("gen.py", "head.txt")).read()

def build(o):
    A = Asm()
    A.L.append(HEAD.rstrip("\n"))
    for c in o.get("seq", "l12"):
        if c == "l": A("; @launch kernel=ln_kernel grid=(256,1,1) block=(256,1,1) lds=256")
        if c == "1": A(f"; @launch kernel=g1_kernel grid=({256 if o.get('spare') else 224},1,1) block=({576 if o.get('pf') else 512},1,1) lds={R*32768}")
        if c == "2": A(f"; @launch kernel=g2_kernel grid=(256,1,1) block=({576 if o.get('pf') else 512},1,1) lds={R*32768}")
        if c == "s": A("; @launch kernel=spin_kernel grid=(1,1,1) block=(64,1,1) lds=0")
        if c == "e": A("; @launch kernel=empty_kernel grid=(256,1,1) block=(64,1,1) lds=0")
    A('.amdgcn_target "amdgcn-amd-amdhsa--gfx950"\n.text')
    gen_ln(A, o); gen_gemm(A, o, 1); gen_gemm(A, o, 2)
    if "e" in o.get("seq", ""):
        header(A, "empty_kernel")
        if o.get("stamp"):
            A("s_cmp_ge_u32 s2, 256\ns_cbranch_scc1 L_em_end\ns_memrealtime s[70:71]\ns_load_dwordx2 s[28:29], s[0:1], 56\ns_waitcnt lgkmcnt(0)")
            stamp_flush(A, o, 3, 28, 2)
        A("L_em_end:\ns_endpgm")
    if "s" in o.get("seq", ""): gen_spin(A, o)
    A('.section .rodata,"a"\n.p2align 6')
    if "e" in o.get("seq", ""): descriptor(A, "empty_kernel", 8); A(".p2align 6")
    if "s" in o.get("seq", ""): descriptor(A, "spin_kernel", 16); A(".p2align 6")
    descriptor(A, "ln_kernel", 104); A(".p2align 6"); descriptor(A, "g1_kernel", 160); A(".p2align 6"); descriptor(A, "g2_kernel", 160)
    return A.text()

if __name__ == "__main__":
    o = {}
    out = sys.argv[1]
    for kv in sys.argv[2:]:
        k, v = kv.split("=", 1)
        o[k] = int(v) if v.lstrip("-").isdigit() else v
    open(out, "w").write(build(o))
```

```python
import sys, struct, math
S, D, F = 2048, 1024, 3584
WS_H, WS_U, WS_FLG, WS_STAMP = 0, 4 << 20, 20 << 20, 24 << 20
H_BYTES, U_BYTES = D*S*2, D*F*2
GEN_OFF, S1_OFF, S2_OFF, S3_OFF = 0, 4096, 32768, 65536
FLG_BYTES = S3_OFF + 256*1024
R = 4
LDS_LN = R*32768
NAME = "standalone__mixer_token_mlp__prompt_kernel"
N1, N2 = 32, 28
P1, P2 = F*2, S*2

def f32(x): return "0x%08x" % struct.unpack("<I", struct.pack("<f", x))[0]

class Asm:
    def __init__(self): self.L = []
    def __call__(self, s):
        for l in s.split("\n"):
            l = l.strip()
            if l: self.L.append(l if (l.endswith(":") or l.startswith(".") or l.startswith(";")) else "    " + l)
    def text(self): return "\n".join(self.L) + "\n"

sX, sW1, sB1, sW2, sB2, sOUT, sDBG, sWS = 4, 6, 8, 10, 12, 14, 16, 18
sTAG, sXCD, sN, sFT, sDT1, sST, sDT2, sHK = 20, 21, 22, 23, 24, 25, 26, 27
rW, rH, rF, rM, rS = 28, 32, 36, 40, 44
sPH, sN7 = 68, 69
ACC, XW, XH, YW, YH = 32, 96, 112, 128, 144
VWA, VHA = 8, 16

def srd(A, r, base, off, nbytes):
    if off: A(f"s_add_u32 s{r}, s{base}, {off}\ns_addc_u32 s{r+1}, s{base+1}, 0")
    else: A(f"s_mov_b32 s{r}, s{base}\ns_mov_b32 s{r+1}, s{base+1}")
    A(f"s_mov_b32 s{r+2}, {nbytes}\ns_mov_b32 s{r+3}, 0x20000")

def stamp(A, o, i, cyc=None):
    if o.get("stamp"):
        A(f"s_memrealtime s[{70+2*i}:{71+2*i}]")
        if cyc is not None: A(f"s_memtime s[{94+2*cyc}:{95+2*cyc}]")
def stamp_flush(A, o, lst, slot=0):
    if not o.get("stamp"): return
    A("s_waitcnt lgkmcnt(0)")
    A(f"s_add_u32 s48, s{sWS}, {WS_STAMP + slot*16384}\ns_addc_u32 s49, s{sWS+1}, 0\ns_lshl_b32 s50, s2, 6\nv_mov_b32 v1, s50\ns_mov_b64 exec, 1")
    for i in lst: A(f"v_mov_b32 v2, s{70+2*i}\nglobal_store_dword v1, v2, s[48:49] offset:{4*i}")

def poll(A, label, load, regs, mask=None):
    A(f"s_mov_b32 s59, 0x200000")
    if mask is not None: A(f"s_mov_b64 exec, {mask}")
    A(f"{label}:\n{load}\ns_sub_u32 s59, s59, 1\ns_cbranch_scc1 {label}_x\ns_waitcnt vmcnt(0)")
    A(f"v_cmp_ne_u32 vcc, s{sTAG}, v{regs[0]}")
    for r_ in regs[1:]: A(f"v_cmp_ne_u32 s[60:61], s{sTAG}, v{r_}\ns_or_b64 vcc, vcc, s[60:61]")
    A(f"s_cmp_lg_u64 vcc, 0\ns_cbranch_scc1 {label}\n{label}_x:")
    if mask is not None: A("s_mov_b64 exec, -1")

def gen_ln(A, o):
    A("s_lshr_b32 s48, s2, 2\ns_and_b32 s49, s2, 3")
    A("s_lshl_b32 s50, s48, 5\ns_lshl_b32 s51, s49, 2\ns_add_u32 s50, s50, s51\ns_lshl_b32 s50, s50, 11")
    A("v_lshlrev_b32 v1, 3, v0")
    rowoff = [(16*(j//4) + j % 4) * 2048 for j in range(8)]
    for j in range(8): A(f"s_add_u32 s{52+j}, s50, {rowoff[j]}")
    A("s_waitcnt lgkmcnt(0)")
    srd(A, rM, sX, 0, S*D*2)
    for j in range(8): A(f"buffer_load_dwordx2 v[{2+2*j}:{3+2*j}], v1, s[{rM}:{rM+3}], s{52+j} offen")
    A("s_barrier")
    A(f"s_add_u32 s50, s{sX}, s50\ns_addc_u32 s51, s{sX+1}, 0")
    for j in range(8): A(f"s_load_dword s{52+j}, s[50:51], {rowoff[j]}")
    common_setup(A, o)
    srd(A, rS, sWS, WS_H, H_BYTES)
    A("v_lshrrev_b32 v62, 5, v0\nv_lshlrev_b32 v62, 19, v62")
    A("v_bfe_u32 v63, v0, 4, 1\nv_lshlrev_b32 v63, 12, v63\nv_add_u32 v62, v62, v63")
    A("v_and_b32 v63, 15, v0\nv_lshlrev_b32 v63, 4, v63\nv_add_u32 v62, v62, v63")
    A("s_lshl_b32 s48, s48, 13\ns_lshl_b32 s49, s49, 8\ns_add_u32 s48, s48, s49")
    A(f"v_lshrrev_b32 v64, 4, v0\nv_lshlrev_b32 v64, 4, v64\nv_add_u32 v64, {LDS_LN}, v64")
    A(f"v_and_b32 v65, 3, v0\nv_lshlrev_b32 v65, 4, v65\nv_bfe_u32 v66, v0, 2, 1\nv_lshlrev_b32 v66, 2, v66\nv_add_u32 v65, v65, v66\nv_add_u32 v65, {LDS_LN}, v65")
    A("s_waitcnt lgkmcnt(0)")
    make_tag(A)
    for j in range(8): A(f"s_lshl_b32 s{52+j}, s{52+j}, 16")
    for j in range(8):
        A(f"s_waitcnt vmcnt({7-j})")
        for c in range(4):
            src = 2 + 2*j + c//2; d = 70 + 4*j + c
            A(f"v_lshlrev_b32 v{d}, 16, v{src}" if c % 2 == 0 else f"v_and_b32 v{d}, 0xffff0000, v{src}")
        for c in range(4): A(f"v_subrev_f32 v{70+4*j+c}, s{52+j}, v{70+4*j+c}")
        b = 70 + 4*j
        A(f"v_add_f32 v{20+j}, v{b}, v{b+1}\nv_mul_f32 v{28+j}, v{b}, v{b}")
        A(f"v_add_f32 v{20+j}, v{20+j}, v{b+2}\nv_fmac_f32 v{28+j}, v{b+1}, v{b+1}")
        A(f"v_add_f32 v{20+j}, v{20+j}, v{b+3}\nv_fmac_f32 v{28+j}, v{b+2}, v{b+2}\nv_fmac_f32 v{28+j}, v{b+3}, v{b+3}")
    stamp(A, o, 1)
    A("s_nop 1")
    for p in range(8): A(f"v_permlane32_swap_b32 v{20+2*p}, v{21+2*p}")
    for p in range(8): A(f"v_add_f32 v{20+2*p}, v{20+2*p}, v{21+2*p}")
    A("s_nop 1")
    for q in range(4): A(f"v_permlane16_swap_b32 v{20+4*q}, v{22+4*q}")
    for q in range(4): A(f"v_add_f32 v{40+q}, v{20+4*q}, v{22+4*q}")
    for sh in (8, 4, 2, 1):
        A("s_nop 1")
        for q in range(4): A(f"v_add_f32_dpp v{40+q}, v{40+q}, v{40+q} row_ror:{sh} row_mask:0xf bank_mask:0xf")
    A("ds_write_b128 v64, v[40:43]")
    A("s_waitcnt lgkmcnt(0)\ns_barrier")
    for w in range(4): A(f"ds_read2_b32 v[{44+2*w}:{45+2*w}], v65 offset0:{16*w} offset1:{16*w+2}")
    A("s_waitcnt lgkmcnt(0)")
    A("v_add_f32 v44, v44, v46\nv_add_f32 v45, v45, v47\nv_add_f32 v48, v48, v50\nv_add_f32 v49, v49, v51\nv_add_f32 v44, v44, v48\nv_add_f32 v45, v45, v49")
    A(f"v_mul_f32 v44, {f32(1.0/D)}, v44\nv_mul_f32 v45, {f32(1.0/D)}, v45")
    A("v_fma_f32 v45, -v44, v44, v45\nv_max_f32 v45, 0, v45")
    A(f"v_add_f32 v45, {f32(1e-5)}, v45\nv_rsq_f32 v45, v45\ns_nop 0\nv_mul_f32 v44, v44, v45\nv_sub_f32 v44, 0, v44")
    A("s_nop 1")
    gmap = [0, 2, 1, 3]
    for e in range(8):
        j = gmap[e % 4] + 4*(e // 4)
        A(f"v_readlane_b32 s{52+j}, v45, {e}\nv_readlane_b32 s{60+j}, v44, {e}")
    A("s_nop 1")
    for j in range(8): A(f"v_mov_b32 v{20+j}, s{60+j}")
    for t in range(4):
        for j in range(8):
            d = 70 + 4*j + t
            A(f"v_fma_f32 v{d}, v{d}, s{52+j}, v{20+j}")
        for jj in range(4):
            A(f"v_cvt_pk_bf16_f32 v{44+4*t+jj}, v{70+4*(2*jj)+t}, v{70+4*(2*jj+1)+t}")
        A(f"buffer_store_dwordx4 v[{44+4*t}:{47+4*t}], v62, s[{rS}:{rS+3}], s48 offen offset:{t*1024} sc1")
    A(f"s_lshr_b32 s48, s2, 4\ns_lshl_b32 s48, s48, 7\ns_and_b32 s49, s2, 15\ns_lshl_b32 s49, s49, 2\ns_add_u32 s48, s48, s49\ns_add_u32 s48, s48, {S1_OFF}")
    A(f"v_lshlrev_b32 v3, 11, v0\nv_mov_b32 v4, s{sTAG}\nv_and_b32 v2, 63, v0")
    A("s_waitcnt vmcnt(0)\ns_barrier")
    A("s_cmp_lg_u32 s3, 0\ns_cbranch_scc1 L_c_s1done")
    A(f"s_mov_b64 exec, 0xff\nbuffer_store_dword v4, v3, s[{rF}:{rF+3}], s48 offen sc1\ns_mov_b64 exec, -1")
    A("L_c_s1done:")
    stamp(A, o, 2)

def common_setup(A, o):
    A(f"s_add_u32 s{rF}, s{sWS}, {WS_FLG}\ns_addc_u32 s{rF+1}, s{sWS+1}, 0\ns_mov_b32 s{rF+2}, {FLG_BYTES}\ns_mov_b32 s{rF+3}, 0x20000")
    A(f"s_load_dword s{sTAG}, s[{rF}:{rF+1}], {GEN_OFF}")
    A(f"s_and_b32 s{sXCD}, s2, 7\ns_lshr_b32 s{sN}, s2, 3")
    A(f"s_mul_i32 s66, s{sN}, 37\ns_lshr_b32 s66, s66, 8\ns_mul_i32 s67, s66, 7\ns_sub_u32 s{sN7}, s{sN}, s67")
    A(f"s_and_b32 s67, s{sXCD}, 3\ns_mul_i32 s{sFT}, s67, 7\ns_add_u32 s{sFT}, s{sFT}, s{sN7}")
    A(f"s_and_b32 s{sDT2}, s{sXCD}, 4\ns_add_u32 s{sDT1}, s{sDT2}, s66")
    A(f"s_and_b32 s{sHK}, s{sN}, 1\ns_lshl_b32 s{sST}, s67, 2\ns_bfe_u32 s66, s{sN}, 0x20001\ns_add_u32 s{sST}, s{sST}, s66")
    A(f"s_lshr_b32 s66, s{sN}, 3\ns_add_u32 s{sDT2}, s{sDT2}, s66")
def make_tag(A):
    A(f"s_mul_i32 s{sTAG}, s{sTAG}, 0x9e3779b1\ns_add_u32 s{sTAG}, s{sTAG}, 0x7f4a7c15")

def substep(A, o, cur, nxt, slot, ks, barrier):
    cw, ch = cur; nw, nh = nxt
    hi = slot >= 2
    base = (slot % 2) * 32768
    rd = []
    def wread(fb):
        for r_ in range(2):
            rd.append(f"ds_read_b64_tr_b16 v[{nw+4*fb+2*r_}:{nw+4*fb+2*r_+1}], v{VWA+4*hi+fb} offset:{base + ks*8192 + r_*4096}")
    def hread(t):
        rd.append(f"ds_read_b128 v[{nh+4*t}:{nh+4*t+3}], v{VHA+hi} offset:{base + 16384 + ks*8192 + t*1024}")
    wread(0)
    for t in range(4): hread(t)
    for fb in range(1, 4): wread(fb)
    A("s_waitcnt lgkmcnt(0)")
    if barrier: A("s_barrier")
    k = 0
    for m in range(16):
        fb, t = m // 4, m % 4
        if o.get("snake") and fb % 2: t = 3 - t
        a = ACC + 16*fb + 4*t
        A(f"v_mfma_f32_16x16x32_bf16 v[{a}:{a+3}], v[{cw+4*fb}:{cw+4*fb+3}], v[{ch+4*t}:{ch+4*t+3}], v[{a}:{a+3}]")
        for _ in range(o.get("rdper", 1)):
            if k < len(rd): A(rd[k]); k += 1

def cons_prologue(A, o, g1):
    tile = sFT if g1 else sST
    srd(A, rM, sB1 if g1 else sB2, 0, (F if g1 else S)*2)
    A("s_and_b32 s62, s3, 1\ns_lshr_b32 s63, s3, 1")
    A("v_lshrrev_b32 v3, 4, v2\nv_and_b32 v4, 15, v2")
    A(f"s_lshl_b32 s50, s{tile}, 8\ns_lshl_b32 s51, s63, 7\ns_add_u32 s50, s50, s51")
    if not g1: A(f"s_lshl_b32 s51, s{sHK}, 6\ns_add_u32 s50, s50, s51")
    A("v_lshlrev_b32 v5, 3, v3")
    nb = 4 if g1 else 2
    for fb in range(nb): A(f"buffer_load_dwordx2 v[{20+2*fb}:{21+2*fb}], v5, s[{rM}:{rM+3}], s50 offen offset:{fb*32}")
    if not g1:
        A(f"s_lshl_b32 s54, s2, 10\ns_lshl_b32 s55, s3, 8\ns_add_u32 s54, s54, s55\ns_add_u32 s54, s54, {S3_OFF}\ns_xor_b32 s55, s54, 0x2000")
        A(f"s_getreg_b32 s64, hwreg(HW_REG_XCC_ID, 0, 4)\ns_add_u32 s64, s64, 1\ns_add_u32 s64, s64, s{sTAG}\nv_mov_b32 v6, s64\nv_mov_b32 v7, 128")
        A(f"s_mov_b64 exec, 1\nbuffer_store_dword v6, v7, s[{rF}:{rF+3}], s54 offen sc1\ns_mov_b64 exec, -1")
    A("v_lshrrev_b32 v6, 2, v4\nv_lshl_add_u32 v7, v3, 2, v6")
    A("v_and_b32 v18, 7, v7\nv_lshlrev_b32 v7, 8, v7\nv_and_b32 v19, 3, v4\nv_lshl_add_u32 v7, v19, 3, v7")
    A("s_lshl_b32 s50, s63, 2")
    if not g1: A(f"s_lshl_b32 s51, s{sHK}, 1\ns_xor_b32 s50, s50, s51")
    for fb in range(4):
        A(f"s_xor_b32 s51, s50, {fb}\nv_xor_b32 v19, s51, v18\nv_lshl_add_u32 v{VWA+fb}, v19, 5, v7\nv_add_u32 v{VWA+4+fb}, 0x10000, v{VWA+fb}")
    A(f"s_lshl_b32 s50, s62, 12\nv_lshl_add_u32 v{VHA}, v2, 4, s50\nv_add_u32 v{VHA+1}, 0x10000, v{VHA}")
    A(f"s_waitcnt vmcnt({0 if g1 else 1})")
    for fb in range(4):
        for r_ in range(4):
            a = ACC + 16*fb + r_
            if fb < nb:
                src = 20 + 2*fb + r_//2
                A(f"v_lshlrev_b32 v{a}, 16, v{src}" if r_ % 2 == 0 else f"v_and_b32 v{a}, 0xffff0000, v{src}")
            else: A(f"v_mov_b32 v{a}, 0")
            for t in range(1, 4): A(f"v_mov_b32 v{a+4*t}, v{a}")
    A(f"s_mov_b32 s{sPH}, {1 if g1 else 2}\ns_mov_b32 s65, {(N1 if g1 else N2)//R}")

def cons_loop(A, o):
    A("L_c_main:")
    A("s_barrier")
    A("s_barrier")
    A(f"v_mov_b32 v5, 128\ns_cmp_eq_u32 s{sPH}, 1\ns_cbranch_scc1 L_c_noid")
    A(f"buffer_load_dword v30, v5, s[{rF}:{rF+3}], s55 offen sc1")
    stamp(A, o, 7, 2)
    A("s_branch L_c_go\nL_c_noid:")
    stamp(A, o, 3, 0)
    A("L_c_go:")
    X, Y = (XW, XH), (YW, YH)
    for fb in range(4):
        for r_ in range(2): A(f"ds_read_b64_tr_b16 v[{XW+4*fb+2*r_}:{XW+4*fb+2*r_+1}], v{VWA+fb} offset:{r_*4096}")
    for t in range(4): A(f"ds_read_b128 v[{XH+4*t}:{XH+4*t+3}], v{VHA} offset:{16384+t*1024}")
    A(".p2align 6\nL_c_loop:")
    for r_ in range(R):
        substep(A, o, X, Y, r_, 1, False)
        substep(A, o, Y, X, (r_+1) % R, 0, True)
    A("s_sub_u32 s65, s65, 1\ns_cmp_lg_u32 s65, 0\ns_cbranch_scc1 L_c_loop")
    A(f"s_waitcnt lgkmcnt(0)\ns_cmp_eq_u32 s{sPH}, 2\ns_cbranch_scc1 L_c_epi2")

def cons_epi1(A, o):
    stamp(A, o, 4, 1)
    srd(A, rS, sWS, WS_U, U_BYTES)
    c0 = -2.0*math.sqrt(2.0/math.pi)*math.log2(math.e); c1 = c0*0.044715
    A(f"s_mov_b32 s52, {f32(c1)}\nv_mov_b32 v3, {f32(c0)}")
    A(f"s_mul_i32 s48, s{sDT1}, 112\ns_lshl_b32 s49, s{sFT}, 2\ns_add_u32 s48, s48, s49\ns_lshl_b32 s49, s63, 1\ns_add_u32 s48, s48, s49\ns_lshl_b32 s48, s48, 13")
    A("s_lshl_b32 s49, s62, 12\ns_add_u32 s48, s48, s49\ns_add_u32 s49, s48, 8192\nv_lshlrev_b32 v4, 4, v2")
    T = XW
    for kbl in range(2):
        for t in range(4):
            regs = [ACC + 16*(2*kbl + h) + 4*t + r_ for h in range(2) for r_ in range(4)]
            tb = T + ((kbl*4 + t) % 2) * 16
            for e, a in enumerate(regs): A(f"v_mul_f32 v{tb+e}, v{a}, v{a}")
            for e, a in enumerate(regs): A(f"v_fma_f32 v{tb+e}, v{tb+e}, s52, v3")
            for e, a in enumerate(regs): A(f"v_mul_f32 v{tb+e}, v{tb+e}, v{a}")
            for e, a in enumerate(regs): A(f"v_exp_f32 v{tb+e}, v{tb+e}")
            for e, a in enumerate(regs): A(f"v_add_f32 v{tb+e}, 1.0, v{tb+e}")
            for e, a in enumerate(regs): A(f"v_rcp_f32 v{tb+e}, v{tb+e}")
            for e, a in enumerate(regs): A(f"v_mul_f32 v{tb+e}, v{tb+e}, v{a}")
            for e in range(4): A(f"v_cvt_pk_bf16_f32 v{tb+8+e}, v{tb+2*e}, v{tb+2*e+1}")
            A(f"buffer_store_dwordx4 v[{tb+8}:{tb+11}], v4, s[{rS}:{rS+3}], s{48+kbl} offen offset:{t*1024} sc1")
    rep = o.get("s2r", 2)
    A(f"s_cmp_ge_u32 s{sFT}, 14\ns_cselect_b32 s48, 1, 0\ns_cselect_b32 s49, 14, 0\ns_sub_u32 s49, s{sFT}, s49\ns_lshl_b32 s49, s49, 2")
    A(f"s_lshl_b32 s50, s{sDT1}, 1\ns_add_u32 s48, s48, s50\ns_lshl_b32 s48, s48, 7\ns_add_u32 s48, s48, s49\ns_add_u32 s48, s48, {S2_OFF}")
    A(f"v_lshlrev_b32 v3, 11, v2\nv_mov_b32 v4, s{sTAG}")
    stamp(A, o, 5)
    A("s_waitcnt vmcnt(0)\ns_barrier")
    A("s_cmp_lg_u32 s3, 0\ns_cbranch_scc1 L_c_g2")
    A(f"s_mov_b64 exec, {(1 << rep) - 1}\nbuffer_store_dword v4, v3, s[{rF}:{rF+3}], s48 offen sc1\ns_mov_b64 exec, -1")
    stamp(A, o, 6)

def cons_epi2(A, o):
    A("L_c_epi2:")
    stamp(A, o, 8, 3)
    srd(A, rS, sOUT, 0, S*D*2)
    A("v_lshrrev_b32 v3, 4, v2\nv_and_b32 v7, 15, v2\nv_lshlrev_b32 v3, 13, v3\nv_lshl_add_u32 v7, v7, 3, v3")
    A(f"s_lshl_b32 s56, s{sST}, 7\ns_lshl_b32 s57, s63, 6\ns_add_u32 s56, s56, s57\ns_lshl_b32 s57, s{sHK}, 5\ns_add_u32 s56, s56, s57\ns_lshl_b32 s56, s56, 11")
    A(f"s_lshl_b32 s57, s{sDT2}, 8\ns_add_u32 s56, s56, s57\ns_lshl_b32 s57, s62, 7\ns_add_u32 s56, s56, s57")
    A("s_xor_b32 s52, s56, 0x10000\nv_add_u32 v8, 4096, v7\ns_add_u32 s53, s52, 32768\ns_add_u32 s57, s56, 32768")
    A(f"v_mov_b32 v5, 0\nv_mov_b32 v6, s{sTAG}")
    def oaddr(sb, r_, base): return f"v{7 + r_//2}, s[{rS}:{rS+3}], s{base + sb} offen offset:{(r_%2)*2048}"
    for sb in range(2):
        for r_ in range(4):
            a = ACC + 32 + 16*sb + r_; d = YW + 8*sb + 2*r_
            A(f"v_cvt_pk_bf16_f32 v{d}, v{a}, v{a+4}\nv_cvt_pk_bf16_f32 v{d+1}, v{a+8}, v{a+12}")
    def send(flag):
        for sb in range(2):
            for r_ in range(4):
                d = YW + 8*sb + 2*r_
                A(f"buffer_store_dwordx2 v[{d}:{d+1}], {oaddr(sb, r_, 52)} {flag}")
        A("s_waitcnt vmcnt(0)")
        A(f"s_mov_b64 exec, 1\nbuffer_store_dword v6, v5, s[{rF}:{rF+3}], s54 offen {flag}")
    A("s_waitcnt vmcnt(0)\nv_readfirstlane_b32 s61, v30\ns_cmp_eq_u32 s61, s64\ns_cbranch_scc0 L_c_far")
    send("")
    A("s_branch L_c_sent\nL_c_far:")
    send("sc1")
    A("L_c_sent:")
    poll(A, "L_c_p3", f"buffer_load_dword v18, v5, s[{rF}:{rF+3}], s55 offen sc1", [18], mask=1)
    stamp(A, o, 9)
    for sb in range(2):
        for r_ in range(4):
            d = XW + 8*sb + 2*r_
            A(f"buffer_load_dwordx2 v[{d}:{d+1}], {oaddr(sb, r_, 56)} sc1")
    for sb in range(2):
        for r_ in range(4):
            q = 4*sb + r_
            A("s_waitcnt vmcnt(7)")
            a = ACC + 16*sb + r_; d = XW + 8*sb + 2*r_; t_ = XW + 16 + 4*(q % 2)
            A(f"v_lshlrev_b32 v{t_}, 16, v{d}\nv_and_b32 v{t_+1}, 0xffff0000, v{d}\nv_lshlrev_b32 v{t_+2}, 16, v{d+1}\nv_and_b32 v{t_+3}, 0xffff0000, v{d+1}")
            for t in range(4): A(f"v_add_f32 v{a+4*t}, v{a+4*t}, v{t_+t}")
            A(f"v_cvt_pk_bf16_f32 v{d}, v{a}, v{a+4}\nv_cvt_pk_bf16_f32 v{d+1}, v{a+8}, v{a+12}")
            A(f"buffer_store_dwordx2 v[{d}:{d+1}], {oaddr(sb, r_, 56)}")
    if o.get("stamp"):
        A("s_cmp_lg_u32 s3, 0\ns_cbranch_scc1 L_end\ns_waitcnt vmcnt(0)")
        stamp(A, o, 10)
        stamp_flush(A, o, range(11))
        A("s_sub_u32 s94, s96, s94\nv_mov_b32 v2, s94\nglobal_store_dword v1, v2, s[48:49] offset:56")
        A("s_sub_u32 s98, s100, s98\nv_mov_b32 v2, s98\nglobal_store_dword v1, v2, s[48:49] offset:60")
        if o.get("spinend"):
            A("s_cmp_lg_u32 s2, 0\ns_cbranch_scc1 L_end\ns_add_u32 s70, s70, 20000\ns_mov_b32 s59, 200000")
            A("L_sp:\ns_sub_u32 s59, s59, 1\ns_cbranch_scc1 L_end\ns_memrealtime s[72:73]\ns_waitcnt lgkmcnt(0)\ns_sub_u32 s72, s72, s70\ns_cmp_lt_i32 s72, 0\ns_cbranch_scc1 L_sp")
    A("s_endpgm")

def ld_waddr(A, g1):
    pitch = P1 if g1 else P2
    srd(A, rW, sW1 if g1 else sW2, 0, S*F*2)
    A(f"s_mov_b32 s48, {pitch}\ns_lshl_b32 s49, s62, 4\ns_lshl_b32 s50, s{sFT if g1 else sST}, 8")
    for j in range(4):
        A(f"v_add_u32 v6, {4*(j%2)}, v3\nv_xor_b32 v6, v6, v5\nv_lshl_add_u32 v6, v6, 5, v4")
        A(f"s_add_u32 s51, s49, {4*j}\nv_add_u32 v7, s51, v3\nv_mul_lo_u32 v7, v7, s48\nv_add3_u32 v{8+j}, v7, v6, s50")
        if j: A(f"v_subrev_u32 v{8+j}, {j*1024}, v{8+j}")
    A("s_mov_b32 s50, 0" if g1 else f"s_mul_i32 s50, s{sHK}, {N2*64*P2}")
def ld_haddr(A, g1):
    srd(A, rH, sWS, WS_H if g1 else WS_U, H_BYTES if g1 else U_BYTES)
    A(f"s_mul_i32 s48, s{sDT1 if g1 else sDT2}, {(64 if g1 else 112)*8192}\ns_add_u32 s48, s48, s52\nv_lshl_add_u32 v12, v2, 4, s48")
    A("s_mov_b32 s51, 0" if g1 else f"s_mul_i32 s51, s{sHK}, {N2*16384}")
def issue_w(A, g1, m0):
    A(m0 + "\ns_nop 0")
    for j in range(4): A(f"buffer_load_dwordx4 v{8+j}, s[{rW}:{rW+3}], s50 offen offset:{j*1024} lds")
    A(f"s_add_u32 s50, s50, {64*(P1 if g1 else P2)}")
def issue_h(A, m0, flag="sc1"):
    A(m0 + "\ns_nop 0")
    for j in range(4): A(f"buffer_load_dwordx4 v12, s[{rH}:{rH+3}], s51 offen offset:{j*1024} {flag} lds")
    A("s_add_u32 s51, s51, 16384")
def ld_main(A, o, g1):
    N = N1 if g1 else N2; P = "1" if g1 else "2"
    for z in range(R): issue_h(A, f"s_add_u32 m0, s52, {z*32768 + 16384}")
    A("s_waitcnt vmcnt(12)\ns_barrier")
    for n, c in ((0, 8), (1, 12)):
        A(f"s_waitcnt vmcnt({c})\ns_barrier")
        issue_w(A, g1, f"s_add_u32 m0, s52, {n*32768}"); issue_h(A, "s_add_u32 m0, m0, 16384")
    A(f"s_mov_b32 s53, 2\nL_l_loop{P}:")
    A(f"s_and_b32 s54, s53, {R-1}\ns_lshl_b32 s54, s54, 15")
    A("s_waitcnt vmcnt(16)\ns_barrier")
    issue_w(A, g1, "s_add_u32 m0, s52, s54"); issue_h(A, "s_add_u32 m0, m0, 16384")
    A(f"s_add_u32 s53, s53, 1\ns_cmp_lt_u32 s53, {N-R}\ns_cbranch_scc1 L_l_loop{P}")

def w2rows(A, dst, srow):
    A(f"v_and_b32 v{dst}, 31, v2\nv_lshlrev_b32 v{dst}, 7, v{dst}\nv_lshrrev_b32 v7, 5, v2\nv_mul_u32_u24 v7, 1792, v7\nv_add_u32 v7, s{srow}, v7\nv_lshl_add_u32 v{dst}, v7, 12, v{dst}")

def gen_loader(A, o):
    A("L_loader:")
    A("s_sub_u32 s62, s3, 4\ns_lshl_b32 s52, s62, 12\nv_and_b32 v2, 63, v0")
    A("v_lshrrev_b32 v3, 4, v2\nv_and_b32 v4, 15, v2\nv_lshrrev_b32 v5, 1, v4\nv_and_b32 v4, 1, v4\nv_lshlrev_b32 v4, 4, v4")
    A("s_waitcnt lgkmcnt(0)")
    common_setup(A, o)
    A(f"s_lshl_b32 s48, s2, 2\ns_add_u32 s48, s48, s62\ns_add_u32 s48, s48, 256\ns_mul_i32 s55, s48, {P1}\nv_min_u32 v13, 55, v2\nv_lshlrev_b32 v13, 7, v13")
    A("s_cmp_ge_u32 s2, 224\ns_cbranch_scc1 L_l_spare")
    ld_waddr(A, True)
    A("s_barrier")
    for z in range(R): issue_w(A, True, f"s_add_u32 m0, s52, {z*32768}")
    if o.get("lnpf", 1): A(f"buffer_load_dword v14, v13, s[{rW}:{rW+3}], s55 offen")
    ld_haddr(A, True)
    A(f"s_lshl_b32 s56, s{sXCD}, 11\ns_add_u32 s56, s56, {S1_OFF}\nv_lshrrev_b32 v13, 2, v2\nv_lshlrev_b32 v13, 7, v13\nv_and_b32 v14, 3, v2\nv_lshl_add_u32 v13, v14, 4, v13")
    A("s_waitcnt lgkmcnt(0)")
    make_tag(A)
    A("s_barrier\ns_barrier")
    A("s_cmp_lg_u32 s3, 4\ns_cbranch_scc1 L_l_s1seen")
    poll(A, "L_l_p1", f"buffer_load_dwordx4 v[16:19], v13, s[{rF}:{rF+3}], s56 offen sc1", [16, 17, 18, 19])
    A("s_cmp_lg_u32 s2, 0\ns_cbranch_scc1 L_l_s1seen")
    A(f"v_mov_b32 v16, s{sTAG}\nv_mov_b32 v17, 0\ns_mov_b64 exec, 1\nbuffer_store_dword v16, v17, s[{rF}:{rF+3}], 0 offen offset:{GEN_OFF} sc1\ns_mov_b64 exec, -1\ns_waitcnt vmcnt(0)")
    A("L_l_s1seen:\ns_barrier")
    ld_main(A, o, True)
    ld_waddr(A, False)
    A(f"s_lshl_b32 s48, s2, 2\ns_add_u32 s48, s48, s62\ns_add_u32 s48, s48, 896")
    w2rows(A, 13, 48)
    for z, c in enumerate((16, 12, 8, None)):
        if c is not None: A(f"s_waitcnt vmcnt({c})")
        A("s_barrier")
        issue_w(A, False, f"s_add_u32 m0, s52, {z*32768}")
    if o.get("tailpf", 1): A(f"buffer_load_dword v14, v13, s[{rW}:{rW+3}], 0 offen")
    A("s_barrier")
    A("L_l_g2:")
    ld_haddr(A, False)
    rep = o.get("s2r", 2)
    A(f"s_lshl_b32 s56, s{sDT2}, 1\ns_add_u32 s56, s56, s{sHK}\ns_lshl_b32 s56, s56, 7\ns_and_b32 s57, s{sST}, {rep-1}\ns_lshl_b32 s57, s57, 11\ns_add_u32 s56, s56, s57\ns_add_u32 s56, s56, {S2_OFF}\nv_lshlrev_b32 v13, 2, v2")
    A("s_cmp_lg_u32 s3, 4\ns_cbranch_scc1 L_l_s2seen")
    poll(A, "L_l_p2", f"buffer_load_dword v16, v13, s[{rF}:{rF+3}], s56 offen sc1", [16], mask=(1 << 14) - 1)
    A("L_l_s2seen:\ns_barrier")
    ld_main(A, o, False)
    for c in (16, 8, 0, None):
        if c is not None: A(f"s_waitcnt vmcnt({c})")
        A("s_barrier")
    A("s_endpgm")
    A("L_l_spare:")
    srd(A, rH, sW1, 0, S*F*2)
    ld_waddr(A, False)
    A("s_barrier")
    if o.get("lnpf", 1): A(f"buffer_load_dword v14, v13, s[{rH}:{rH+3}], s55 offen")
    A("s_waitcnt lgkmcnt(0)")
    make_tag(A)
    A("s_barrier\ns_barrier")
    A("s_cmp_lg_u32 s3, 4\ns_cbranch_scc1 L_l_spw")
    A("s_sub_u32 s48, s2, 224\ns_lshl_b32 s49, s48, 13\nv_lshl_add_u32 v13, v2, 7, s49")
    w2rows(A, 14, 48)
    r0 = 1280 if o.get("lnpf", 1) else 256
    if o.get("spare", 1):
        A(f"s_mov_b32 s48, {r0*P1}\nL_l_sp1:\nbuffer_load_dword v15, v13, s[{rH}:{rH+3}], s48 offen\ns_add_u32 s48, s48, {32*8192}\ns_cmp_lt_u32 s48, {S*P1}\ns_cbranch_scc1 L_l_sp1")
        A(f"s_mov_b32 s48, 0\nL_l_sp2:\nbuffer_load_dword v15, v14, s[{rW}:{rW+3}], s48 offen\ns_add_u32 s48, s48, {32*P2}\ns_cmp_lt_u32 s48, {896*P2}\ns_cbranch_scc1 L_l_sp2")
    A("L_l_spw:")
    for z in range(R): issue_w(A, False, f"s_add_u32 m0, s52, {z*32768}")
    A("s_branch L_l_g2")

HEAD = open(__file__.replace("gen2.py", "head.txt")).read()
def build(o):
    A = Asm()
    A.L.append(HEAD.rstrip("\n"))
    if o.get("tail_e"):
        A(f"; @launch kernel={NAME} grid=(256,1,1) block=(512,1,1) lds={LDS_LN + 256}")
        A("; @launch kernel=empty_kernel grid=(256,1,1) block=(64,1,1) lds=0")
    else: A(f"; @launch grid=(256,1,1) block=(512,1,1) lds={LDS_LN + 256}")
    A('.amdgcn_target "amdgcn-amd-amdhsa--gfx950"\n.text')
    A(f".globl {NAME}\n.p2align 8\n.type {NAME},@function\n{NAME}:")
    A("s_cmp_ge_u32 s2, 256\ns_cbranch_scc1 L_end")
    stamp(A, o, 0)
    A("s_load_dwordx16 s[4:19], s[0:1], 0")
    A("v_readfirstlane_b32 s3, v0\ns_nop 0\ns_lshr_b32 s3, s3, 6\ns_cmp_ge_u32 s3, 4\ns_cbranch_scc1 L_loader")
    gen_ln(A, o)
    A("s_cmp_ge_u32 s2, 224\ns_cbranch_scc1 L_c_g2")
    cons_prologue(A, o, True)
    cons_loop(A, o)
    cons_epi1(A, o)
    A("L_c_g2:")
    cons_prologue(A, o, False)
    A("s_branch L_c_main")
    cons_epi2(A, o)
    gen_loader(A, o)
    A("L_end:\ns_endpgm")
    def desc(name, v):
        A(f".p2align 6\n.amdhsa_kernel {name}\n  .amdhsa_next_free_vgpr {v}\n  .amdhsa_next_free_sgpr 102\n  .amdhsa_accum_offset {v}\n"
          "  .amdhsa_group_segment_fixed_size 0\n  .amdhsa_kernarg_size 64\n  .amdhsa_user_sgpr_count 2\n"
          "  .amdhsa_user_sgpr_kernarg_segment_ptr 1\n  .amdhsa_system_sgpr_workgroup_id_x 1\n.end_amdhsa_kernel")
    if o.get("tail_e"):
        A(".globl empty_kernel\n.p2align 8\n.type empty_kernel,@function\nempty_kernel:")
        A("s_cmp_ge_u32 s2, 256\ns_cbranch_scc1 L_em_end\ns_memrealtime s[70:71]\ns_load_dwordx2 s[18:19], s[0:1], 56")
        stamp_flush(A, o, [0], 3)
        A("L_em_end:\ns_endpgm")
    A('.section .rodata,"a"')
    desc(NAME, 160)
    if o.get("tail_e"): desc("empty_kernel", 8)
    return A.text()

if __name__ == "__main__":
    o = {}
    for kv in sys.argv[2:]:
        k, v = kv.split("=", 1)
        o[k] = int(v) if v.lstrip("-").isdigit() else v
    open(sys.argv[1], "w").write(build(o))
```

```python
import sys, struct, math
S, D, F = 2048, 1024, 3584
WS_H, WS_U, WS_FLG, WS_STAMP = 0, 6 << 20, 20 << 20, 24 << 20
PAD = 8192
HSTR, USTR = 64*8192 + PAD, 112*8192 + PAD
H_BYTES, U_BYTES = 8*HSTR, 8*USTR
GEN_OFF, S1_OFF, S2_OFF, S3_OFF = 0, 4096, 32768, 65536
FLG_BYTES = S3_OFF + 256*1024
R = 4
LDS_LN = R*32768
NAME = "standalone__mixer_token_mlp__prompt_kernel"
N1, N2 = 32, 28
P1, P2 = F*2, S*2

def f32(x): return "0x%08x" % struct.unpack("<I", struct.pack("<f", x))[0]

class Asm:
    def __init__(self): self.L = []
    def __call__(self, s):
        for l in s.split("\n"):
            l = l.strip()
            if l: self.L.append(l if (l.endswith(":") or l.startswith(".") or l.startswith(";")) else "    " + l)
    def text(self): return "\n".join(self.L) + "\n"

sX, sW1, sB1, sW2, sB2, sOUT, sDBG, sWS = 4, 6, 8, 10, 12, 14, 16, 18
sTAG, sXCD, sN, sFT, sDT1, sST, sDT2, sHK = 20, 21, 22, 23, 24, 25, 26, 27
rW, rH, rF, rM, rS = 28, 32, 36, 40, 44
sPH, sN7 = 68, 69
ACC, XW, XH, YW, YH = 32, 96, 112, 128, 144
VWA, VHA = 8, 16

def srd(A, r, base, off, nbytes):
    if off: A(f"s_add_u32 s{r}, s{base}, {off}\ns_addc_u32 s{r+1}, s{base+1}, 0")
    else: A(f"s_mov_b32 s{r}, s{base}\ns_mov_b32 s{r+1}, s{base+1}")
    A(f"s_mov_b32 s{r+2}, {nbytes}\ns_mov_b32 s{r+3}, 0x20000")

def stamp(A, o, i, cyc=None):
    if o.get("stamp"):
        A(f"s_memrealtime s[{70+2*i}:{71+2*i}]")
        if cyc is not None: A(f"s_memtime s[{94+2*cyc}:{95+2*cyc}]")
def stamp_flush(A, o, lst, slot=0):
    if not o.get("stamp"): return
    A("s_waitcnt lgkmcnt(0)")
    A(f"s_add_u32 s92, s{sWS}, {WS_STAMP + slot*16384}\ns_addc_u32 s93, s{sWS+1}, 0\nv_mov_b32 v28, s2\nv_lshlrev_b32 v28, 6, v28\ns_mov_b64 exec, 1")
    for i in lst: A(f"v_mov_b32 v29, s{70+2*i}\nglobal_store_dword v28, v29, s[92:93] offset:{4*i}")

def poll(A, label, load, regs, mask=None):
    A(f"s_mov_b32 s59, 0x200000")
    if mask is not None: A(f"s_mov_b64 exec, {mask}")
    A(f"{label}:\n{load}\ns_sub_u32 s59, s59, 1\ns_cbranch_scc1 {label}_x\ns_waitcnt vmcnt(0)")
    A(f"v_cmp_ne_u32 vcc, s{sTAG}, v{regs[0]}")
    for r_ in regs[1:]: A(f"v_cmp_ne_u32 s[60:61], s{sTAG}, v{r_}\ns_or_b64 vcc, vcc, s[60:61]")
    A(f"s_cmp_lg_u64 vcc, 0\ns_cbranch_scc1 {label}\n{label}_x:")
    if mask is not None: A("s_mov_b64 exec, -1")

def gen_ln(A, o):
    A("s_lshr_b32 s48, s2, 2\ns_and_b32 s49, s2, 3")
    A("s_lshl_b32 s50, s48, 5\ns_lshl_b32 s51, s49, 2\ns_add_u32 s50, s50, s51\ns_lshl_b32 s50, s50, 11")
    A("v_lshlrev_b32 v1, 3, v0")
    rowoff = [(16*(j//4) + j % 4) * 2048 for j in range(8)]
    for j in range(8): A(f"s_add_u32 s{52+j}, s50, {rowoff[j]}")
    A("s_waitcnt lgkmcnt(0)")
    srd(A, rM, sX, 0, S*D*2)
    for j in range(8): A(f"buffer_load_dwordx2 v[{2+2*j}:{3+2*j}], v1, s[{rM}:{rM+3}], s{52+j} offen")
    A("s_barrier")
    A(f"s_add_u32 s50, s{sX}, s50\ns_addc_u32 s51, s{sX+1}, 0")
    for j in range(8): A(f"s_load_dword s{52+j}, s[50:51], {rowoff[j]}")
    common_setup(A, o)
    srd(A, rS, sWS, WS_H, H_BYTES)
    A(f"v_lshrrev_b32 v62, 5, v0\nv_mul_u32_u24 v62, {HSTR}, v62")
    A("v_bfe_u32 v63, v0, 4, 1\nv_lshlrev_b32 v63, 12, v63\nv_add_u32 v62, v62, v63")
    A("v_and_b32 v63, 15, v0\nv_lshlrev_b32 v63, 4, v63\nv_add_u32 v62, v62, v63")
    A("s_lshl_b32 s48, s48, 13\ns_lshl_b32 s49, s49, 8\ns_add_u32 s48, s48, s49")
    if o.get("hpf"):
        A("v_and_b32 v63, 7, v0\nv_cmp_eq_u32 vcc, 0, v63\ns_and_saveexec_b64 s[60:61], vcc")
        for t in range(4): A(f"buffer_load_dword v19, v62, s[{rS}:{rS+3}], s48 offen offset:{t*1024}")
        A("s_mov_b64 exec, s[60:61]")
    A(f"v_lshrrev_b32 v64, 4, v0\nv_lshlrev_b32 v64, 4, v64\nv_add_u32 v64, {LDS_LN}, v64")
    A(f"v_and_b32 v65, 3, v0\nv_lshlrev_b32 v65, 4, v65\nv_bfe_u32 v66, v0, 2, 1\nv_lshlrev_b32 v66, 2, v66\nv_add_u32 v65, v65, v66\nv_add_u32 v65, {LDS_LN}, v65")
    A("s_waitcnt lgkmcnt(0)")
    make_tag(A)
    for j in range(8): A(f"s_lshl_b32 s{52+j}, s{52+j}, 16")
    for j in range(8):
        A(f"s_waitcnt vmcnt({7-j + (4 if o.get('hpf') else 0)})")
        for c in range(4):
            src = 2 + 2*j + c//2; d = 70 + 4*j + c
            A(f"v_lshlrev_b32 v{d}, 16, v{src}" if c % 2 == 0 else f"v_and_b32 v{d}, 0xffff0000, v{src}")
        for c in range(4): A(f"v_subrev_f32 v{70+4*j+c}, s{52+j}, v{70+4*j+c}")
        b = 70 + 4*j
        A(f"v_add_f32 v{20+j}, v{b}, v{b+1}\nv_mul_f32 v{28+j}, v{b}, v{b}")
        A(f"v_add_f32 v{20+j}, v{20+j}, v{b+2}\nv_fmac_f32 v{28+j}, v{b+1}, v{b+1}")
        A(f"v_add_f32 v{20+j}, v{20+j}, v{b+3}\nv_fmac_f32 v{28+j}, v{b+2}, v{b+2}\nv_fmac_f32 v{28+j}, v{b+3}, v{b+3}")
    stamp(A, o, 1)
    A("s_nop 1")
    for p in range(8): A(f"v_permlane32_swap_b32 v{20+2*p}, v{21+2*p}")
    for p in range(8): A(f"v_add_f32 v{20+2*p}, v{20+2*p}, v{21+2*p}")
    A("s_nop 1")
    for q in range(4): A(f"v_permlane16_swap_b32 v{20+4*q}, v{22+4*q}")
    for q in range(4): A(f"v_add_f32 v{40+q}, v{20+4*q}, v{22+4*q}")
    for sh in (8, 4, 2, 1):
        A("s_nop 1")
        for q in range(4): A(f"v_add_f32_dpp v{40+q}, v{40+q}, v{40+q} row_ror:{sh} row_mask:0xf bank_mask:0xf")
    A("ds_write_b128 v64, v[40:43]")
    A("s_waitcnt lgkmcnt(0)\ns_barrier")
    for w in range(4): A(f"ds_read2_b32 v[{44+2*w}:{45+2*w}], v65 offset0:{16*w} offset1:{16*w+2}")
    A("s_waitcnt lgkmcnt(0)")
    A("v_add_f32 v44, v44, v46\nv_add_f32 v45, v45, v47\nv_add_f32 v48, v48, v50\nv_add_f32 v49, v49, v51\nv_add_f32 v44, v44, v48\nv_add_f32 v45, v45, v49")
    A(f"v_mul_f32 v44, {f32(1.0/D)}, v44\nv_mul_f32 v45, {f32(1.0/D)}, v45")
    A("v_fma_f32 v45, -v44, v44, v45\nv_max_f32 v45, 0, v45")
    A(f"v_add_f32 v45, {f32(1e-5)}, v45\nv_rsq_f32 v45, v45\ns_nop 0\nv_mul_f32 v44, v44, v45\nv_sub_f32 v44, 0, v44")
    A("s_nop 1")
    gmap = [0, 2, 1, 3]
    for e in range(8):
        j = gmap[e % 4] + 4*(e // 4)
        A(f"v_readlane_b32 s{52+j}, v45, {e}\nv_readlane_b32 s{60+j}, v44, {e}")
    A("s_nop 1")
    for j in range(8): A(f"v_mov_b32 v{20+j}, s{60+j}")
    for t in range(4):
        for j in range(8):
            d = 70 + 4*j + t
            A(f"v_fma_f32 v{d}, v{d}, s{52+j}, v{20+j}")
        for jj in range(4):
            A(f"v_cvt_pk_bf16_f32 v{44+4*t+jj}, v{70+4*(2*jj)+t}, v{70+4*(2*jj+1)+t}")
        A(f"buffer_store_dwordx4 v[{44+4*t}:{47+4*t}], v62, s[{rS}:{rS+3}], s48 offen offset:{t*1024} {o.get('hst', 'sc1').replace('_', ' ')}")
    A(f"s_lshr_b32 s48, s2, 4\ns_lshl_b32 s48, s48, 7\ns_and_b32 s49, s2, 15\ns_lshl_b32 s49, s49, 2\ns_add_u32 s48, s48, s49\ns_add_u32 s48, s48, {S1_OFF}")
    A(f"v_lshlrev_b32 v3, 11, v0\nv_mov_b32 v4, s{sTAG}\nv_and_b32 v2, 63, v0")
    A("s_barrier")
    A("s_waitcnt vmcnt(0)\ns_barrier")
    A("s_cmp_lg_u32 s3, 0\ns_cbranch_scc1 L_c_s1done")
    A(f"s_mov_b64 exec, 0xff\nbuffer_store_dword v4, v3, s[{rF}:{rF+3}], s48 offen sc1\ns_mov_b64 exec, -1")
    A("L_c_s1done:")
    stamp(A, o, 2)

def common_setup(A, o):
    A(f"s_add_u32 s{rF}, s{sWS}, {WS_FLG}\ns_addc_u32 s{rF+1}, s{sWS+1}, 0\ns_mov_b32 s{rF+2}, {FLG_BYTES}\ns_mov_b32 s{rF+3}, 0x20000")
    A(f"s_load_dword s{sTAG}, s[{rF}:{rF+1}], {GEN_OFF}")
    A(f"s_and_b32 s{sXCD}, s2, 7\ns_lshr_b32 s{sN}, s2, 3")
    A(f"s_mul_i32 s66, s{sN}, 37\ns_lshr_b32 s66, s66, 8\ns_mul_i32 s67, s66, 7\ns_sub_u32 s{sN7}, s{sN}, s67")
    A(f"s_and_b32 s67, s{sXCD}, 3\ns_mul_i32 s{sFT}, s67, 7\ns_add_u32 s{sFT}, s{sFT}, s{sN7}")
    A(f"s_and_b32 s{sDT2}, s{sXCD}, 4\ns_add_u32 s{sDT1}, s{sDT2}, s66")
    A(f"s_and_b32 s{sHK}, s{sN}, 1\ns_lshl_b32 s{sST}, s67, 2\ns_bfe_u32 s66, s{sN}, 0x20001\ns_add_u32 s{sST}, s{sST}, s66")
    A(f"s_lshr_b32 s66, s{sN}, 3\ns_add_u32 s{sDT2}, s{sDT2}, s66")
def make_tag(A):
    A(f"s_mul_i32 s{sTAG}, s{sTAG}, 0x9e3779b1\ns_add_u32 s{sTAG}, s{sTAG}, 0x7f4a7c15")

def substep(A, o, cur, nxt, slot, ks, barrier):
    cw, ch = cur; nw, nh = nxt
    hi = slot >= 2
    base = (slot % 2) * 32768
    rd = []
    def wread(fb):
        for r_ in range(2):
            rd.append(f"ds_read_b64_tr_b16 v[{nw+4*fb+2*r_}:{nw+4*fb+2*r_+1}], v{VWA+4*hi+fb} offset:{base + ks*8192 + r_*4096}")
    def hread(t):
        rd.append(f"ds_read_b128 v[{nh+4*t}:{nh+4*t+3}], v{VHA+hi} offset:{base + 16384 + ks*8192 + t*1024}")
    wread(0)
    for t in range(4): hread(t)
    for fb in range(1, 4): wread(fb)
    A("s_waitcnt lgkmcnt(0)")
    if barrier: A("s_barrier")
    k = 0
    for m in range(16):
        fb, t = m // 4, m % 4
        if o.get("snake") and fb % 2: t = 3 - t
        a = ACC + 16*fb + 4*t
        A(f"v_mfma_f32_16x16x32_bf16 v[{a}:{a+3}], v[{cw+4*fb}:{cw+4*fb+3}], v[{ch+4*t}:{ch+4*t+3}], v[{a}:{a+3}]")
        for _ in range(o.get("rdper", 1)):
            if k < len(rd): A(rd[k]); k += 1

def cons_prologue(A, o, g1):
    tile = sFT if g1 else sST
    srd(A, rM, sB1 if g1 else sB2, 0, (F if g1 else S)*2)
    A("s_and_b32 s62, s3, 1\ns_lshr_b32 s63, s3, 1")
    A("v_lshrrev_b32 v3, 4, v2\nv_and_b32 v4, 15, v2")
    A(f"s_lshl_b32 s50, s{tile}, 8\ns_lshl_b32 s51, s63, 7\ns_add_u32 s50, s50, s51")
    if not g1: A(f"s_lshl_b32 s51, s{sHK}, 6\ns_add_u32 s50, s50, s51")
    A("v_lshlrev_b32 v5, 3, v3")
    nb = 4 if g1 else 2
    for fb in range(nb): A(f"buffer_load_dwordx2 v[{20+2*fb}:{21+2*fb}], v5, s[{rM}:{rM+3}], s50 offen offset:{fb*32}")
    if not g1:
        A(f"s_lshl_b32 s54, s2, 10\ns_lshl_b32 s55, s3, 8\ns_add_u32 s54, s54, s55\ns_add_u32 s54, s54, {S3_OFF}\ns_xor_b32 s55, s54, 0x2000")
        A(f"s_getreg_b32 s64, hwreg(HW_REG_XCC_ID, 0, 4)\ns_add_u32 s64, s64, 1\ns_add_u32 s64, s64, s{sTAG}\nv_mov_b32 v6, s64\nv_mov_b32 v7, 128")
        A(f"s_mov_b64 exec, 1\nbuffer_store_dword v6, v7, s[{rF}:{rF+3}], s54 offen sc1\ns_mov_b64 exec, -1")
    A("v_lshrrev_b32 v6, 2, v4\nv_lshl_add_u32 v7, v3, 2, v6")
    A("v_and_b32 v18, 7, v7\nv_lshlrev_b32 v7, 8, v7\nv_and_b32 v19, 3, v4\nv_lshl_add_u32 v7, v19, 3, v7")
    A("s_lshl_b32 s50, s63, 2")
    if not g1: A(f"s_lshl_b32 s51, s{sHK}, 1\ns_xor_b32 s50, s50, s51")
    for fb in range(4):
        A(f"s_xor_b32 s51, s50, {fb}\nv_xor_b32 v19, s51, v18\nv_lshl_add_u32 v{VWA+fb}, v19, 5, v7\nv_add_u32 v{VWA+4+fb}, 0x10000, v{VWA+fb}")
    A(f"s_lshl_b32 s50, s62, 12\nv_lshl_add_u32 v{VHA}, v2, 4, s50\nv_add_u32 v{VHA+1}, 0x10000, v{VHA}")
    A(f"s_waitcnt vmcnt({0 if g1 else 1})")
    for fb in range(4):
        for r_ in range(4):
            a = ACC + 16*fb + r_
            if fb < nb:
                src = 20 + 2*fb + r_//2
                A(f"v_lshlrev_b32 v{a}, 16, v{src}" if r_ % 2 == 0 else f"v_and_b32 v{a}, 0xffff0000, v{src}")
            else: A(f"v_mov_b32 v{a}, 0")
            for t in range(1, 4): A(f"v_mov_b32 v{a+4*t}, v{a}")
    A(f"s_mov_b32 s{sPH}, {1 if g1 else 2}\ns_mov_b32 s65, {(N1 if g1 else N2)//R}")

def cons_loop(A, o):
    A("L_c_main:")
    A("s_barrier")
    A("s_barrier")
    A(f"v_mov_b32 v5, 128\ns_cmp_eq_u32 s{sPH}, 1\ns_cbranch_scc1 L_c_noid")
    A(f"buffer_load_dword v30, v5, s[{rF}:{rF+3}], s55 offen sc1")
    stamp(A, o, 7, 2)
    A("s_branch L_c_go\nL_c_noid:")
    stamp(A, o, 3, 0)
    A("L_c_go:")
    X, Y = (XW, XH), (YW, YH)
    for fb in range(4):
        for r_ in range(2): A(f"ds_read_b64_tr_b16 v[{XW+4*fb+2*r_}:{XW+4*fb+2*r_+1}], v{VWA+fb} offset:{r_*4096}")
    for t in range(4): A(f"ds_read_b128 v[{XH+4*t}:{XH+4*t+3}], v{VHA} offset:{16384+t*1024}")
    if o.get("cprio"): A(f"s_setprio {o['cprio']}")
    A(".p2align 6")
    for _ in range(o.get("cpad", 0)): A("s_nop 0")
    A("L_c_loop:")
    for r_ in range(R):
        substep(A, o, X, Y, r_, 1, False)
        substep(A, o, Y, X, (r_+1) % R, 0, True)
    A("s_sub_u32 s65, s65, 1\ns_cmp_lg_u32 s65, 0\ns_cbranch_scc1 L_c_loop")
    A(f"s_waitcnt lgkmcnt(0)\ns_cmp_eq_u32 s{sPH}, 2\ns_cbranch_scc1 L_c_epi2")

def cons_epi1(A, o):
    stamp(A, o, 4, 1)
    srd(A, rS, sWS, WS_U, U_BYTES)
    c0 = -2.0*math.sqrt(2.0/math.pi)*math.log2(math.e); c1 = c0*0.044715
    A(f"s_mov_b32 s52, {f32(c1)}\nv_mov_b32 v3, {f32(c0)}")
    A(f"s_lshl_b32 s48, s{sFT}, 2\ns_lshl_b32 s49, s63, 1\ns_add_u32 s48, s48, s49\ns_lshl_b32 s48, s48, 13\ns_mul_i32 s49, s{sDT1}, {USTR}\ns_add_u32 s48, s48, s49")
    A("s_lshl_b32 s49, s62, 12\ns_add_u32 s48, s48, s49\ns_add_u32 s49, s48, 8192\nv_lshlrev_b32 v4, 4, v2")
    T = XW
    pk = o.get("pk", 1)
    if pk: A("s_mov_b32 s53, s52\nv_mov_b32 v6, v3\nv_mov_b32 v7, v3\nv_mov_b32 v8, 1.0\nv_mov_b32 v9, 1.0")
    for kbl in range(2):
        for t in range(4):
            regs = [ACC + 16*(2*kbl + h) + 4*t + r_ for h in range(2) for r_ in range(4)]
            tb = T + ((kbl*4 + t) % 2) * 16
            pr = lambda r_: f"v[{r_}:{r_+1}]"
            if pk:
                for e in range(0, 8, 2): A(f"v_pk_mul_f32 {pr(tb+e)}, {pr(regs[e])}, {pr(regs[e])}")
                for e in range(0, 8, 2): A(f"v_pk_fma_f32 {pr(tb+e)}, {pr(tb+e)}, s[52:53], v[6:7]")
                for e in range(0, 8, 2): A(f"v_pk_mul_f32 {pr(tb+e)}, {pr(tb+e)}, {pr(regs[e])}")
                for e in range(8): A(f"v_exp_f32 v{tb+e}, v{tb+e}")
                for e in range(0, 8, 2): A(f"v_pk_add_f32 {pr(tb+e)}, {pr(tb+e)}, v[8:9]")
                for e in range(8): A(f"v_rcp_f32 v{tb+e}, v{tb+e}")
                for e in range(0, 8, 2): A(f"v_pk_mul_f32 {pr(tb+e)}, {pr(tb+e)}, {pr(regs[e])}")
            else:
                for e, a in enumerate(regs): A(f"v_mul_f32 v{tb+e}, v{a}, v{a}")
                for e, a in enumerate(regs): A(f"v_fma_f32 v{tb+e}, v{tb+e}, s52, v3")
                for e, a in enumerate(regs): A(f"v_mul_f32 v{tb+e}, v{tb+e}, v{a}")
                for e, a in enumerate(regs): A(f"v_exp_f32 v{tb+e}, v{tb+e}")
                for e, a in enumerate(regs): A(f"v_add_f32 v{tb+e}, 1.0, v{tb+e}")
                for e, a in enumerate(regs): A(f"v_rcp_f32 v{tb+e}, v{tb+e}")
                for e, a in enumerate(regs): A(f"v_mul_f32 v{tb+e}, v{tb+e}, v{a}")
            for e in range(4): A(f"v_cvt_pk_bf16_f32 v{tb+8+e}, v{tb+2*e}, v{tb+2*e+1}")
            A(f"buffer_store_dwordx4 v[{tb+8}:{tb+11}], v4, s[{rS}:{rS+3}], s{48+kbl} offen offset:{t*1024} sc1")
    rep = o.get("s2r", 2)
    A(f"s_cmp_ge_u32 s{sFT}, 14\ns_cselect_b32 s48, 1, 0\ns_cselect_b32 s49, 14, 0\ns_sub_u32 s49, s{sFT}, s49\ns_lshl_b32 s49, s49, 2")
    A(f"s_lshl_b32 s50, s{sDT1}, 1\ns_add_u32 s48, s48, s50\ns_lshl_b32 s48, s48, 7\ns_add_u32 s48, s48, s49\ns_add_u32 s48, s48, {S2_OFF}")
    A(f"v_lshlrev_b32 v3, 11, v2\nv_mov_b32 v4, s{sTAG}")
    stamp(A, o, 5)
    A("s_waitcnt vmcnt(0)\ns_barrier")
    A("s_cmp_lg_u32 s3, 0\ns_cbranch_scc1 L_c_g2")
    A(f"s_mov_b64 exec, {(1 << rep) - 1}\nbuffer_store_dword v4, v3, s[{rF}:{rF+3}], s48 offen sc1\ns_mov_b64 exec, -1")
    stamp(A, o, 6)

def cons_epi2(A, o):
    A("L_c_epi2:")
    stamp(A, o, 8, 3)
    srd(A, rS, sOUT, 0, S*D*2)
    A("v_lshrrev_b32 v3, 4, v2\nv_and_b32 v7, 15, v2\nv_lshlrev_b32 v3, 13, v3\nv_lshl_add_u32 v7, v7, 3, v3")
    A(f"s_lshl_b32 s56, s{sST}, 7\ns_lshl_b32 s57, s63, 6\ns_add_u32 s56, s56, s57\ns_lshl_b32 s57, s{sHK}, 5\ns_add_u32 s56, s56, s57\ns_lshl_b32 s56, s56, 11")
    A(f"s_lshl_b32 s57, s{sDT2}, 8\ns_add_u32 s56, s56, s57\ns_lshl_b32 s57, s62, 7\ns_add_u32 s56, s56, s57")
    A("s_xor_b32 s52, s56, 0x10000\nv_add_u32 v8, 4096, v7\ns_add_u32 s53, s52, 32768\ns_add_u32 s57, s56, 32768")
    A(f"v_mov_b32 v5, 0\nv_mov_b32 v6, s{sTAG}")
    def oaddr(sb, r_, base): return f"v{7 + r_//2}, s[{rS}:{rS+3}], s{base + sb} offen offset:{(r_%2)*2048}"
    for sb in range(2):
        for r_ in range(4):
            a = ACC + 32 + 16*sb + r_; d = YW + 8*sb + 2*r_
            A(f"v_cvt_pk_bf16_f32 v{d}, v{a}, v{a+4}\nv_cvt_pk_bf16_f32 v{d+1}, v{a+8}, v{a+12}")
    def send(flag):
        for sb in range(2):
            for r_ in range(4):
                d = YW + 8*sb + 2*r_
                A(f"buffer_store_dwordx2 v[{d}:{d+1}], {oaddr(sb, r_, 52)} {flag}")
        A("s_waitcnt vmcnt(0)")
        A(f"s_mov_b64 exec, 1\nbuffer_store_dword v6, v5, s[{rF}:{rF+3}], s54 offen {flag}")
    A("s_waitcnt vmcnt(0)\nv_readfirstlane_b32 s61, v30\ns_cmp_eq_u32 s61, s64\ns_cbranch_scc0 L_c_far")
    send("")
    A("s_branch L_c_sent\nL_c_far:")
    send("sc1")
    A("L_c_sent:")
    poll(A, "L_c_p3", f"buffer_load_dword v18, v5, s[{rF}:{rF+3}], s55 offen sc1", [18], mask=1)
    stamp(A, o, 9)
    for sb in range(2):
        for r_ in range(4):
            d = XW + 8*sb + 2*r_
            A(f"buffer_load_dwordx2 v[{d}:{d+1}], {oaddr(sb, r_, 56)} sc1")
    for sb in range(2):
        for r_ in range(4):
            q = 4*sb + r_
            A("s_waitcnt vmcnt(7)")
            a = ACC + 16*sb + r_; d = XW + 8*sb + 2*r_; t_ = XW + 16 + 4*(q % 2)
            A(f"v_lshlrev_b32 v{t_}, 16, v{d}\nv_and_b32 v{t_+1}, 0xffff0000, v{d}\nv_lshlrev_b32 v{t_+2}, 16, v{d+1}\nv_and_b32 v{t_+3}, 0xffff0000, v{d+1}")
            for t in range(4): A(f"v_add_f32 v{a+4*t}, v{a+4*t}, v{t_+t}")
            A(f"v_cvt_pk_bf16_f32 v{d}, v{a}, v{a+4}\nv_cvt_pk_bf16_f32 v{d+1}, v{a+8}, v{a+12}")
            A(f"buffer_store_dwordx2 v[{d}:{d+1}], {oaddr(sb, r_, 56)}")
    if o.get("stamp"):
        A("s_cmp_lg_u32 s3, 0\ns_cbranch_scc1 L_end\ns_waitcnt vmcnt(0)")
        stamp(A, o, 10)
        stamp_flush(A, o, range(11))
        A("s_sub_u32 s94, s96, s94\nv_mov_b32 v29, s94\nglobal_store_dword v28, v29, s[92:93] offset:56")
        A("s_sub_u32 s98, s100, s98\nv_mov_b32 v29, s98\nglobal_store_dword v28, v29, s[92:93] offset:60")
        if o.get("spinend"):
            A("s_cmp_lg_u32 s2, 0\ns_cbranch_scc1 L_end\ns_add_u32 s70, s70, 20000\ns_mov_b32 s59, 200000")
            A("L_sp:\ns_sub_u32 s59, s59, 1\ns_cbranch_scc1 L_end\ns_memrealtime s[72:73]\ns_waitcnt lgkmcnt(0)\ns_sub_u32 s72, s72, s70\ns_cmp_lt_i32 s72, 0\ns_cbranch_scc1 L_sp")
    A("s_endpgm")

def ld_waddr(A, g1):
    pitch = P1 if g1 else P2
    srd(A, rW, sW1 if g1 else sW2, 0, S*F*2)
    A(f"s_mov_b32 s48, {pitch}\ns_lshl_b32 s49, s62, 4\ns_lshl_b32 s50, s{sFT if g1 else sST}, 8")
    for j in range(4):
        A(f"v_add_u32 v6, {4*(j%2)}, v3\nv_xor_b32 v6, v6, v5\nv_lshl_add_u32 v6, v6, 5, v4")
        A(f"s_add_u32 s51, s49, {4*j}\nv_add_u32 v7, s51, v3\nv_mul_lo_u32 v7, v7, s48\nv_add3_u32 v{8+j}, v7, v6, s50")
        if j: A(f"v_subrev_u32 v{8+j}, {j*1024}, v{8+j}")
    A("s_mov_b32 s50, 0" if g1 else f"s_mul_i32 s50, s{sHK}, {N2*64*P2}")
def ld_haddr(A, g1):
    srd(A, rH, sWS, WS_H if g1 else WS_U, H_BYTES if g1 else U_BYTES)
    A(f"s_mul_i32 s48, s{sDT1 if g1 else sDT2}, {HSTR if g1 else USTR}\ns_add_u32 s48, s48, s52\nv_lshl_add_u32 v12, v2, 4, s48")
    A("s_mov_b32 s51, 0" if g1 else f"s_mul_i32 s51, s{sHK}, {N2*16384}")
def issue_w(A, g1, m0):
    A(m0 + "\ns_nop 0")
    for j in range(4): A(f"buffer_load_dwordx4 v{8+j}, s[{rW}:{rW+3}], s50 offen offset:{j*1024} lds")
    A(f"s_add_u32 s50, s50, {64*(P1 if g1 else P2)}")
def issue_h(A, m0, flag="sc1"):
    A(m0 + "\ns_nop 0")
    for j in range(4): A(f"buffer_load_dwordx4 v12, s[{rH}:{rH+3}], s51 offen offset:{j*1024} {flag} lds")
    A("s_add_u32 s51, s51, 16384")
def helper_setup(A, o, g1):
    if not o.get("helper", 0): return
    dl = o.get("hdelta", 2)
    pitch = P1 if g1 else P2
    A(f"s_and_b32 s60, s{sXCD}, 3\ns_and_b32 s61, s{sDT1 if g1 else sDT2}, 3")
    if g1:
        A(f"s_add_u32 s58, s60, 1\ns_and_b32 s58, s58, 3")
        A(f"s_mul_i32 s60, s60, 7\ns_add_u32 s60, s60, s58")
        A(f"s_cmp_eq_u32 s58, 3\ns_cselect_b32 s59, 6, 5\ns_cselect_b32 s63, 1, 2\ns_lshl_b32 s63, s63, 7\ns_mul_i32 s61, s61, s59")
        A(f"s_cmp_gt_u32 s{sN7}, s58\ns_cselect_b32 s59, 1, 0\ns_sub_u32 s64, s{sN7}, s59\ns_add_u32 s65, s58, 4\ns_cmp_gt_u32 s{sN7}, s65\ns_cselect_b32 s59, 1, 0\ns_sub_u32 s64, s64, s59")
        A(f"s_and_b32 s59, s{sN7}, 3"); per = 13
    else:
        A(f"s_mov_b32 s58, 1\ns_lshl_b32 s60, s60, 2\ns_add_u32 s60, s60, 1\ns_mov_b32 s63, 128\ns_mul_i32 s61, s61, 3")
        A(f"s_and_b32 s59, s{sST}, 3\ns_cmp_gt_u32 s59, 1\ns_cselect_b32 s64, 1, 0\ns_sub_u32 s64, s59, s64"); per = 11
    A(f"s_cmp_lg_u32 s59, s58\ns_cselect_b32 s57, 1, 0\ns_cmp_eq_u32 s3, 5\ns_cselect_b32 s57, s57, 0")
    A(f"s_add_u32 s61, s61, s64\ns_mul_i32 s61, s61, {per}\nv_add_u32 v21, s61, v2")
    A(f"v_lshrrev_b32 v20, 7, v21\nv_lshlrev_b32 v20, 10, v20\ns_lshl_b32 s60, s60, 8\nv_add_u32 v20, s60, v20")
    A(f"v_and_b32 v22, 1, v21\nv_lshl_add_u32 v20, v22, 7, v20\nv_bfe_u32 v22, v21, 1, 6\nv_add_u32 v22, {64*(dl-1)}, v22\ns_mov_b32 s60, {pitch}\nv_mul_lo_u32 v22, v22, s60\nv_add_u32 v20, v20, v22")
    A(f"v_cmp_gt_u32 vcc, s63, v21\nv_cmp_gt_u32 s[60:61], {per}, v2\ns_and_b64 vcc, vcc, s[60:61]\nv_mov_b32 v22, 0x7fffffff\ns_nop 1\nv_cndmask_b32 v20, v22, v20, vcc")
def helper_pf(A, o, lab):
    if o.get("helper", 0): A(f"s_cmp_eq_u32 s57, 0\ns_cbranch_scc1 {lab}\nbuffer_load_dword v31, v20, s[{rW}:{rW+3}], s50 offen\n{lab}:")
def ld_main(A, o, g1):
    N = N1 if g1 else N2; P = "1" if g1 else "2"
    for z in range(R): issue_h(A, f"s_add_u32 m0, s52, {z*32768 + 16384}")
    A("s_waitcnt vmcnt(12)")
    stamp(A, o, 3 if g1 else 6)
    A("s_barrier")
    for n, c in ((0, 8), (1, 12)):
        A(f"s_waitcnt vmcnt({c})\ns_barrier")
        issue_w(A, g1, f"s_add_u32 m0, s52, {n*32768}"); issue_h(A, "s_add_u32 m0, m0, 16384"); helper_pf(A, o, f"L_l_h{P}{n}")
    A("s_mov_b32 s53, 2")
    if o.get("lalign", 6): A(f".p2align {o.get('lalign', 6)}")
    for _ in range(o.get("lpad", 0)): A("s_nop 0")
    A(f"L_l_loop{P}:")
    A(f"s_and_b32 s54, s53, {R-1}\ns_lshl_b32 s54, s54, 15")
    A("s_waitcnt vmcnt(16)\ns_barrier")
    if o.get("series"): A(f"s_memrealtime s[90:91]\ns_memtime s[88:89]\ns_add_u32 m0, s53, {0 if g1 else 32}\ns_waitcnt lgkmcnt(0)\nv_writelane_b32 v26, s90, m0\nv_writelane_b32 v27, s88, m0")
    issue_w(A, g1, "s_add_u32 m0, s52, s54"); issue_h(A, "s_add_u32 m0, m0, 16384"); helper_pf(A, o, f"L_l_h{P}x")
    A(f"s_add_u32 s53, s53, 1\ns_cmp_lt_u32 s53, {N-R}\ns_cbranch_scc1 L_l_loop{P}")

def w2rows(A, dst, srow):
    A(f"v_and_b32 v{dst}, 31, v2\nv_lshlrev_b32 v{dst}, 7, v{dst}\nv_lshrrev_b32 v7, 5, v2\nv_mul_u32_u24 v7, 1792, v7\nv_add_u32 v7, s{srow}, v7\nv_lshl_add_u32 v{dst}, v7, 12, v{dst}")

def touch_flags(A, o, worker):
    if not o.get("ftouch", 1): return
    lab = "L_l_nt" + ("w" if worker else "s")
    rep = o.get("s2r", 2)
    A(f"s_cmp_lg_u32 s3, 6\ns_cbranch_scc1 {lab}")
    A(f"s_lshl_b32 s58, s{sXCD}, 11\ns_add_u32 s58, s58, {S1_OFF}\nv_lshl_add_u32 v21, v2, 7, s58")
    A(f"s_lshl_b32 s58, s2, 10\ns_add_u32 s58, s58, {S3_OFF - 16*128}\nv_lshl_add_u32 v22, v2, 7, s58\nv_cmp_gt_u32 vcc, 16, v2\ns_nop 1\nv_cndmask_b32 v21, v22, v21, vcc")
    A(f"s_lshl_b32 s58, s{sDT2}, 1\ns_add_u32 s58, s58, s{sHK}\ns_lshl_b32 s58, s58, 7\ns_and_b32 s59, s{sST}, {rep-1}\ns_lshl_b32 s59, s59, 11\ns_add_u32 s58, s58, s59\ns_add_u32 s58, s58, {S2_OFF}")
    A(f"v_mov_b32 v22, s58\nv_cmp_gt_u32 vcc, 24, v2\ns_nop 1\nv_cndmask_b32 v21, v22, v21, vcc")
    A(f"s_mov_b64 exec, 0x1ffffff\nbuffer_load_dword v31, v21, s[{rF}:{rF+3}], 0 offen sc1\ns_mov_b64 exec, -1\n{lab}:")

def gen_loader(A, o):
    A("L_loader:")
    if o.get("lprio"): A(f"s_setprio {o['lprio']}")
    A("s_sub_u32 s62, s3, 4\ns_lshl_b32 s52, s62, 12\nv_and_b32 v2, 63, v0")
    A("v_lshrrev_b32 v3, 4, v2\nv_and_b32 v4, 15, v2\nv_lshrrev_b32 v5, 1, v4\nv_and_b32 v4, 1, v4\nv_lshlrev_b32 v4, 4, v4")
    A("s_waitcnt lgkmcnt(0)")
    common_setup(A, o)
    nr = o.get("lnrows", 3)
    aff = o.get("aff", 1); n2 = o.get("n2", 0)
    if aff:
        dup = o.get("dup", 1)
        kk = 18 if dup else 14; npair = 3 if dup else 4
        A(f"v_mul_u32_u24 v13, {(65536 + kk - 1)//kk}, v2\nv_lshrrev_b32 v13, 16, v13\nv_mul_u32_u24 v14, {kk}, v13\nv_sub_u32 v14, v2, v14")
        A(f"s_and_b32 s48, s{sXCD}, 3\ns_lshr_b32 s49, s{sXCD}, 2\ns_mul_i32 s58, s48, 14\ns_add_u32 s59, s48, 1\ns_and_b32 s59, s59, 3\ns_lshl_b32 s59, s59, 1")
        A("v_cmp_gt_u32 vcc, 14, v14\nv_add_u32 v16, s58, v14\nv_subrev_u32 v17, 14, v14\nv_lshrrev_b32 v18, 1, v17\nv_lshlrev_b32 v18, 3, v18\nv_and_b32 v17, 1, v17\nv_add3_u32 v17, v17, v18, s59")
        A("v_cmp_gt_u32 s[60:61], 14, v17\nv_add_u32 v17, s58, v17\nv_cndmask_b32 v16, v17, v16, vcc\ns_or_b64 s[60:61], s[60:61], vcc")
        A("s_xor_b32 s58, s49, 1\nv_mov_b32 v17, s58\nv_mov_b32 v18, s49\nv_cndmask_b32 v17, v17, v18, vcc\nv_lshl_add_u32 v17, v13, 1, v17")
        A(f"v_cmp_gt_u32 vcc, {npair}, v13\ns_and_b64 vcc, vcc, s[60:61]\nv_mul_u32_u24 v17, {P1}, v17\nv_lshl_add_u32 v13, v16, 7, v17\nv_mov_b32 v17, 0x7fffffff\nv_cndmask_b32 v13, v17, v13, vcc")
        A(f"s_mul_i32 s48, s{sN}, {nr}\ns_add_u32 s48, s48, s62\ns_mul_i32 s55, s48, {2*npair*P1}\nv_mov_b32 v25, v13")
    else:
        A(f"s_mul_i32 s48, s2, {nr}\ns_add_u32 s48, s48, s62\ns_mul_i32 s55, s48, {P1}\nv_min_u32 v13, 55, v2\nv_lshlrev_b32 v13, 7, v13")
    def lnpf(r_, lab):
        if nr == 0: return
        if nr < 4: A(f"s_cmp_ge_u32 s62, {nr}\ns_cbranch_scc1 {lab}")
        A(f"buffer_load_dword v31, v13, s[{r_}:{r_+3}], s55 offen\n{lab}:")
    A("s_cmp_ge_u32 s2, 224\ns_cbranch_scc1 L_l_spare")
    srd(A, rW, sW1, 0, S*F*2)
    A("s_barrier")
    lnpf(rW, "L_l_nopf")
    ld_waddr(A, True)
    ld_haddr(A, True)
    A(f"s_lshl_b32 s56, s{sXCD}, 11\ns_add_u32 s56, s56, {S1_OFF}\nv_lshrrev_b32 v13, 2, v2\nv_lshlrev_b32 v13, 7, v13\nv_and_b32 v14, 3, v2\nv_lshl_add_u32 v13, v14, 4, v13")
    touch_flags(A, o, True)
    helper_setup(A, o, True)
    A("s_waitcnt lgkmcnt(0)")
    make_tag(A)
    A("s_barrier\ns_barrier")
    wl = o.get("wlate", 4)
    for z in range(R - wl): issue_w(A, True, f"s_add_u32 m0, s52, {z*32768}")
    A("s_barrier")
    for z in range(R - wl, R): issue_w(A, True, f"s_add_u32 m0, s52, {z*32768}")
    if n2: A(f"s_sub_u32 s48, s3, {8 - n2}\ns_cbranch_scc1 L_l_n2\ns_mul_i32 s49, s{sN}, {n2}\ns_add_u32 s48, s48, s49\ns_add_u32 s48, s48, {32*nr}\ns_mul_i32 s48, s48, {2*npair*P1}\nbuffer_load_dword v31, v25, s[{rW}:{rW+3}], s48 offen\nL_l_n2:")
    stamp(A, o, 1)
    A("s_cmp_lg_u32 s3, 4\ns_cbranch_scc1 L_l_s1seen")
    poll(A, "L_l_p1", f"buffer_load_dwordx4 v[16:19], v13, s[{rF}:{rF+3}], s56 offen sc1", [16, 17, 18, 19])
    stamp(A, o, 2)
    if o.get("stamp"): A("s_sub_u32 s84, 0x200000, s59")
    A("s_cmp_lg_u32 s2, 0\ns_cbranch_scc1 L_l_s1seen")
    A(f"v_mov_b32 v16, s{sTAG}\nv_mov_b32 v17, 0\ns_mov_b64 exec, 1\nbuffer_store_dword v16, v17, s[{rF}:{rF+3}], 0 offen offset:{GEN_OFF} sc1\ns_mov_b64 exec, -1\ns_waitcnt vmcnt(0)")
    A("L_l_s1seen:\ns_barrier")
    ld_main(A, o, True)
    ld_waddr(A, False)
    post = o.get("post", 1)
    if post:
        A(f"s_lshl_b32 s48, s{sN}, 5\ns_lshl_b32 s49, s62, 3\ns_add_u32 s49, s49, s48\ns_lshr_b32 s58, s{sXCD}, 2\ns_and_b32 s59, s{sXCD}, 3\ns_lshl_b32 s59, s59, 10")
        def rowaddr(dst, pp, par):
            A(f"v_and_b32 v7, 1, v{pp}\nv_mul_u32_u24 v7, 1792, v7\nv_and_b32 v{pp}, -2, v{pp}\nv_add3_u32 v7, v7, v{pp}, s{par}\nv_add_u32 v7, 256, v7\nv_lshl_add_u32 v{dst}, v7, 12, v{dst}")
        A("v_and_b32 v13, 7, v2\nv_lshl_add_u32 v13, v13, 7, s59\nv_lshrrev_b32 v6, 3, v2\nv_add_u32 v6, s49, v6")
        rowaddr(13, 6, 58)
        A("s_xor_b32 s58, s58, 1\ns_add_u32 s59, s59, 256\nv_and_b32 v14, 1, v2\nv_lshl_add_u32 v14, v14, 7, s59\nv_lshrrev_b32 v6, 1, v2\nv_add_u32 v6, s48, v6")
        rowaddr(14, 6, 58)
    else:
        A(f"s_lshl_b32 s48, s2, 2\ns_add_u32 s48, s48, s62\ns_add_u32 s48, s48, 896")
        w2rows(A, 13, 48)
    te = o.get("tearly", 2)
    if post and te: A(f"s_cmp_ge_u32 s62, {te}\ns_cselect_b32 s48, 0x7ff00000, 0\nbuffer_load_dword v31, v13, s[{rW}:{rW+3}], s48 offen")
    w2l = o.get("w2late", 0)
    for z, c in enumerate((16, 8, 0, None) if w2l else (16, 12, 8, None)):
        if c is not None: A(f"s_waitcnt vmcnt({c + (1 if post and te else 0)})")
        A("s_barrier")
        if not w2l: issue_w(A, False, f"s_add_u32 m0, s52, {z*32768}")
    if w2l == 1:
        for z in range(R): issue_w(A, False, f"s_add_u32 m0, s52, {z*32768}")
    if not post: A(f"buffer_load_dword v31, v13, s[{rW}:{rW+3}], 0 offen")
    A("s_barrier")
    if w2l == 2:
        for z in range(R): issue_w(A, False, f"s_add_u32 m0, s52, {z*32768}")
    if post:
        A(f"s_cmp_lt_u32 s62, {te}\ns_cbranch_scc1 L_l_tl\nbuffer_load_dword v31, v13, s[{rW}:{rW+3}], 0 offen\nL_l_tl:")
        if o.get("dup2", 1): A(f"s_cmp_lg_u32 s62, 3\ns_cbranch_scc1 L_l_g2\nbuffer_load_dword v31, v14, s[{rW}:{rW+3}], 0 offen")
    A("L_l_g2:")
    ld_haddr(A, False)
    helper_setup(A, o, False)
    srd(A, rS, sOUT, 0, S*D*2)
    A(f"s_lshl_b32 s58, s{sST}, 7\ns_lshr_b32 s59, s62, 1\ns_lshl_b32 s59, s59, 6\ns_add_u32 s58, s58, s59\ns_lshl_b32 s59, s{sHK}, 5\ns_add_u32 s58, s58, s59\ns_lshl_b32 s58, s58, 11")
    A(f"s_lshl_b32 s59, s{sDT2}, 8\ns_add_u32 s58, s58, s59\ns_and_b32 s59, s62, 1\ns_lshl_b32 s59, s59, 7\ns_add_u32 s58, s58, s59\nv_lshl_add_u32 v23, v2, 11, s58")
    A(f"s_lshl_b32 s58, s2, 10\ns_lshl_b32 s59, s62, 8\ns_add_u32 s58, s58, s59\ns_add_u32 s58, s58, {S3_OFF}\nv_mov_b32 v24, s58")
    rep = o.get("s2r", 2)
    A(f"s_lshl_b32 s56, s{sDT2}, 1\ns_add_u32 s56, s56, s{sHK}\ns_lshl_b32 s56, s56, 7\ns_and_b32 s58, s{sST}, {rep-1}\ns_lshl_b32 s58, s58, 11\ns_add_u32 s56, s56, s58\ns_add_u32 s56, s56, {S2_OFF}\nv_lshlrev_b32 v13, 2, v2")
    stamp(A, o, 4)
    A("s_cmp_lg_u32 s3, 4\ns_cbranch_scc1 L_l_s2seen")
    poll(A, "L_l_p2", f"buffer_load_dword v16, v13, s[{rF}:{rF+3}], s56 offen sc1", [16], mask=(1 << 14) - 1)
    stamp(A, o, 5)
    if o.get("stamp"): A("s_sub_u32 s86, 0x200000, s59")
    A("L_l_s2seen:\ns_barrier")
    ld_main(A, o, False)
    x = 0
    if o.get("otouch", 1):
        x = 2
        A(f"s_mov_b64 exec, 0xffffffff\ns_mov_b32 exec_hi, 0\nbuffer_load_dword v31, v23, s[{rS}:{rS+3}], 0 offen sc1\ns_mov_b64 exec, 1\nbuffer_load_dword v31, v24, s[{rF}:{rF+3}], 0 offen sc1\ns_mov_b64 exec, -1")
    for c in (16, 8, 0, None):
        if c is not None: A(f"s_waitcnt vmcnt({c + x})")
        A("s_barrier")
    if o.get("stamp"):
        A("s_cmp_lg_u32 s3, 4\ns_cbranch_scc1 L_l_nost")
        stamp_flush(A, o, range(1, 9), 2)
        A("L_l_nost:")
    if o.get("series"):
        A(f"s_cmp_lg_u32 s3, 7\ns_cbranch_scc1 L_end\ns_add_u32 s92, s{sWS}, {WS_STAMP + 65536}\ns_addc_u32 s93, s{sWS+1}, 0\ns_lshl_b32 s89, s2, 8\nv_lshl_add_u32 v28, v2, 2, s89\nglobal_store_dword v28, v26, s[92:93]\nv_add_u32 v28, 0x10000, v28\nglobal_store_dword v28, v27, s[92:93]")
    A("s_endpgm")
    A("L_l_spare:")
    srd(A, rH, sW1, 0, S*F*2)
    A("s_barrier")
    lnpf(rH, "L_l_nopf2")
    touch_flags(A, o, False)
    ld_waddr(A, False)
    A("s_waitcnt lgkmcnt(0)")
    make_tag(A)
    A("s_barrier\ns_barrier")
    if not o.get("spearly", 0): A("s_barrier")
    A("s_cmp_lg_u32 s3, 4\ns_cbranch_scc1 L_l_spw")
    A("s_sub_u32 s48, s2, 224\ns_lshl_b32 s49, s48, 13\nv_lshl_add_u32 v13, v2, 7, s49")
    w2rows(A, 14, 48)
    r0 = 256 * nr
    def sp_w2(lab, r0_, r1_):
        if r0_ < r1_: A(f"s_mov_b32 s48, {r0_*P2}\n{lab}:\nbuffer_load_dword v31, v14, s[{rW}:{rW+3}], s48 offen\ns_add_u32 s48, s48, {32*P2}\ns_cmp_lt_u32 s48, {r1_*P2}\ns_cbranch_scc1 {lab}")
    if o.get("spare", 1):
        if post: sp_w2("L_l_sp0", 0, 256)
        if aff:
            A(f"s_sub_u32 s48, s{sN}, {28 - 32*nr - 28*n2}\ns_mul_i32 s48, s48, {2*npair*P1}\nL_l_sp1:\nbuffer_load_dword v31, v25, s[{rH}:{rH+3}], s48 offen\ns_add_u32 s48, s48, {8*npair*P1}\ns_cmp_lt_u32 s48, {S*P1}\ns_cbranch_scc1 L_l_sp1")
        else: A(f"s_mov_b32 s48, {r0*P1}\nL_l_sp1:\nbuffer_load_dword v31, v13, s[{rH}:{rH+3}], s48 offen\ns_add_u32 s48, s48, {32*8192}\ns_cmp_lt_u32 s48, {S*P1}\ns_cbranch_scc1 L_l_sp1")
        if post: sp_w2("L_l_sp2", 1152, o.get("spw2", 1792))
        else: sp_w2("L_l_sp2", 0, 896)
    if o.get("stamp"):
        A("s_waitcnt vmcnt(0)"); stamp(A, o, 0); stamp_flush(A, o, [0], 1); A("s_mov_b64 exec, -1")
    A("L_l_spw:")
    for z in range(R): issue_w(A, False, f"s_add_u32 m0, s52, {z*32768}")
    A("s_branch L_l_g2")

HEAD = open(__file__.replace("gen2.py", "head.txt")).read()
def build(o):
    global PAD, HSTR, USTR, H_BYTES, U_BYTES
    PAD = o.get("pad", 8192); HSTR, USTR = 64*8192 + PAD, 112*8192 + PAD; H_BYTES, U_BYTES = 8*HSTR, 8*USTR
    A = Asm()
    A.L.append(HEAD.rstrip("\n"))
    if o.get("tail_e"):
        A(f"; @launch kernel={NAME} grid=(256,1,1) block=(512,1,1) lds={LDS_LN + 256}")
        A("; @launch kernel=empty_kernel grid=(256,1,1) block=(64,1,1) lds=0")
    else: A(f"; @launch grid=(256,1,1) block=(512,1,1) lds={LDS_LN + 256}")
    A('.amdgcn_target "amdgcn-amd-amdhsa--gfx950"\n.text')
    A(f".globl {NAME}\n.p2align 8\n.type {NAME},@function\n{NAME}:")
    A("s_cmp_ge_u32 s2, 256\ns_cbranch_scc1 L_end")
    stamp(A, o, 0)
    A("s_load_dwordx16 s[4:19], s[0:1], 0")
    A("v_readfirstlane_b32 s3, v0\ns_nop 0\ns_lshr_b32 s3, s3, 6\ns_cmp_ge_u32 s3, 4\ns_cbranch_scc1 L_loader")
    gen_ln(A, o)
    A("s_cmp_ge_u32 s2, 224\ns_cbranch_scc1 L_c_g2")
    cons_prologue(A, o, True)
    cons_loop(A, o)
    cons_epi1(A, o)
    A("L_c_g2:")
    cons_prologue(A, o, False)
    A("s_branch L_c_main")
    cons_epi2(A, o)
    gen_loader(A, o)
    A("L_end:\ns_endpgm")
    def desc(name, v):
        A(f".p2align 6\n.amdhsa_kernel {name}\n  .amdhsa_next_free_vgpr {v}\n  .amdhsa_next_free_sgpr 102\n  .amdhsa_accum_offset {v}\n"
          "  .amdhsa_group_segment_fixed_size 0\n  .amdhsa_kernarg_size 64\n  .amdhsa_user_sgpr_count 2\n"
          "  .amdhsa_user_sgpr_kernarg_segment_ptr 1\n  .amdhsa_system_sgpr_workgroup_id_x 1\n.end_amdhsa_kernel")
    if o.get("tail_e"):
        A(".globl empty_kernel\n.p2align 8\n.type empty_kernel,@function\nempty_kernel:")
        A("s_cmp_ge_u32 s2, 256\ns_cbranch_scc1 L_em_end\ns_memrealtime s[70:71]\ns_load_dwordx2 s[18:19], s[0:1], 56")
        stamp_flush(A, o, [0], 3)
        A("L_em_end:\ns_endpgm")
    A('.section .rodata,"a"')
    desc(NAME, 160)
    if o.get("tail_e"): desc("empty_kernel", 32)
    return A.text()

if __name__ == "__main__":
    o = {}
    for kv in sys.argv[2:]:
        k, v = kv.split("=", 1)
        o[k] = int(v) if v.lstrip("-").isdigit() else v
    open(sys.argv[1], "w").write(build(o))
```

```python
import sys, struct, math
S, D, F = 2048, 1024, 3584
WS_H, WS_U, WS_FLG, WS_STAMP = 0, 6 << 20, 20 << 20, 24 << 20
PAD = 8192
HSTR, USTR = 64*8192 + PAD, 112*8192 + PAD
H_BYTES, U_BYTES = 8*HSTR, 8*USTR
GEN_OFF, S1_OFF, S2_OFF, S3_OFF = 0, 65536, 131072, 262144
FLG_BYTES = S3_OFF + 256*1024
R = 4
LDS_LN = R*32768
NAME = "standalone__mixer_token_mlp__prompt_kernel"
N1, N2 = 32, 28
P1, P2 = F*2, S*2

def f32(x): return "0x%08x" % struct.unpack("<I", struct.pack("<f", x))[0]

class Asm:
    def __init__(self): self.L = []
    def __call__(self, s):
        for l in s.split("\n"):
            l = l.strip()
            if l: self.L.append(l if (l.endswith(":") or l.startswith(".") or l.startswith(";")) else "    " + l)
    def text(self): return "\n".join(self.L) + "\n"

sX, sW1, sB1, sW2, sB2, sOUT, sDBG, sWS = 4, 6, 8, 10, 12, 14, 16, 18
sTAG, sXCD, sN, sFT, sDT1, sST, sDT2, sHK = 20, 21, 22, 23, 24, 25, 26, 27
rW, rH, rF, rM, rS = 28, 32, 36, 40, 44
sPH, sN7 = 68, 69
ACC, XW, XH, YW, YH = 32, 96, 112, 128, 144
VWA, VHA = 8, 16

def srd(A, r, base, off, nbytes):
    if off: A(f"s_add_u32 s{r}, s{base}, {off}\ns_addc_u32 s{r+1}, s{base+1}, 0")
    else: A(f"s_mov_b32 s{r}, s{base}\ns_mov_b32 s{r+1}, s{base+1}")
    A(f"s_mov_b32 s{r+2}, {nbytes}\ns_mov_b32 s{r+3}, 0x20000")

def stamp(A, o, i, cyc=None):
    if o.get("stamp"):
        A(f"s_memrealtime s[{70+2*i}:{71+2*i}]")
        if cyc is not None: A(f"s_memtime s[{94+2*cyc}:{95+2*cyc}]")
def stamp_flush(A, o, lst, slot=0):
    if not o.get("stamp"): return
    A("s_waitcnt lgkmcnt(0)")
    A(f"s_add_u32 s92, s{sWS}, {WS_STAMP + slot*16384}\ns_addc_u32 s93, s{sWS+1}, 0\nv_mov_b32 v28, s2\nv_lshlrev_b32 v28, 6, v28\ns_mov_b64 exec, 1")
    for i in lst: A(f"v_mov_b32 v29, s{70+2*i}\nglobal_store_dword v28, v29, s[92:93] offset:{4*i}")

def poll(A, label, load, regs, mask=None, pre=None):
    A(f"s_mov_b32 s59, 0x200000")
    if mask is not None: A(f"s_mov_b64 exec, {mask}")
    if pre is not None: A(f"s_waitcnt vmcnt({pre})\ns_branch {label}_c")
    A(f"{label}:\n{load}\ns_sub_u32 s59, s59, 1\ns_cbranch_scc1 {label}_x\ns_waitcnt vmcnt(0)\n{label}_c:")
    A(f"v_cmp_ne_u32 vcc, s{sTAG}, v{regs[0]}")
    for r_ in regs[1:]: A(f"v_cmp_ne_u32 s[60:61], s{sTAG}, v{r_}\ns_or_b64 vcc, vcc, s[60:61]")
    A(f"s_cmp_lg_u64 vcc, 0\ns_cbranch_scc1 {label}\n{label}_x:")
    if mask is not None: A("s_mov_b64 exec, -1")

def gen_ln(A, o):
    A("s_lshr_b32 s48, s2, 2\ns_and_b32 s49, s2, 3")
    A("s_lshl_b32 s50, s48, 5\ns_lshl_b32 s51, s49, 2\ns_add_u32 s50, s50, s51\ns_lshl_b32 s50, s50, 11")
    A("v_lshlrev_b32 v1, 3, v0")
    rowoff = [(16*(j//4) + j % 4) * 2048 for j in range(8)]
    for j in range(8): A(f"s_add_u32 s{52+j}, s50, {rowoff[j]}")
    A("s_waitcnt lgkmcnt(0)")
    srd(A, rM, sX, 0, S*D*2)
    for j in range(8): A(f"buffer_load_dwordx2 v[{2+2*j}:{3+2*j}], v1, s[{rM}:{rM+3}], s{52+j} offen")
    A("s_barrier")
    A(f"s_add_u32 s50, s{sX}, s50\ns_addc_u32 s51, s{sX+1}, 0")
    for j in range(8): A(f"s_load_dword s{52+j}, s[50:51], {rowoff[j]}")
    common_setup(A, o)
    srd(A, rS, sWS, WS_H, H_BYTES)
    A(f"v_lshrrev_b32 v62, 5, v0\nv_mul_u32_u24 v62, {HSTR}, v62")
    A("v_bfe_u32 v63, v0, 4, 1\nv_lshlrev_b32 v63, 12, v63\nv_add_u32 v62, v62, v63")
    A("v_and_b32 v63, 15, v0\nv_lshlrev_b32 v63, 4, v63\nv_add_u32 v62, v62, v63")
    A("s_lshl_b32 s48, s48, 13\ns_lshl_b32 s49, s49, 8\ns_add_u32 s48, s48, s49")
    if o.get("hpf"):
        A("v_and_b32 v63, 7, v0\nv_cmp_eq_u32 vcc, 0, v63\ns_and_saveexec_b64 s[60:61], vcc")
        for t in range(4): A(f"buffer_load_dword v19, v62, s[{rS}:{rS+3}], s48 offen offset:{t*1024}")
        A("s_mov_b64 exec, s[60:61]")
    A(f"v_lshrrev_b32 v64, 4, v0\nv_lshlrev_b32 v64, 4, v64\nv_add_u32 v64, {LDS_LN}, v64")
    A(f"v_and_b32 v65, 3, v0\nv_lshlrev_b32 v65, 4, v65\nv_bfe_u32 v66, v0, 2, 1\nv_lshlrev_b32 v66, 2, v66\nv_add_u32 v65, v65, v66\nv_add_u32 v65, {LDS_LN}, v65")
    A("s_waitcnt lgkmcnt(0)")
    make_tag(A)
    for j in range(8): A(f"s_lshl_b32 s{52+j}, s{52+j}, 16")
    for j in range(8):
        A(f"s_waitcnt vmcnt({7-j + (4 if o.get('hpf') else 0)})")
        for c in range(4):
            src = 2 + 2*j + c//2; d = 70 + 4*j + c
            A(f"v_lshlrev_b32 v{d}, 16, v{src}" if c % 2 == 0 else f"v_and_b32 v{d}, 0xffff0000, v{src}")
        for c in range(4): A(f"v_subrev_f32 v{70+4*j+c}, s{52+j}, v{70+4*j+c}")
        b = 70 + 4*j
        A(f"v_add_f32 v{20+j}, v{b}, v{b+1}\nv_mul_f32 v{28+j}, v{b}, v{b}")
        A(f"v_add_f32 v{20+j}, v{20+j}, v{b+2}\nv_fmac_f32 v{28+j}, v{b+1}, v{b+1}")
        A(f"v_add_f32 v{20+j}, v{20+j}, v{b+3}\nv_fmac_f32 v{28+j}, v{b+2}, v{b+2}\nv_fmac_f32 v{28+j}, v{b+3}, v{b+3}")
    stamp(A, o, 1)
    A("s_nop 1")
    for p in range(8): A(f"v_permlane32_swap_b32 v{20+2*p}, v{21+2*p}")
    for p in range(8): A(f"v_add_f32 v{20+2*p}, v{20+2*p}, v{21+2*p}")
    A("s_nop 1")
    for q in range(4): A(f"v_permlane16_swap_b32 v{20+4*q}, v{22+4*q}")
    for q in range(4): A(f"v_add_f32 v{40+q}, v{20+4*q}, v{22+4*q}")
    for sh in (8, 4, 2, 1):
        A("s_nop 1")
        for q in range(4): A(f"v_add_f32_dpp v{40+q}, v{40+q}, v{40+q} row_ror:{sh} row_mask:0xf bank_mask:0xf")
    A("ds_write_b128 v64, v[40:43]")
    A("s_waitcnt lgkmcnt(0)\ns_barrier")
    for w in range(4): A(f"ds_read2_b32 v[{44+2*w}:{45+2*w}], v65 offset0:{16*w} offset1:{16*w+2}")
    A("s_waitcnt lgkmcnt(0)")
    A("v_add_f32 v44, v44, v46\nv_add_f32 v45, v45, v47\nv_add_f32 v48, v48, v50\nv_add_f32 v49, v49, v51\nv_add_f32 v44, v44, v48\nv_add_f32 v45, v45, v49")
    A(f"v_mul_f32 v44, {f32(1.0/D)}, v44\nv_mul_f32 v45, {f32(1.0/D)}, v45")
    A("v_fma_f32 v45, -v44, v44, v45\nv_max_f32 v45, 0, v45")
    A(f"v_add_f32 v45, {f32(1e-5)}, v45\nv_rsq_f32 v45, v45\ns_nop 0\nv_mul_f32 v44, v44, v45\nv_sub_f32 v44, 0, v44")
    A("s_nop 1")
    gmap = [0, 2, 1, 3]
    for e in range(8):
        j = gmap[e % 4] + 4*(e // 4)
        A(f"v_readlane_b32 s{52+j}, v45, {e}\nv_readlane_b32 s{60+j}, v44, {e}")
    A("s_nop 1")
    for j in range(8): A(f"v_mov_b32 v{20+j}, s{60+j}")
    for t in range(4):
        for j in range(8):
            d = 70 + 4*j + t
            A(f"v_fma_f32 v{d}, v{d}, s{52+j}, v{20+j}")
        for jj in range(4):
            A(f"v_cvt_pk_bf16_f32 v{44+4*t+jj}, v{70+4*(2*jj)+t}, v{70+4*(2*jj+1)+t}")
        A(f"buffer_store_dwordx4 v[{44+4*t}:{47+4*t}], v62, s[{rS}:{rS+3}], s48 offen offset:{t*1024} {o.get('hst', 'sc1').replace('_', ' ')}")
    A(f"s_lshr_b32 s48, s2, {S1L}\ns_lshl_b32 s48, s48, 7\ns_and_b32 s49, s2, {(1 << S1L) - 1}\ns_lshl_b32 s49, s49, 2\ns_add_u32 s48, s48, s49\ns_lshl_b32 s49, s3, {16 - S1L}\ns_add_u32 s48, s48, s49\ns_add_u32 s48, s48, {S1_OFF}")
    A(f"v_and_b32 v2, 63, v0\nv_lshlrev_b32 v3, {15 - S1L}, v2\nv_mov_b32 v4, s{sTAG}")
    if o.get("wb", 0): A("s_barrier")
    A("s_waitcnt vmcnt(0)")
    A(f"s_mov_b64 exec, 3\nbuffer_store_dword v4, v3, s[{rF}:{rF+3}], s48 offen sc1\ns_mov_b64 exec, -1")
    stamp(A, o, 2)
    if o.get("b2", 1): A("s_barrier")
    else: A("s_cmp_lt_u32 s2, 224\ns_cbranch_scc1 L_c_nob2\ns_barrier\nL_c_nob2:")

def common_setup(A, o):
    A(f"s_add_u32 s{rF}, s{sWS}, {WS_FLG}\ns_addc_u32 s{rF+1}, s{sWS+1}, 0\ns_mov_b32 s{rF+2}, {FLG_BYTES}\ns_mov_b32 s{rF+3}, 0x20000")
    A(f"s_load_dword s{sTAG}, s[{rF}:{rF+1}], {GEN_OFF}")
    A(f"s_and_b32 s{sXCD}, s2, 7\ns_lshr_b32 s{sN}, s2, 3")
    A(f"s_mul_i32 s66, s{sN}, 37\ns_lshr_b32 s66, s66, 8\ns_mul_i32 s67, s66, 7\ns_sub_u32 s{sN7}, s{sN}, s67")
    A(f"s_and_b32 s67, s{sXCD}, 3\ns_mul_i32 s{sFT}, s67, 7\ns_add_u32 s{sFT}, s{sFT}, s{sN7}")
    A(f"s_and_b32 s{sDT2}, s{sXCD}, 4\ns_add_u32 s{sDT1}, s{sDT2}, s66")
    A(f"s_and_b32 s{sHK}, s{sN}, 1\ns_lshl_b32 s{sST}, s67, 2\ns_bfe_u32 s66, s{sN}, 0x20001\ns_add_u32 s{sST}, s{sST}, s66")
    A(f"s_lshr_b32 s66, s{sN}, 3\ns_add_u32 s{sDT2}, s{sDT2}, s66")
def make_tag(A):
    A(f"s_mul_i32 s{sTAG}, s{sTAG}, 0x9e3779b1\ns_add_u32 s{sTAG}, s{sTAG}, 0x7f4a7c15")

def substep(A, o, cur, nxt, slot, ks, barrier):
    cw, ch = cur; nw, nh = nxt
    hi = slot >= 2
    base = (slot % 2) * 32768
    rd = []
    def wread(fb):
        for r_ in range(2):
            rd.append(f"ds_read_b64_tr_b16 v[{nw+4*fb+2*r_}:{nw+4*fb+2*r_+1}], v{VWA+4*hi+fb} offset:{base + ks*8192 + r_*4096}")
    def hread(t):
        rd.append(f"ds_read_b128 v[{nh+4*t}:{nh+4*t+3}], v{VHA+hi} offset:{base + 16384 + ks*8192 + t*1024}")
    wread(0)
    for t in range(4): hread(t)
    for fb in range(1, 4): wread(fb)
    A("s_waitcnt lgkmcnt(0)")
    if barrier: A("s_barrier")
    k = 0
    for m in range(16):
        fb, t = m // 4, m % 4
        if o.get("snake", 1) and fb % 2: t = 3 - t
        a = ACC + 16*fb + 4*t
        A(f"v_mfma_f32_16x16x32_bf16 v[{a}:{a+3}], v[{cw+4*fb}:{cw+4*fb+3}], v[{ch+4*t}:{ch+4*t+3}], v[{a}:{a+3}]")
        for _ in range(o.get("rdper", 1)):
            if k < len(rd): A(rd[k]); k += 1

def cons_prologue(A, o, g1):
    tile = sFT if g1 else sST
    srd(A, rM, sB1 if g1 else sB2, 0, (F if g1 else S)*2)
    A("s_and_b32 s62, s3, 1\ns_lshr_b32 s63, s3, 1")
    A("v_lshrrev_b32 v3, 4, v2\nv_and_b32 v4, 15, v2")
    A(f"s_lshl_b32 s50, s{tile}, 8\ns_lshl_b32 s51, s63, 7\ns_add_u32 s50, s50, s51")
    if not g1: A(f"s_lshl_b32 s51, s{sHK}, 6\ns_add_u32 s50, s50, s51")
    A("v_lshlrev_b32 v5, 3, v3")
    nb = 4 if g1 else 2
    for fb in range(nb): A(f"buffer_load_dwordx2 v[{20+2*fb}:{21+2*fb}], v5, s[{rM}:{rM+3}], s50 offen offset:{fb*32}")
    if not g1:
        A(f"s_lshl_b32 s54, s2, 10\ns_lshl_b32 s55, s3, 8\ns_add_u32 s54, s54, s55\ns_add_u32 s54, s54, {S3_OFF}\ns_xor_b32 s55, s54, 0x2000")
        A(f"s_getreg_b32 s64, hwreg(HW_REG_XCC_ID, 0, 4)\ns_add_u32 s64, s64, 1\ns_add_u32 s64, s64, s{sTAG}\nv_mov_b32 v6, s64\nv_mov_b32 v7, 128")
        A(f"s_mov_b64 exec, 1\nbuffer_store_dword v6, v7, s[{rF}:{rF+3}], s54 offen sc1\ns_mov_b64 exec, -1")
    A("v_lshrrev_b32 v6, 2, v4\nv_lshl_add_u32 v7, v3, 2, v6")
    A("v_and_b32 v18, 7, v7\nv_lshlrev_b32 v7, 8, v7\nv_and_b32 v19, 3, v4\nv_lshl_add_u32 v7, v19, 3, v7")
    A("s_lshl_b32 s50, s63, 2")
    if not g1: A(f"s_lshl_b32 s51, s{sHK}, 1\ns_xor_b32 s50, s50, s51")
    for fb in range(4):
        A(f"s_xor_b32 s51, s50, {fb}\nv_xor_b32 v19, s51, v18\nv_lshl_add_u32 v{VWA+fb}, v19, 5, v7\nv_add_u32 v{VWA+4+fb}, 0x10000, v{VWA+fb}")
    A(f"s_lshl_b32 s50, s62, 12\nv_lshl_add_u32 v{VHA}, v2, 4, s50\nv_add_u32 v{VHA+1}, 0x10000, v{VHA}")
    A(f"s_waitcnt vmcnt({0 if g1 else 1})")
    for fb in range(4):
        for r_ in range(4):
            a = ACC + 16*fb + r_
            if fb < nb:
                src = 20 + 2*fb + r_//2
                A(f"v_lshlrev_b32 v{a}, 16, v{src}" if r_ % 2 == 0 else f"v_and_b32 v{a}, 0xffff0000, v{src}")
            else: A(f"v_mov_b32 v{a}, 0")
            for t in range(1, 4): A(f"v_mov_b32 v{a+4*t}, v{a}")
    A(f"s_mov_b32 s{sPH}, {1 if g1 else 2}\ns_mov_b32 s65, {(N1 if g1 else N2)//R}")

def cons_loop(A, o):
    A("L_c_main:")
    A("s_barrier")
    A("s_barrier")
    A(f"v_mov_b32 v5, 128\ns_cmp_eq_u32 s{sPH}, 1\ns_cbranch_scc1 L_c_noid")
    A(f"buffer_load_dword v30, v5, s[{rF}:{rF+3}], s55 offen sc1")
    stamp(A, o, 7, 2)
    A("s_branch L_c_go\nL_c_noid:")
    stamp(A, o, 3, 0)
    A("L_c_go:")
    X, Y = (XW, XH), (YW, YH)
    for fb in range(4):
        for r_ in range(2): A(f"ds_read_b64_tr_b16 v[{XW+4*fb+2*r_}:{XW+4*fb+2*r_+1}], v{VWA+fb} offset:{r_*4096}")
    for t in range(4): A(f"ds_read_b128 v[{XH+4*t}:{XH+4*t+3}], v{VHA} offset:{16384+t*1024}")
    if o.get("cprio"): A(f"s_setprio {o['cprio']}")
    A(".p2align 6")
    for _ in range(o.get("cpad", 0)): A("s_nop 0")
    A("L_c_loop:")
    for r_ in range(R):
        substep(A, o, X, Y, r_, 1, False)
        substep(A, o, Y, X, (r_+1) % R, 0, True)
    A("s_sub_u32 s65, s65, 1\ns_cmp_lg_u32 s65, 0\ns_cbranch_scc1 L_c_loop")
    A(f"s_waitcnt lgkmcnt(0)\ns_cmp_eq_u32 s{sPH}, 2\ns_cbranch_scc1 L_c_epi2")

def cons_epi1(A, o):
    stamp(A, o, 4, 1)
    srd(A, rS, sWS, WS_U, U_BYTES)
    c0 = -2.0*math.sqrt(2.0/math.pi)*math.log2(math.e); c1 = c0*0.044715
    A(f"s_mov_b32 s52, {f32(c1)}\nv_mov_b32 v3, {f32(c0)}")
    A(f"s_lshl_b32 s48, s{sFT}, 2\ns_lshl_b32 s49, s63, 1\ns_add_u32 s48, s48, s49\ns_lshl_b32 s48, s48, 13\ns_mul_i32 s49, s{sDT1}, {USTR}\ns_add_u32 s48, s48, s49")
    A("s_lshl_b32 s49, s62, 12\ns_add_u32 s48, s48, s49\ns_add_u32 s49, s48, 8192\nv_lshlrev_b32 v4, 4, v2")
    T = XW
    pk = o.get("pk", 1)
    if pk: A("s_mov_b32 s53, s52\nv_mov_b32 v6, v3\nv_mov_b32 v7, v3\nv_mov_b32 v8, 1.0\nv_mov_b32 v9, 1.0")
    for kbl in range(2):
        for t in range(4):
            regs = [ACC + 16*(2*kbl + h) + 4*t + r_ for h in range(2) for r_ in range(4)]
            tb = T + ((kbl*4 + t) % 2) * 16
            pr = lambda r_: f"v[{r_}:{r_+1}]"
            if pk:
                for e in range(0, 8, 2): A(f"v_pk_mul_f32 {pr(tb+e)}, {pr(regs[e])}, {pr(regs[e])}")
                for e in range(0, 8, 2): A(f"v_pk_fma_f32 {pr(tb+e)}, {pr(tb+e)}, s[52:53], v[6:7]")
                for e in range(0, 8, 2): A(f"v_pk_mul_f32 {pr(tb+e)}, {pr(tb+e)}, {pr(regs[e])}")
                for e in range(8): A(f"v_exp_f32 v{tb+e}, v{tb+e}")
                for e in range(0, 8, 2): A(f"v_pk_add_f32 {pr(tb+e)}, {pr(tb+e)}, v[8:9]")
                for e in range(8): A(f"v_rcp_f32 v{tb+e}, v{tb+e}")
                for e in range(0, 8, 2): A(f"v_pk_mul_f32 {pr(tb+e)}, {pr(tb+e)}, {pr(regs[e])}")
            else:
                for e, a in enumerate(regs): A(f"v_mul_f32 v{tb+e}, v{a}, v{a}")
                for e, a in enumerate(regs): A(f"v_fma_f32 v{tb+e}, v{tb+e}, s52, v3")
                for e, a in enumerate(regs): A(f"v_mul_f32 v{tb+e}, v{tb+e}, v{a}")
                for e, a in enumerate(regs): A(f"v_exp_f32 v{tb+e}, v{tb+e}")
                for e, a in enumerate(regs): A(f"v_add_f32 v{tb+e}, 1.0, v{tb+e}")
                for e, a in enumerate(regs): A(f"v_rcp_f32 v{tb+e}, v{tb+e}")
                for e, a in enumerate(regs): A(f"v_mul_f32 v{tb+e}, v{tb+e}, v{a}")
            for e in range(4): A(f"v_cvt_pk_bf16_f32 v{tb+8+e}, v{tb+2*e}, v{tb+2*e+1}")
            A(f"buffer_store_dwordx4 v[{tb+8}:{tb+11}], v4, s[{rS}:{rS+3}], s{48+kbl} offen offset:{t*1024} sc1")
    rep = S2R
    A(f"s_cmp_ge_u32 s{sFT}, 14\ns_cselect_b32 s48, 1, 0\ns_cselect_b32 s49, 14, 0\ns_sub_u32 s49, s{sFT}, s49\ns_lshl_b32 s49, s49, {S2S}")
    A(f"s_lshl_b32 s50, s{sDT1}, 1\ns_add_u32 s48, s48, s50\ns_mul_i32 s48, s48, {S2R*2048}\ns_add_u32 s48, s48, s49\ns_add_u32 s48, s48, {S2_OFF}")
    A(f"v_lshlrev_b32 v3, 11, v2\nv_mov_b32 v4, s{sTAG}")
    stamp(A, o, 5)
    A("s_waitcnt vmcnt(0)\ns_barrier")
    A("s_cmp_lg_u32 s3, 0\ns_cbranch_scc1 L_c_g2")
    A(f"s_mov_b64 exec, {(1 << rep) - 1}\nbuffer_store_dword v4, v3, s[{rF}:{rF+3}], s48 offen sc1\ns_mov_b64 exec, -1")
    stamp(A, o, 6)

def cons_epi2(A, o):
    A("L_c_epi2:")
    stamp(A, o, 8, 3)
    srd(A, rS, sOUT, 0, S*D*2)
    A("v_lshrrev_b32 v3, 4, v2\nv_and_b32 v7, 15, v2\nv_lshlrev_b32 v3, 13, v3\nv_lshl_add_u32 v7, v7, 3, v3")
    A(f"s_lshl_b32 s56, s{sST}, 7\ns_lshl_b32 s57, s63, 6\ns_add_u32 s56, s56, s57\ns_lshl_b32 s57, s{sHK}, 5\ns_add_u32 s56, s56, s57\ns_lshl_b32 s56, s56, 11")
    A(f"s_lshl_b32 s57, s{sDT2}, 8\ns_add_u32 s56, s56, s57\ns_lshl_b32 s57, s62, 7\ns_add_u32 s56, s56, s57")
    A("s_xor_b32 s52, s56, 0x10000\nv_add_u32 v8, 4096, v7\ns_add_u32 s53, s52, 32768\ns_add_u32 s57, s56, 32768")
    A(f"v_mov_b32 v5, 0\nv_mov_b32 v6, s{sTAG}")
    def oaddr(sb, r_, base): return f"v{7 + r_//2}, s[{rS}:{rS+3}], s{base + sb} offen offset:{(r_%2)*2048}"
    for sb in range(2):
        for r_ in range(4):
            a = ACC + 32 + 16*sb + r_; d = YW + 8*sb + 2*r_
            A(f"v_cvt_pk_bf16_f32 v{d}, v{a}, v{a+4}\nv_cvt_pk_bf16_f32 v{d+1}, v{a+8}, v{a+12}")
    def send(flag):
        for sb in range(2):
            for r_ in range(4):
                d = YW + 8*sb + 2*r_
                A(f"buffer_store_dwordx2 v[{d}:{d+1}], {oaddr(sb, r_, 52)} {flag}")
        A("s_waitcnt vmcnt(0)")
        A(f"s_mov_b64 exec, 1\nbuffer_store_dword v6, v5, s[{rF}:{rF+3}], s54 offen {flag}")
    A("s_waitcnt vmcnt(0)\nv_readfirstlane_b32 s61, v30\ns_cmp_eq_u32 s61, s64\ns_cbranch_scc0 L_c_far")
    send("")
    A("s_branch L_c_sent\nL_c_far:")
    send("sc1")
    A("L_c_sent:")
    poll(A, "L_c_p3", f"buffer_load_dword v18, v5, s[{rF}:{rF+3}], s55 offen sc1", [18], mask=1)
    stamp(A, o, 9)
    for sb in range(2):
        for r_ in range(4):
            d = XW + 8*sb + 2*r_
            A(f"buffer_load_dwordx2 v[{d}:{d+1}], {oaddr(sb, r_, 56)} sc1")
    for sb in range(2):
        for r_ in range(4):
            q = 4*sb + r_
            A("s_waitcnt vmcnt(7)")
            a = ACC + 16*sb + r_; d = XW + 8*sb + 2*r_; t_ = XW + 16 + 4*(q % 2)
            A(f"v_lshlrev_b32 v{t_}, 16, v{d}\nv_and_b32 v{t_+1}, 0xffff0000, v{d}\nv_lshlrev_b32 v{t_+2}, 16, v{d+1}\nv_and_b32 v{t_+3}, 0xffff0000, v{d+1}")
            for t in range(4): A(f"v_add_f32 v{a+4*t}, v{a+4*t}, v{t_+t}")
            A(f"v_cvt_pk_bf16_f32 v{d}, v{a}, v{a+4}\nv_cvt_pk_bf16_f32 v{d+1}, v{a+8}, v{a+12}")
            A(f"buffer_store_dwordx2 v[{d}:{d+1}], {oaddr(sb, r_, 56)} {o.get('fin', '')}")
    if o.get("stamp"):
        A("s_cmp_lg_u32 s3, 0\ns_cbranch_scc1 L_end\ns_waitcnt vmcnt(0)")
        stamp(A, o, 10)
        stamp_flush(A, o, range(11))
        A("s_sub_u32 s94, s96, s94\nv_mov_b32 v29, s94\nglobal_store_dword v28, v29, s[92:93] offset:56")
        A("s_sub_u32 s98, s100, s98\nv_mov_b32 v29, s98\nglobal_store_dword v28, v29, s[92:93] offset:60")
        if o.get("spinend"):
            A("s_cmp_lg_u32 s2, 0\ns_cbranch_scc1 L_end\ns_add_u32 s70, s70, 20000\ns_mov_b32 s59, 200000")
            A("L_sp:\ns_sub_u32 s59, s59, 1\ns_cbranch_scc1 L_end\ns_memrealtime s[72:73]\ns_waitcnt lgkmcnt(0)\ns_sub_u32 s72, s72, s70\ns_cmp_lt_i32 s72, 0\ns_cbranch_scc1 L_sp")
    A("s_endpgm")

def ld_waddr(A, g1):
    pitch = P1 if g1 else P2
    srd(A, rW, sW1 if g1 else sW2, 0, S*F*2)
    A(f"s_mov_b32 s48, {pitch}\ns_lshl_b32 s49, s62, 4\ns_lshl_b32 s50, s{sFT if g1 else sST}, 8")
    for j in range(4):
        A(f"v_add_u32 v6, {4*(j%2)}, v3\nv_xor_b32 v6, v6, v5\nv_lshl_add_u32 v6, v6, 5, v4")
        A(f"s_add_u32 s51, s49, {4*j}\nv_add_u32 v7, s51, v3\nv_mul_lo_u32 v7, v7, s48\nv_add3_u32 v{8+j}, v7, v6, s50")
        if j: A(f"v_subrev_u32 v{8+j}, {j*1024}, v{8+j}")
    A("s_mov_b32 s50, 0" if g1 else f"s_mul_i32 s50, s{sHK}, {N2*64*P2}")
    if GLOB: A(f"s_add_u32 s64, s{sW1 if g1 else sW2}, s50\ns_addc_u32 s65, s{(sW1 if g1 else sW2)+1}, 0")
def ld_haddr(A, g1):
    srd(A, rH, sWS, WS_H if g1 else WS_U, H_BYTES if g1 else U_BYTES)
    A(f"s_mul_i32 s48, s{sDT1 if g1 else sDT2}, {HSTR if g1 else USTR}\ns_add_u32 s48, s48, s52\nv_lshl_add_u32 v12, v2, 4, s48")
    A("s_mov_b32 s51, 0" if g1 else f"s_mul_i32 s51, s{sHK}, {N2*16384}")
    if GLOB: A(f"s_add_u32 s66, s{rH}, s51\ns_addc_u32 s67, s{rH+1}, 0")
def issue_w(A, g1, m0):
    A(m0 + "\ns_nop 0")
    if GLOB:
        for j in range(4): A(f"global_load_lds_dwordx4 v{8+j}, s[64:65] offset:{j*1024}")
        A(f"s_add_u32 s64, s64, {64*(P1 if g1 else P2)}\ns_addc_u32 s65, s65, 0")
        return
    for j in range(4): A(f"buffer_load_dwordx4 v{8+j}, s[{rW}:{rW+3}], s50 offen offset:{j*1024} lds")
    A(f"s_add_u32 s50, s50, {64*(P1 if g1 else P2)}")
def issue_h(A, m0, flag="sc1"):
    A(m0 + "\ns_nop 0")
    if GLOB:
        for j in range(4): A(f"global_load_lds_dwordx4 v12, s[66:67] offset:{j*1024} {flag}")
        A("s_add_u32 s66, s66, 16384\ns_addc_u32 s67, s67, 0")
        return
    for j in range(4): A(f"buffer_load_dwordx4 v12, s[{rH}:{rH+3}], s51 offen offset:{j*1024} {flag} lds")
    A("s_add_u32 s51, s51, 16384")
def ld_main(A, o, g1, wdone=4, pre_bar=None, post_bar=None):
    N = N1 if g1 else N2; P = "1" if g1 else "2"
    cnt = []
    for z in range(R):
        if z >= wdone: issue_w(A, g1, f"s_add_u32 m0, s52, {z*32768}")
        issue_h(A, f"s_add_u32 m0, s52, {z*32768 + 16384}")
        cnt.append(8 if z >= wdone else 4)
    A(f"s_waitcnt vmcnt({sum(cnt[1:])})")
    stamp(A, o, 3 if g1 else 6)
    A("s_barrier")
    for n, c in ((0, sum(cnt[2:])), (1, cnt[3] + 8)):
        A(f"s_waitcnt vmcnt({c})\ns_barrier")
        issue_w(A, g1, f"s_add_u32 m0, s52, {n*32768}"); issue_h(A, "s_add_u32 m0, m0, 16384")
    A("s_mov_b32 s53, 2")
    if o.get("lalign", 6): A(f".p2align {o.get('lalign', 6)}")
    for _ in range(o.get("lpad", 0)): A("s_nop 0")
    A(f"L_l_loop{P}:")
    A(f"s_and_b32 s54, s53, {R-1}\ns_lshl_b32 s54, s54, 15")
    if o.get("wrapw"):
        A(f"s_and_b32 s58, s53, 3\ns_mul_i32 s58, s58, {64*(P1 if g1 else P2)}\ns_add_u32 s64, s{sW1 if g1 else sW2}, s58\ns_addc_u32 s65, s{(sW1 if g1 else sW2)+1}, 0")
    if o.get("wraph"):
        A(f"s_add_u32 s66, s{rH}, s54\ns_addc_u32 s67, s{rH+1}, 0")
    A("s_waitcnt vmcnt(16)")
    if pre_bar: pre_bar()
    A("s_barrier")
    if post_bar: post_bar()
    if o.get("series"): A(f"s_memrealtime s[90:91]\ns_memtime s[88:89]\ns_add_u32 m0, s53, {0 if g1 else 32}\ns_waitcnt lgkmcnt(0)\nv_writelane_b32 v26, s90, m0\nv_writelane_b32 v27, s88, m0")
    issue_w(A, g1, "s_add_u32 m0, s52, s54"); issue_h(A, "s_add_u32 m0, m0, 16384")
    A(f"s_add_u32 s53, s53, 1\ns_cmp_lt_u32 s53, {N-R}\ns_cbranch_scc1 L_l_loop{P}")

def w2rows(A, dst, srow):
    A(f"v_and_b32 v{dst}, 31, v2\nv_lshlrev_b32 v{dst}, 7, v{dst}\nv_lshrrev_b32 v7, 5, v2\nv_mul_u32_u24 v7, 1792, v7\nv_add_u32 v7, s{srow}, v7\nv_lshl_add_u32 v{dst}, v7, 12, v{dst}")

def s2line(A, dst, tmp):
    A(f"s_lshl_b32 s{dst}, s{sDT2}, 1\ns_add_u32 s{dst}, s{dst}, s{sHK}\ns_mul_i32 s{dst}, s{dst}, {S2R}\ns_and_b32 s{tmp}, s{sST}, {S2R-1}\ns_add_u32 s{dst}, s{dst}, s{tmp}\ns_lshl_b32 s{dst}, s{dst}, 11\ns_add_u32 s{dst}, s{dst}, {S2_OFF}")
def touch_flags(A, o, worker):
    if not o.get("ftouch", 1): return
    lab = "L_l_nt" + ("w" if worker else "s")
    A(f"s_cmp_lg_u32 s3, 7\ns_cbranch_scc1 {lab}")
    if worker: A(f"buffer_load_dword v31, v13, s[{rF}:{rF+3}], s56 offen sc1")
    s2line(A, 58, 59)
    A(f"v_lshl_add_u32 v21, v2, 7, s58")
    A(f"s_lshl_b32 s58, s2, 10\ns_add_u32 s58, s58, {S3_OFF - 16*128}\nv_lshl_add_u32 v22, v2, 7, s58\nv_cmp_gt_u32 vcc, 16, v2\ns_nop 1\nv_cndmask_b32 v21, v22, v21, vcc")
    A(f"s_mov_b64 exec, 0xffffff\nbuffer_load_dword v31, v21, s[{rF}:{rF+3}], 0 offen sc1\ns_mov_b64 exec, -1\n{lab}:")

def gen_loader(A, o):
    A("L_loader:")
    if o.get("lprio"): A(f"s_setprio {o['lprio']}")
    A("s_sub_u32 s62, s3, 4\ns_lshl_b32 s52, s62, 12\nv_and_b32 v2, 63, v0")
    A("v_lshrrev_b32 v3, 4, v2\nv_and_b32 v4, 15, v2\nv_lshrrev_b32 v5, 1, v4\nv_and_b32 v4, 1, v4\nv_lshlrev_b32 v4, 4, v4")
    A("s_waitcnt lgkmcnt(0)")
    common_setup(A, o)
    nr = o.get("lnrows", 3)
    aff = o.get("aff", 1); n2 = o.get("n2", 0)
    if aff:
        dup = o.get("dup", 1)
        kk = 18 if dup else 14; npair = 3 if dup else 4
        A(f"v_mul_u32_u24 v13, {(65536 + kk - 1)//kk}, v2\nv_lshrrev_b32 v13, 16, v13\nv_mul_u32_u24 v14, {kk}, v13\nv_sub_u32 v14, v2, v14")
        A(f"s_and_b32 s48, s{sXCD}, 3\ns_lshr_b32 s49, s{sXCD}, 2\ns_mul_i32 s58, s48, 14\ns_add_u32 s59, s48, 1\ns_and_b32 s59, s59, 3\ns_lshl_b32 s59, s59, 1")
        A("v_cmp_gt_u32 vcc, 14, v14\nv_add_u32 v16, s58, v14\nv_subrev_u32 v17, 14, v14\nv_lshrrev_b32 v18, 1, v17\nv_lshlrev_b32 v18, 3, v18\nv_and_b32 v17, 1, v17\nv_add3_u32 v17, v17, v18, s59")
        A("v_cmp_gt_u32 s[60:61], 14, v17\nv_add_u32 v17, s58, v17\nv_cndmask_b32 v16, v17, v16, vcc\ns_or_b64 s[60:61], s[60:61], vcc")
        A("s_xor_b32 s58, s49, 1\nv_mov_b32 v17, s58\nv_mov_b32 v18, s49\nv_cndmask_b32 v17, v17, v18, vcc\nv_lshl_add_u32 v17, v13, 1, v17")
        A(f"v_cmp_gt_u32 vcc, {npair}, v13\ns_and_b64 vcc, vcc, s[60:61]\nv_mul_u32_u24 v17, {P1}, v17\nv_lshl_add_u32 v13, v16, 7, v17\nv_mov_b32 v17, 0x7fffffff\nv_cndmask_b32 v13, v17, v13, vcc")
        skip = o.get("skip", 0)
        A(f"s_sub_u32 s48, s{sN}, {skip}\ns_cselect_b32 s49, 0x7ff00000, 0\ns_mul_i32 s48, s48, {nr}\ns_add_u32 s48, s48, s62\ns_mul_i32 s55, s48, {2*npair*P1}\nv_mov_b32 v25, v13")
        if skip: A("s_cmp_lg_u32 s49, 0\ns_cselect_b32 s55, s49, s55")
    else:
        A(f"s_mul_i32 s48, s2, {nr}\ns_add_u32 s48, s48, s62\ns_mul_i32 s55, s48, {P1}\nv_min_u32 v13, 55, v2\nv_lshlrev_b32 v13, 7, v13")
    def lnpf(r_, lab):
        if nr == 0: return
        if nr < 4: A(f"s_cmp_ge_u32 s62, {nr}\ns_cbranch_scc1 {lab}")
        A(f"buffer_load_dword v31, v13, s[{r_}:{r_+3}], s55 offen\n{lab}:")
    A("s_cmp_ge_u32 s2, 224\ns_cbranch_scc1 L_l_spare")
    srd(A, rW, sW1, 0, S*F*2)
    A("s_barrier")
    lnpf(rW, "L_l_nopf")
    ld_waddr(A, True)
    ld_haddr(A, True)
    A(f"s_and_b32 s56, s{sDT1}, 6\ns_and_b32 s59, s{sXCD}, 1\ns_add_u32 s56, s56, s59\ns_lshl_b32 s56, s56, {15 - S1L}\ns_add_u32 s56, s56, {S1_OFF}\nv_lshrrev_b32 v13, {S1L - 2}, v2\nv_lshlrev_b32 v13, 7, v13\nv_and_b32 v14, {(1 << (S1L - 2)) - 1}, v2\nv_lshl_add_u32 v13, v14, 4, v13")
    touch_flags(A, o, True)
    A("s_waitcnt lgkmcnt(0)")
    make_tag(A)
    wa, wb, wc = o.get("wa", 0), o.get("wb", 0), o.get("wc", 4)
    prog = o.get("prog", 8)
    iw = lambda z: issue_w(A, True, f"s_add_u32 m0, s52, {z*32768}")
    A("s_barrier")
    for z in range(wa): iw(z)
    if wb: A("s_barrier")
    for z in range(wa, wa + wb): iw(z)
    if o.get("b2", 1): A("s_barrier")
    for z in range(wa + wb, wa + wb + wc): iw(z)
    p1 = f"buffer_load_dwordx4 v[16:19], v13, s[{rF}:{rF+3}], s56 offen sc1"
    def gen_store(lab):
        A(f"s_cmp_lg_u32 s2, 0\ns_cbranch_scc1 {lab}")
        A(f"v_mov_b32 v16, s{sTAG}\nv_mov_b32 v17, 0\ns_mov_b64 exec, 1\nbuffer_store_dword v16, v17, s[{rF}:{rF+3}], 0 offen offset:{GEN_OFF} sc1\ns_mov_b64 exec, -1")
    stamp(A, o, 1)
    A("s_mov_b32 s57, 0xff\ns_mov_b32 s63, 0xff\ns_cmp_lg_u32 s3, 4\ns_cbranch_scc1 L_l_s1seen")
    poll(A, "L_l_p1", p1, [16, 17, 18, 19], mask=(1 << (2*prog)) - 1 if prog else None)
    stamp(A, o, 2)
    if o.get("stamp"): A("s_sub_u32 s84, 0x200000, s59")
    if prog: A(f"s_mov_b32 s57, {prog-4}\ns_mov_b32 s63, {prog-6}")
    else: gen_store("L_l_s1seen")
    A("L_l_s1seen:\ns_barrier")
    def late_check():
        A("s_cmp_lg_u32 s53, s57\ns_cbranch_scc1 L_l_nochk")
        poll(A, "L_l_p1b", p1, [16, 17, 18, 19], pre=16)
        gen_store("L_l_nochk")
        A("L_l_nochk:")
    def late_issue():
        A(f"s_cmp_lg_u32 s53, s63\ns_cbranch_scc1 L_l_noiss\n{p1}\nL_l_noiss:")
    ld_main(A, o, True, wa + wb + wc, late_check if prog else None, late_issue if prog else None)
    ld_waddr(A, False)
    post = o.get("post", 1)
    if post:
        A(f"s_lshl_b32 s48, s{sN}, 5\ns_lshl_b32 s49, s62, 3\ns_add_u32 s49, s49, s48\ns_lshr_b32 s58, s{sXCD}, 2\ns_and_b32 s59, s{sXCD}, 3\ns_lshl_b32 s59, s59, 10")
        def rowaddr(dst, pp, par):
            A(f"v_and_b32 v7, 1, v{pp}\nv_mul_u32_u24 v7, 1792, v7\nv_and_b32 v{pp}, -2, v{pp}\nv_add3_u32 v7, v7, v{pp}, s{par}\nv_add_u32 v7, 256, v7\nv_lshl_add_u32 v{dst}, v7, 12, v{dst}")
        A("v_and_b32 v13, 7, v2\nv_lshl_add_u32 v13, v13, 7, s59\nv_lshrrev_b32 v6, 3, v2\nv_add_u32 v6, s49, v6")
        rowaddr(13, 6, 58)
        A(f"v_xor_b32 v15, 4096, v13")
        A("s_xor_b32 s58, s58, 1\ns_add_u32 s59, s59, 256\nv_and_b32 v14, 1, v2\nv_lshl_add_u32 v14, v14, 7, s59\nv_lshrrev_b32 v6, 1, v2\nv_add_u32 v6, s48, v6")
        rowaddr(14, 6, 58)
    else:
        A(f"s_lshl_b32 s48, s2, 2\ns_add_u32 s48, s48, s62\ns_add_u32 s48, s48, 896")
        w2rows(A, 13, 48)
    te = o.get("tearly", 2)
    if post and te: A(f"s_cmp_ge_u32 s62, {te}\ns_cselect_b32 s48, 0x7ff00000, 0\nbuffer_load_dword v31, v13, s[{rW}:{rW+3}], s48 offen")
    w2l = o.get("w2late", 0)
    for z, c in enumerate((16, 8, 0, None) if w2l else (16, 12, 8, None)):
        if c is not None: A(f"s_waitcnt vmcnt({c + (1 if post and te else 0)})")
        A("s_barrier")
        if not w2l: issue_w(A, False, f"s_add_u32 m0, s52, {z*32768}")
    if w2l == 1:
        for z in range(R): issue_w(A, False, f"s_add_u32 m0, s52, {z*32768}")
    if not post: A(f"buffer_load_dword v31, v13, s[{rW}:{rW+3}], 0 offen")
    A("s_barrier")
    if w2l == 2:
        for z in range(R): issue_w(A, False, f"s_add_u32 m0, s52, {z*32768}")
    if post:
        if o.get("postn", 1): A(f"s_cmp_lt_u32 s62, {te}\ns_cbranch_scc1 L_l_tl\nbuffer_load_dword v31, v13, s[{rW}:{rW+3}], 0 offen\nL_l_tl:")
        if o.get("post2", 0): A(f"buffer_load_dword v31, v15, s[{rW}:{rW+3}], 0 offen")
        elif o.get("dup2", 1): A(f"s_cmp_lg_u32 s62, 3\ns_cbranch_scc1 L_l_g2\nbuffer_load_dword v31, v14, s[{rW}:{rW+3}], 0 offen")
    A("L_l_g2:")
    ld_haddr(A, False)
    srd(A, rS, sOUT, 0, S*D*2)
    A(f"s_lshl_b32 s58, s{sST}, 7\ns_lshr_b32 s59, s62, 1\ns_lshl_b32 s59, s59, 6\ns_add_u32 s58, s58, s59\ns_lshl_b32 s59, s{sHK}, 5\ns_add_u32 s58, s58, s59\ns_lshl_b32 s58, s58, 11")
    A(f"s_lshl_b32 s59, s{sDT2}, 8\ns_add_u32 s58, s58, s59\ns_and_b32 s59, s62, 1\ns_lshl_b32 s59, s59, 7\ns_add_u32 s58, s58, s59\nv_lshl_add_u32 v23, v2, 11, s58")
    A(f"s_lshl_b32 s58, s2, 10\ns_lshl_b32 s59, s62, 8\ns_add_u32 s58, s58, s59\ns_add_u32 s58, s58, {S3_OFF}\nv_mov_b32 v24, s58")
    s2line(A, 56, 58)
    A(f"v_lshlrev_b32 v13, {S2S}, v2")
    stamp(A, o, 4)
    A("s_cmp_lg_u32 s3, 4\ns_cbranch_scc1 L_l_s2seen")
    poll(A, "L_l_p2", f"buffer_load_dword v16, v13, s[{rF}:{rF+3}], s56 offen sc1", [16], mask=(1 << 14) - 1)
    stamp(A, o, 5)
    if o.get("stamp"): A("s_sub_u32 s86, 0x200000, s59")
    A("L_l_s2seen:\ns_barrier")
    ld_main(A, o, False)
    x = 0
    if o.get("otouch", 1):
        x = 2
        A(f"s_mov_b64 exec, 0xffffffff\ns_mov_b32 exec_hi, 0\nbuffer_load_dword v31, v23, s[{rS}:{rS+3}], 0 offen sc1\ns_mov_b64 exec, 1\nbuffer_load_dword v31, v24, s[{rF}:{rF+3}], 0 offen sc1\ns_mov_b64 exec, -1")
    for c in (16, 8, 0, None):
        if c is not None: A(f"s_waitcnt vmcnt({c + x})")
        A("s_barrier")
    if o.get("stamp"):
        A("s_cmp_lg_u32 s3, 4\ns_cbranch_scc1 L_l_nost")
        stamp_flush(A, o, range(1, 9), 2)
        A("L_l_nost:")
    if o.get("series"):
        A(f"s_cmp_lg_u32 s3, 7\ns_cbranch_scc1 L_end\ns_add_u32 s92, s{sWS}, {WS_STAMP + 65536}\ns_addc_u32 s93, s{sWS+1}, 0\ns_lshl_b32 s89, s2, 8\nv_lshl_add_u32 v28, v2, 2, s89\nglobal_store_dword v28, v26, s[92:93]\nv_add_u32 v28, 0x10000, v28\nglobal_store_dword v28, v27, s[92:93]")
    A("s_endpgm")
    A("L_l_spare:")
    srd(A, rH, sW1, 0, S*F*2)
    A("s_barrier")
    lnpf(rH, "L_l_nopf2")
    if o.get("cwarm", 0):
        A("s_cmp_lg_u32 s3, 7\ns_cbranch_scc1 L_l_ncw\ns_getpc_b64 s[58:59]\nL_l_pc:")
        A(f"s_sub_u32 s58, s58, L_l_pc-{NAME}\ns_subb_u32 s59, s59, 0\ns_sub_u32 s60, s{sN}, 28\ns_lshl_b32 s60, s60, 13\nv_lshl_add_u32 v21, v2, 7, s60")
        A(f"v_min_u32 v21, L_end-{NAME}, v21\nglobal_load_dword v31, v21, s[58:59]\nL_l_ncw:")
    touch_flags(A, o, False)
    ld_waddr(A, False)
    A("s_waitcnt lgkmcnt(0)")
    make_tag(A)
    A("s_barrier\ns_barrier")
    if o.get("wb", 0): A("s_barrier")
    A("s_cmp_lg_u32 s3, 4\ns_cbranch_scc1 L_l_spw")
    A("s_sub_u32 s48, s2, 224\ns_lshl_b32 s49, s48, 13\nv_lshl_add_u32 v13, v2, 7, s49")
    w2rows(A, 14, 48)
    r0 = 256 * nr
    def sp_w2(lab, r0_, r1_):
        if r0_ < r1_: A(f"s_mov_b32 s48, {r0_*P2}\n{lab}:\nbuffer_load_dword v31, v14, s[{rW}:{rW+3}], s48 offen\ns_add_u32 s48, s48, {32*P2}\ns_cmp_lt_u32 s48, {r1_*P2}\ns_cbranch_scc1 {lab}")
    if o.get("spare", 1):
        if post: sp_w2("L_l_sp0", 0, 256)
        if aff:
            A(f"s_sub_u32 s48, s{sN}, {28 - (32 - o.get('skip', 0))*nr}\ns_mul_i32 s48, s48, {2*npair*P1}\nL_l_sp1:\nbuffer_load_dword v31, v25, s[{rH}:{rH+3}], s48 offen\ns_add_u32 s48, s48, {8*npair*P1}\ns_cmp_lt_u32 s48, {S*P1}\ns_cbranch_scc1 L_l_sp1")
        else: A(f"s_mov_b32 s48, {r0*P1}\nL_l_sp1:\nbuffer_load_dword v31, v13, s[{rH}:{rH+3}], s48 offen\ns_add_u32 s48, s48, {32*8192}\ns_cmp_lt_u32 s48, {S*P1}\ns_cbranch_scc1 L_l_sp1")
        if post: sp_w2("L_l_sp2", 1152, o.get("spw2", 1792))
        else: sp_w2("L_l_sp2", 0, 896)
    if o.get("stamp"):
        A("s_waitcnt vmcnt(0)"); stamp(A, o, 0); stamp_flush(A, o, [0], 1); A("s_mov_b64 exec, -1")
    A("L_l_spw:")
    for z in range(R): issue_w(A, False, f"s_add_u32 m0, s52, {z*32768}")
    A("s_branch L_l_g2")

HEAD = open(__file__.replace("gen2.py", "head.txt")).read()
def build(o):
    global GLOB, S1L, S2R, S2S
    S1L = o.get('s1l', 3); S2R = o.get('s2r', 1); S2S = o.get('s2s', 7)
    GLOB = o.get('glob', 1)
    global PAD, HSTR, USTR, H_BYTES, U_BYTES
    PAD = o.get("pad", 8192); HSTR, USTR = 64*8192 + PAD, 112*8192 + PAD; H_BYTES, U_BYTES = 8*HSTR, 8*USTR
    A = Asm()
    A.L.append(HEAD.rstrip("\n"))
    if o.get("tail_e"):
        A(f"; @launch kernel={NAME} grid=(256,1,1) block=(512,1,1) lds={LDS_LN + 256}")
        A("; @launch kernel=empty_kernel grid=(256,1,1) block=(64,1,1) lds=0")
    else: A(f"; @launch grid=(256,1,1) block=(512,1,1) lds={LDS_LN + 256}")
    A('.amdgcn_target "amdgcn-amd-amdhsa--gfx950"\n.text')
    A(f".globl {NAME}\n.p2align 8\n.type {NAME},@function\n{NAME}:")
    A("s_cmp_ge_u32 s2, 256\ns_cbranch_scc1 L_end")
    stamp(A, o, 0)
    A("s_load_dwordx16 s[4:19], s[0:1], 0")
    A("v_readfirstlane_b32 s3, v0\ns_nop 0\ns_lshr_b32 s3, s3, 6\ns_cmp_ge_u32 s3, 4\ns_cbranch_scc1 L_loader")
    gen_ln(A, o)
    A("s_cmp_ge_u32 s2, 224\ns_cbranch_scc1 L_c_g2")
    cons_prologue(A, o, True)
    cons_loop(A, o)
    cons_epi1(A, o)
    A("L_c_g2:")
    cons_prologue(A, o, False)
    A("s_branch L_c_main")
    cons_epi2(A, o)
    gen_loader(A, o)
    A("L_end:\ns_endpgm")
    def desc(name, v):
        A(f".p2align 6\n.amdhsa_kernel {name}\n  .amdhsa_next_free_vgpr {v}\n  .amdhsa_next_free_sgpr 102\n  .amdhsa_accum_offset {v}\n"
          "  .amdhsa_group_segment_fixed_size 0\n  .amdhsa_kernarg_size 64\n  .amdhsa_user_sgpr_count 2\n"
          "  .amdhsa_user_sgpr_kernarg_segment_ptr 1\n  .amdhsa_system_sgpr_workgroup_id_x 1\n.end_amdhsa_kernel")
    if o.get("tail_e"):
        A(".globl empty_kernel\n.p2align 8\n.type empty_kernel,@function\nempty_kernel:")
        A("s_cmp_ge_u32 s2, 256\ns_cbranch_scc1 L_em_end\ns_memrealtime s[70:71]\ns_load_dwordx2 s[18:19], s[0:1], 56")
        stamp_flush(A, o, [0], 3)
        A("L_em_end:\ns_endpgm")
    A('.section .rodata,"a"')
    desc(NAME, 160)
    if o.get("tail_e"): desc("empty_kernel", 32)
    return A.text()

if __name__ == "__main__":
    o = {}
    for kv in sys.argv[2:]:
        k, v = kv.split("=", 1)
        o[k] = int(v) if v.lstrip("-").isdigit() else v
    open(sys.argv[1], "w").write(build(o))
```

```python
import sys, struct, math
S, D, F = 2048, 1024, 3584
WS_H, WS_U, WS_FLG, WS_STAMP = 0, 6 << 20, 20 << 20, 24 << 20
PAD = 8192
HSTR, USTR = 64*8192 + PAD, 112*8192 + PAD
H_BYTES, U_BYTES = 8*HSTR, 8*USTR
GEN_OFF, S1_OFF, S2_OFF, S3_OFF = 0, 65536, 131072, 262144
FLG_BYTES = S3_OFF + 256*1024
R = 4
LDS_LN = R*32768
NAME = "standalone__mixer_token_mlp__prompt_kernel"
N1, N2 = 32, 28
P1, P2 = F*2, S*2

GC0 = -2.0*math.sqrt(2.0/math.pi)*math.log2(math.e); GC1 = GC0*0.044715
GS = (-GC1) ** (1.0/3.0); GK = -GC0/GS
def f32(x): return "0x%08x" % struct.unpack("<I", struct.pack("<f", x))[0]

class Asm:
    def __init__(self): self.L = []
    def __call__(self, s):
        for l in s.split("\n"):
            l = l.strip()
            if l: self.L.append(l if (l.endswith(":") or l.startswith(".") or l.startswith(";")) else "    " + l)
    def text(self): return "\n".join(self.L) + "\n"

sX, sW1, sB1, sW2, sB2, sOUT, sDBG, sWS = 4, 6, 8, 10, 12, 14, 16, 18
sTAG, sXCD, sN, sFT, sDT1, sST, sDT2, sHK = 20, 21, 22, 23, 24, 25, 26, 27
rW, rH, rF, rM, rS = 28, 32, 36, 40, 44
sPH, sN7 = 68, 69
ACC, XW, XH, YW, YH = 32, 96, 112, 128, 144
VWA, VHA = 8, 16

def srd(A, r, base, off, nbytes):
    if off: A(f"s_add_u32 s{r}, s{base}, {off}\ns_addc_u32 s{r+1}, s{base+1}, 0")
    else: A(f"s_mov_b32 s{r}, s{base}\ns_mov_b32 s{r+1}, s{base+1}")
    A(f"s_mov_b32 s{r+2}, {nbytes}\ns_mov_b32 s{r+3}, 0x20000")

def stamp(A, o, i, cyc=None):
    if o.get("stamp"):
        A(f"s_memrealtime s[{70+2*i}:{71+2*i}]")
        if cyc is not None: A(f"s_memtime s[{94+2*cyc}:{95+2*cyc}]")
def stamp_flush(A, o, lst, slot=0):
    if not o.get("stamp"): return
    A("s_waitcnt lgkmcnt(0)")
    A(f"s_add_u32 s92, s{sWS}, {WS_STAMP + slot*16384}\ns_addc_u32 s93, s{sWS+1}, 0\nv_mov_b32 v28, s2\nv_lshlrev_b32 v28, 6, v28\ns_mov_b64 exec, 1")
    for i in lst: A(f"v_mov_b32 v1, s{70+2*i}\nglobal_store_dword v28, v1, s[92:93] offset:{4*i}")

def poll(A, label, load, regs, mask=None, pre=None):
    A(f"s_mov_b32 s59, 0x200000")
    if mask is not None: A(f"s_mov_b64 exec, {mask}")
    if pre is not None: A(f"s_waitcnt vmcnt({pre})\ns_branch {label}_c")
    A(f"{label}:\n{load}\ns_sub_u32 s59, s59, 1\ns_cbranch_scc1 {label}_x\ns_waitcnt vmcnt(0)\n{label}_c:")
    A(f"v_cmp_ne_u32 vcc, s{sTAG}, v{regs[0]}")
    for r_ in regs[1:]: A(f"v_cmp_ne_u32 s[60:61], s{sTAG}, v{r_}\ns_or_b64 vcc, vcc, s[60:61]")
    A(f"s_cmp_lg_u64 vcc, 0\ns_cbranch_scc1 {label}\n{label}_x:")
    if mask is not None: A("s_mov_b64 exec, -1")

def gen_ln(A, o):
    A("s_lshr_b32 s48, s2, 2\ns_and_b32 s49, s2, 3")
    A("s_lshl_b32 s50, s48, 5\ns_lshl_b32 s51, s49, 2\ns_add_u32 s50, s50, s51\ns_lshl_b32 s50, s50, 11")
    A("v_lshlrev_b32 v1, 3, v0")
    rowoff = [(16*(j//4) + j % 4) * 2048 for j in range(8)]
    for j in range(8): A(f"s_add_u32 s{52+j}, s50, {rowoff[j]}")
    A("s_waitcnt lgkmcnt(0)")
    srd(A, rM, sX, 0, S*D*2)
    for j in range(8): A(f"buffer_load_dwordx2 v[{2+2*j}:{3+2*j}], v1, s[{rM}:{rM+3}], s{52+j} offen")
    A("s_barrier")
    A(f"s_add_u32 s50, s{sX}, s50\ns_addc_u32 s51, s{sX+1}, 0")
    for j in range(8): A(f"s_load_dword s{52+j}, s[50:51], {rowoff[j]}")
    common_setup(A, o)
    srd(A, rS, sWS, WS_H, H_BYTES)
    A(f"v_lshrrev_b32 v62, 5, v0\nv_mul_u32_u24 v62, {HSTR}, v62")
    A("v_bfe_u32 v63, v0, 4, 1\nv_lshlrev_b32 v63, 12, v63\nv_add_u32 v62, v62, v63")
    A("v_and_b32 v63, 15, v0\nv_lshlrev_b32 v63, 4, v63\nv_add_u32 v62, v62, v63")
    A("s_lshl_b32 s48, s48, 13\ns_lshl_b32 s49, s49, 8\ns_add_u32 s48, s48, s49")
    if o.get("hpf"):
        A("v_and_b32 v63, 7, v0\nv_cmp_eq_u32 vcc, 0, v63\ns_and_saveexec_b64 s[60:61], vcc")
        for t in range(4): A(f"buffer_load_dword v19, v62, s[{rS}:{rS+3}], s48 offen offset:{t*1024}")
        A("s_mov_b64 exec, s[60:61]")
    A(f"v_lshrrev_b32 v64, 4, v0\nv_lshlrev_b32 v64, 4, v64\nv_add_u32 v64, {LDS_LN}, v64")
    A(f"v_and_b32 v65, 3, v0\nv_lshlrev_b32 v65, 4, v65\nv_bfe_u32 v66, v0, 2, 1\nv_lshlrev_b32 v66, 2, v66\nv_add_u32 v65, v65, v66\nv_add_u32 v65, {LDS_LN}, v65")
    A("s_waitcnt lgkmcnt(0)")
    make_tag(A)
    for j in range(8): A(f"s_lshl_b32 s{52+j}, s{52+j}, 16")
    for j in range(8):
        A(f"s_waitcnt vmcnt({7-j + (4 if o.get('hpf') else 0)})")
        for c in range(4):
            src = 2 + 2*j + c//2; d = 70 + 4*j + c
            A(f"v_lshlrev_b32 v{d}, 16, v{src}" if c % 2 == 0 else f"v_and_b32 v{d}, 0xffff0000, v{src}")
        for c in range(4): A(f"v_subrev_f32 v{70+4*j+c}, s{52+j}, v{70+4*j+c}")
        b = 70 + 4*j
        A(f"v_add_f32 v{20+j}, v{b}, v{b+1}\nv_mul_f32 v{28+j}, v{b}, v{b}")
        A(f"v_add_f32 v{20+j}, v{20+j}, v{b+2}\nv_fmac_f32 v{28+j}, v{b+1}, v{b+1}")
        A(f"v_add_f32 v{20+j}, v{20+j}, v{b+3}\nv_fmac_f32 v{28+j}, v{b+2}, v{b+2}\nv_fmac_f32 v{28+j}, v{b+3}, v{b+3}")
    stamp(A, o, 1)
    A("s_nop 1")
    for p in range(8): A(f"v_permlane32_swap_b32 v{20+2*p}, v{21+2*p}")
    for p in range(8): A(f"v_add_f32 v{20+2*p}, v{20+2*p}, v{21+2*p}")
    A("s_nop 1")
    for q in range(4): A(f"v_permlane16_swap_b32 v{20+4*q}, v{22+4*q}")
    for q in range(4): A(f"v_add_f32 v{40+q}, v{20+4*q}, v{22+4*q}")
    for sh in (8, 4, 2, 1):
        A("s_nop 1")
        for q in range(4): A(f"v_add_f32_dpp v{40+q}, v{40+q}, v{40+q} row_ror:{sh} row_mask:0xf bank_mask:0xf")
    A("ds_write_b128 v64, v[40:43]")
    A("s_waitcnt lgkmcnt(0)\ns_barrier")
    for w in range(4): A(f"ds_read2_b32 v[{44+2*w}:{45+2*w}], v65 offset0:{16*w} offset1:{16*w+2}")
    A("s_waitcnt lgkmcnt(0)")
    A("v_add_f32 v44, v44, v46\nv_add_f32 v45, v45, v47\nv_add_f32 v48, v48, v50\nv_add_f32 v49, v49, v51\nv_add_f32 v44, v44, v48\nv_add_f32 v45, v45, v49")
    A(f"v_mul_f32 v44, {f32(1.0/D)}, v44\nv_mul_f32 v45, {f32(1.0/D)}, v45")
    A("v_fma_f32 v45, -v44, v44, v45\nv_max_f32 v45, 0, v45")
    A(f"v_add_f32 v45, {f32(1e-5)}, v45\nv_rsq_f32 v45, v45\ns_nop 0" + f"\nv_mul_f32 v45, {f32(GS)}, v45" + "\nv_mul_f32 v44, v44, v45\nv_sub_f32 v44, 0, v44")
    A("s_nop 1")
    gmap = [0, 2, 1, 3]
    for e in range(8):
        j = gmap[e % 4] + 4*(e // 4)
        A(f"v_readlane_b32 s{52+j}, v45, {e}\nv_readlane_b32 s{60+j}, v44, {e}")
    A("s_nop 1")
    for j in range(8): A(f"v_mov_b32 v{20+j}, s{60+j}")
    for t in range(4):
        for j in range(8):
            d = 70 + 4*j + t
            A(f"v_fma_f32 v{d}, v{d}, s{52+j}, v{20+j}")
        for jj in range(4):
            A(f"v_cvt_pk_bf16_f32 v{44+4*t+jj}, v{70+4*(2*jj)+t}, v{70+4*(2*jj+1)+t}")
        A(f"buffer_store_dwordx4 v[{44+4*t}:{47+4*t}], v62, s[{rS}:{rS+3}], s48 offen offset:{t*1024} {o.get('hst', 'sc1').replace('_', ' ')}")
    A(f"s_lshr_b32 s48, s2, {S1L}\ns_lshl_b32 s48, s48, 7\ns_and_b32 s49, s2, {(1 << S1L) - 1}\ns_lshl_b32 s49, s49, 2\ns_add_u32 s48, s48, s49\ns_lshl_b32 s49, s3, {16 - S1L}\ns_add_u32 s48, s48, s49\ns_add_u32 s48, s48, {S1_OFF}")
    A(f"v_and_b32 v2, 63, v0\nv_lshlrev_b32 v3, {15 - S1L}, v2\nv_mov_b32 v4, s{sTAG}")
    if o.get("wb", 0): A("s_barrier")
    A("s_waitcnt vmcnt(0)")
    A(f"s_mov_b64 exec, 3\nbuffer_store_dword v4, v3, s[{rF}:{rF+3}], s48 offen sc1\ns_mov_b64 exec, -1")
    stamp(A, o, 2)
    if o.get("b2", 1): A("s_barrier")
    else: A("s_cmp_lt_u32 s2, 224\ns_cbranch_scc1 L_c_nob2\ns_barrier\nL_c_nob2:")

def common_setup(A, o):
    A(f"s_add_u32 s{rF}, s{sWS}, {WS_FLG}\ns_addc_u32 s{rF+1}, s{sWS+1}, 0\ns_mov_b32 s{rF+2}, {FLG_BYTES}\ns_mov_b32 s{rF+3}, 0x20000")
    A(f"s_load_dword s{sTAG}, s[{rF}:{rF+1}], {GEN_OFF}")
    A(f"s_and_b32 s{sXCD}, s2, 7\ns_lshr_b32 s{sN}, s2, 3")
    A(f"s_mul_i32 s66, s{sN}, 37\ns_lshr_b32 s66, s66, 8\ns_mul_i32 s67, s66, 7\ns_sub_u32 s{sN7}, s{sN}, s67")
    A(f"s_and_b32 s67, s{sXCD}, 3\ns_mul_i32 s{sFT}, s67, 7\ns_add_u32 s{sFT}, s{sFT}, s{sN7}")
    A(f"s_and_b32 s{sDT2}, s{sXCD}, 4\ns_add_u32 s{sDT1}, s{sDT2}, s66")
    A(f"s_and_b32 s{sHK}, s{sN}, 1\ns_lshl_b32 s{sST}, s67, 2\ns_bfe_u32 s66, s{sN}, 0x20001\ns_add_u32 s{sST}, s{sST}, s66")
    A(f"s_lshr_b32 s66, s{sN}, 3\ns_add_u32 s{sDT2}, s{sDT2}, s66")
def make_tag(A):
    A(f"s_mul_i32 s{sTAG}, s{sTAG}, 0x9e3779b1\ns_add_u32 s{sTAG}, s{sTAG}, 0x7f4a7c15")

def substep(A, o, cur, nxt, slot, ks, barrier):
    cw, ch = cur; nw, nh = nxt
    hi = slot >= 2
    base = (slot % 2) * 32768
    rd = []
    def wread(fb):
        for r_ in range(2):
            rd.append(f"ds_read_b64_tr_b16 v[{nw+4*fb+2*r_}:{nw+4*fb+2*r_+1}], v{VWA+4*hi+fb} offset:{base + ks*8192 + r_*4096}")
    def hread(t):
        rd.append(f"ds_read_b128 v[{nh+4*t}:{nh+4*t+3}], v{VHA+hi} offset:{base + 16384 + ks*8192 + t*1024}")
    wread(0)
    for t in range(4): hread(t)
    for fb in range(1, 4): wread(fb)
    A("s_waitcnt lgkmcnt(0)")
    if barrier: A("s_barrier")
    k = 0
    for m in range(16):
        fb, t = m // 4, m % 4
        if o.get("snake", 1) and fb % 2: t = 3 - t
        a = ACC + 16*fb + 4*t
        A(f"v_mfma_f32_16x16x32_bf16 v[{a}:{a+3}], v[{cw+4*fb}:{cw+4*fb+3}], v[{ch+4*t}:{ch+4*t+3}], v[{a}:{a+3}]")
        for _ in range(o.get("rdper", 1)):
            if k < len(rd): A(rd[k]); k += 1

WB, HB = 96, (128, 160)
def rd_w(slot, fb):
    hi = slot >= 2; base = (slot % 2) * 32768
    return [f"ds_read_b64_tr_b16 v[{WB+8*fb+4*ks+2*r_}:{WB+8*fb+4*ks+2*r_+1}], v{VWA+4*hi+fb} offset:{base + ks*8192 + r_*4096}" for ks in range(2) for r_ in range(2)]
def rd_h(slot, hb):
    hi = slot >= 2; base = (slot % 2) * 32768
    return [f"ds_read_b128 v[{hb+16*ks+4*t}:{hb+16*ks+4*t+3}], v{VHA+hi} offset:{base + 16384 + ks*8192 + t*1024}" for t in range(4) for ks in range(2)]
def step_kk(A, o, slot):
    hb, hn = HB[slot % 2], HB[1 - slot % 2]
    nx = (slot + 1) % R
    first = rd_w(slot, 1) + rd_w(slot, 2) + rd_w(slot, 3)
    second = rd_w(nx, 0) + rd_h(nx, hn)
    m = 0; flip = 0
    for fb in range(4):
        if fb == 0: A("s_waitcnt lgkmcnt(0)")
        if fb == 1: A("s_waitcnt lgkmcnt(4)")
        if fb == 2: A("s_waitcnt lgkmcnt(0)\ns_barrier")
        for t in (range(4) if fb % 2 == 0 else range(3, -1, -1)):
            a = ACC + 16*fb + 4*t
            for ks in ((1, 0) if flip else (0, 1)):
                w = WB + 8*fb + 4*ks; h = hb + 16*ks + 4*t
                A(f"v_mfma_f32_16x16x32_bf16 v[{a}:{a+3}], v[{w}:{w+3}], v[{h}:{h+3}], v[{a}:{a+3}]")
                if m < 12: A(first[m])
                elif 16 <= m < 28: A(second[m-16])
                m += 1
            flip ^= 1

def cons_prologue(A, o, g1):
    tile = sFT if g1 else sST
    srd(A, rM, sB1 if g1 else sB2, 0, (F if g1 else S)*2)
    A("s_and_b32 s62, s3, 1\ns_lshr_b32 s63, s3, 1")
    A("v_lshrrev_b32 v3, 4, v2\nv_and_b32 v4, 15, v2")
    A(f"s_lshl_b32 s50, s{tile}, 8\ns_lshl_b32 s51, s63, 7\ns_add_u32 s50, s50, s51")
    if not g1: A(f"s_lshl_b32 s51, s{sHK}, 6\ns_add_u32 s50, s50, s51")
    A("v_lshlrev_b32 v5, 3, v3")
    nb = 4 if g1 else 2
    for fb in range(nb): A(f"buffer_load_dwordx2 v[{20+2*fb}:{21+2*fb}], v5, s[{rM}:{rM+3}], s50 offen offset:{fb*32}")
    if not g1:
        A(f"s_lshl_b32 s54, s2, 10\ns_lshl_b32 s55, s3, 8\ns_add_u32 s54, s54, s55\ns_add_u32 s54, s54, {S3_OFF}\ns_xor_b32 s55, s54, 0x2000")
        A(f"s_getreg_b32 s64, hwreg(HW_REG_XCC_ID, 0, 4)\ns_add_u32 s64, s64, 1\ns_add_u32 s64, s64, s{sTAG}\nv_mov_b32 v6, s64\nv_mov_b32 v7, 128")
        A(f"s_mov_b64 exec, 1\nbuffer_store_dword v6, v7, s[{rF}:{rF+3}], s54 offen sc1\ns_mov_b64 exec, -1")
    A("v_lshrrev_b32 v6, 2, v4\nv_lshl_add_u32 v7, v3, 2, v6")
    A("v_and_b32 v18, 7, v7\nv_lshlrev_b32 v7, 8, v7\nv_and_b32 v19, 3, v4\nv_lshl_add_u32 v7, v19, 3, v7")
    A("s_lshl_b32 s50, s63, 2")
    if not g1: A(f"s_lshl_b32 s51, s{sHK}, 1\ns_xor_b32 s50, s50, s51\ns_xor_b32 s50, s50, 2")
    for fb in range(4):
        A(f"s_xor_b32 s51, s50, {fb}\nv_xor_b32 v19, s51, v18\nv_lshl_add_u32 v{VWA+fb}, v19, 5, v7\nv_add_u32 v{VWA+4+fb}, 0x10000, v{VWA+fb}")
    A(f"s_lshl_b32 s50, s62, 12\nv_lshl_add_u32 v{VHA}, v2, 4, s50\nv_add_u32 v{VHA+1}, 0x10000, v{VHA}")
    A(f"s_waitcnt vmcnt({0 if g1 else 1})")
    for fb in range(4):
        for r_ in range(4):
            a = ACC + 16*fb + r_
            if fb >= 4 - nb:
                src = 20 + 2*(fb - (4 - nb)) + r_//2
                A(f"v_lshlrev_b32 v{a}, 16, v{src}" if r_ % 2 == 0 else f"v_and_b32 v{a}, 0xffff0000, v{src}")
                if g1: A(f"v_mul_f32 v{a}, {f32(GS)}, v{a}")
            else: A(f"v_mov_b32 v{a}, 0")
            for t in range(1, 4): A(f"v_mov_b32 v{a+4*t}, v{a}")
    if g1:
        srd(A, rS, sWS, WS_U, U_BYTES)
        A(f"s_lshl_b32 s48, s{sFT}, 2\ns_lshl_b32 s49, s63, 1\ns_add_u32 s48, s48, s49\ns_lshl_b32 s48, s48, 13\ns_mul_i32 s49, s{sDT1}, {USTR}\ns_add_u32 s48, s48, s49")
        A("s_lshl_b32 s49, s62, 12\ns_add_u32 s48, s48, s49\ns_add_u32 s49, s48, 8192\nv_lshlrev_b32 v4, 4, v2")
        A(f"v_mov_b32 v22, {f32(GK)}\nv_mov_b32 v23, v22\nv_mov_b32 v24, {f32(GS)}\nv_mov_b32 v25, v24")
        A(f"s_cmp_ge_u32 s{sFT}, 14\ns_cselect_b32 s52, 1, 0\ns_cselect_b32 s53, 14, 0\ns_sub_u32 s53, s{sFT}, s53\ns_lshl_b32 s53, s53, {S2S}")
        A(f"s_lshl_b32 s50, s{sDT1}, 1\ns_add_u32 s52, s52, s50\ns_mul_i32 s52, s52, {S2R*2048}\ns_add_u32 s52, s52, s53\ns_add_u32 s52, s52, {S2_OFF}")
        A(f"v_lshlrev_b32 v20, 11, v2\nv_mov_b32 v21, s{sTAG}")
    else:
        srd(A, rS, sOUT, 0, S*D*2)
        A("v_lshlrev_b32 v3, 13, v3\nv_lshl_add_u32 v20, v4, 3, v3\nv_add_u32 v21, 4096, v20")
        A(f"s_lshl_b32 s56, s{sST}, 7\ns_lshl_b32 s57, s63, 6\ns_add_u32 s56, s56, s57\ns_lshl_b32 s57, s{sHK}, 5\ns_add_u32 s56, s56, s57\ns_lshl_b32 s56, s56, 11")
        A(f"s_lshl_b32 s57, s{sDT2}, 8\ns_add_u32 s56, s56, s57\ns_lshl_b32 s57, s62, 7\ns_add_u32 s56, s56, s57")
        A("s_xor_b32 s52, s56, 0x10000\ns_add_u32 s53, s52, 32768\ns_add_u32 s57, s56, 32768")
        A(f"v_mov_b32 v22, 0\nv_mov_b32 v23, s{sTAG}")
    A(f"s_mov_b32 s{sPH}, {1 if g1 else 2}\ns_mov_b32 s65, {(N1 if g1 else N2)//R}")

def cons_loop(A, o):
    A("L_c_main:")
    A("s_barrier")
    A("s_barrier")
    A(f"v_mov_b32 v5, 128\ns_cmp_eq_u32 s{sPH}, 1\ns_cbranch_scc1 L_c_noid")
    A(f"buffer_load_dword v30, v5, s[{rF}:{rF+3}], s55 offen sc1")
    stamp(A, o, 7, 2)
    A("s_branch L_c_go\nL_c_noid:")
    stamp(A, o, 3, 0)
    A("L_c_go:")
    X, Y = (XW, XH), (YW, YH)
    kk = o.get("kk", 1)
    if kk:
        for x in rd_w(0, 0) + rd_h(0, HB[0]): A(x)
    else:
        for fb in range(4):
            for r_ in range(2): A(f"ds_read_b64_tr_b16 v[{XW+4*fb+2*r_}:{XW+4*fb+2*r_+1}], v{VWA+fb} offset:{r_*4096}")
        for t in range(4): A(f"ds_read_b128 v[{XH+4*t}:{XH+4*t+3}], v{VHA} offset:{16384+t*1024}")
    if o.get("cprio"): A(f"s_setprio {o['cprio']}")
    A(".p2align 6")
    for _ in range(o.get("cpad", 0)): A("s_nop 0")
    A("L_c_loop:")
    for r_ in range(R):
        if kk: step_kk(A, o, r_); continue
        substep(A, o, X, Y, r_, 1, False)
        substep(A, o, Y, X, (r_+1) % R, 0, True)
    A("s_sub_u32 s65, s65, 1\ns_cmp_lg_u32 s65, 0\ns_cbranch_scc1 L_c_loop")
    A(f"s_waitcnt lgkmcnt(0)\ns_cmp_eq_u32 s{sPH}, 2\ns_cbranch_scc1 L_c_epi2")

def cons_epi1(A, o):
    stamp(A, o, 4, 1)
    A("s_nop 1")
    T = XW
    pr = lambda r_: f"v[{r_}:{r_+1}]"
    for kbl in range(2):
        for t in range(4):
            regs = [ACC + 16*(2*kbl + h) + 4*t + r_ for h in range(2) for r_ in range(4)]
            tb = T + ((kbl*4 + t) % 2) * 16
            for e in range(0, 8, 2): A(f"v_pk_fma_f32 {pr(tb+e)}, {pr(regs[e])}, {pr(regs[e])}, v[22:23]")
            for e in range(0, 8, 2): A(f"v_pk_mul_f32 {pr(tb+e)}, {pr(tb+e)}, {pr(regs[e])} neg_lo:[1,0] neg_hi:[1,0]")
            for e in range(8): A(f"v_exp_f32 v{tb+e}, v{tb+e}")
            for e in range(0, 8, 2): A(f"v_pk_fma_f32 {pr(tb+e)}, {pr(tb+e)}, v[24:25], v[24:25]")
            for e in range(8): A(f"v_rcp_f32 v{tb+e}, v{tb+e}")
            for e in range(0, 8, 2): A(f"v_pk_mul_f32 {pr(tb+e)}, {pr(tb+e)}, {pr(regs[e])}")
            for e in range(4): A(f"v_cvt_pk_bf16_f32 v{tb+8+e}, v{tb+2*e}, v{tb+2*e+1}")
            A(f"buffer_store_dwordx4 v[{tb+8}:{tb+11}], v4, s[{rS}:{rS+3}], s{48+kbl} offen offset:{t*1024} sc1")
    stamp(A, o, 5)
    A("s_waitcnt vmcnt(0)\ns_barrier")
    A("s_cmp_lg_u32 s3, 0\ns_cbranch_scc1 L_c_g2")
    A(f"s_mov_b64 exec, {(1 << S2R) - 1}\nbuffer_store_dword v21, v20, s[{rF}:{rF+3}], s52 offen sc1\ns_mov_b64 exec, -1")
    stamp(A, o, 6)

def cons_epi2(A, o):
    A("L_c_epi2:")
    stamp(A, o, 8, 3)
    def oaddr(sb, r_, base): return f"v{20 + r_//2}, s[{rS}:{rS+3}], s{base + sb} offen offset:{(r_%2)*2048}"
    A("s_waitcnt vmcnt(0)\nv_readfirstlane_b32 s61, v30")
    for sb in range(2):
        for r_ in range(4):
            a = ACC + 16*sb + r_; d = YW + 8*sb + 2*r_
            A(f"v_cvt_pk_bf16_f32 v{d}, v{a}, v{a+4}\nv_cvt_pk_bf16_f32 v{d+1}, v{a+8}, v{a+12}")
    def send(flag):
        for sb in range(2):
            for r_ in range(4):
                d = YW + 8*sb + 2*r_
                A(f"buffer_store_dwordx2 v[{d}:{d+1}], {oaddr(sb, r_, 52)} {flag}")
        A("s_waitcnt vmcnt(0)")
        A(f"s_mov_b64 exec, 1\nbuffer_store_dword v23, v22, s[{rF}:{rF+3}], s54 offen {flag}")
    A("s_cmp_eq_u32 s61, s64\ns_cbranch_scc0 L_c_far")
    send("")
    A("s_branch L_c_sent\nL_c_far:")
    send("sc1")
    A("L_c_sent:")
    poll(A, "L_c_p3", f"buffer_load_dword v18, v22, s[{rF}:{rF+3}], s55 offen sc1", [18], mask=1)
    stamp(A, o, 9)
    for sb in range(2):
        for r_ in range(4):
            d = XW + 8*sb + 2*r_
            A(f"buffer_load_dwordx2 v[{d}:{d+1}], {oaddr(sb, r_, 56)} sc1")
    for sb in range(2):
        for r_ in range(4):
            q = 4*sb + r_
            A("s_waitcnt vmcnt(7)")
            a = ACC + 32 + 16*sb + r_; d = XW + 8*sb + 2*r_; t_ = XW + 16 + 4*(q % 2)
            A(f"v_lshlrev_b32 v{t_}, 16, v{d}\nv_and_b32 v{t_+1}, 0xffff0000, v{d}\nv_lshlrev_b32 v{t_+2}, 16, v{d+1}\nv_and_b32 v{t_+3}, 0xffff0000, v{d+1}")
            for t in range(4): A(f"v_add_f32 v{a+4*t}, v{a+4*t}, v{t_+t}")
            A(f"v_cvt_pk_bf16_f32 v{d}, v{a}, v{a+4}\nv_cvt_pk_bf16_f32 v{d+1}, v{a+8}, v{a+12}")
            A(f"buffer_store_dwordx2 v[{d}:{d+1}], {oaddr(sb, r_, 56)} {o.get('fin', '')}")
    if o.get("wbl"):
        A(f"s_cmp_lg_u32 s3, 3\ns_cbranch_scc1 L_c_nwb\ns_waitcnt vmcnt(0)\nbuffer_wbl2 sc1\nL_c_nwb:")
    if o.get("stamp"):
        A("s_cmp_lg_u32 s3, 0\ns_cbranch_scc1 L_end\ns_waitcnt vmcnt(0)")
        stamp(A, o, 10)
        stamp_flush(A, o, range(11))
        A("s_sub_u32 s94, s96, s94\nv_mov_b32 v29, s94\nglobal_store_dword v28, v29, s[92:93] offset:56")
        A("s_sub_u32 s98, s100, s98\nv_mov_b32 v29, s98\nglobal_store_dword v28, v29, s[92:93] offset:60")
        if o.get("spinend"):
            A("s_cmp_lg_u32 s2, 0\ns_cbranch_scc1 L_end\ns_add_u32 s70, s70, 20000\ns_mov_b32 s59, 200000")
            A("L_sp:\ns_sub_u32 s59, s59, 1\ns_cbranch_scc1 L_end\ns_memrealtime s[72:73]\ns_waitcnt lgkmcnt(0)\ns_sub_u32 s72, s72, s70\ns_cmp_lt_i32 s72, 0\ns_cbranch_scc1 L_sp")
    A("s_endpgm")

def ld_waddr(A, g1):
    pitch = P1 if g1 else P2
    srd(A, rW, sW1 if g1 else sW2, 0, S*F*2)
    A(f"s_mov_b32 s48, {pitch}\ns_lshl_b32 s49, s62, 4\ns_lshl_b32 s50, s{sFT if g1 else sST}, 8")
    for j in range(4):
        A(f"v_add_u32 v6, {4*(j%2)}, v3\nv_xor_b32 v6, v6, v5\nv_lshl_add_u32 v6, v6, 5, v4")
        A(f"s_add_u32 s51, s49, {4*j}\nv_add_u32 v7, s51, v3\nv_mul_lo_u32 v7, v7, s48\nv_add3_u32 v{8+j}, v7, v6, s50")
        if j: A(f"v_subrev_u32 v{8+j}, {j*1024}, v{8+j}")
    A("s_mov_b32 s50, 0" if g1 else f"s_mul_i32 s50, s{sHK}, {N2*64*P2}")
    if GLOB: A(f"s_add_u32 s64, s{sW1 if g1 else sW2}, s50\ns_addc_u32 s65, s{(sW1 if g1 else sW2)+1}, 0")
def ld_haddr(A, g1):
    srd(A, rH, sWS, WS_H if g1 else WS_U, H_BYTES if g1 else U_BYTES)
    A(f"s_mul_i32 s48, s{sDT1 if g1 else sDT2}, {HSTR if g1 else USTR}\ns_add_u32 s48, s48, s52\nv_lshl_add_u32 v12, v2, 4, s48")
    A("s_mov_b32 s51, 0" if g1 else f"s_mul_i32 s51, s{sHK}, {N2*16384}")
    if GLOB: A(f"s_add_u32 s66, s{rH}, s51\ns_addc_u32 s67, s{rH+1}, 0")
def issue_w(A, g1, m0):
    A(m0 + "\ns_nop 0")
    if GLOB:
        for j in range(4): A(f"global_load_lds_dwordx4 v{8+j}, s[64:65] offset:{j*1024}")
        A(f"s_add_u32 s64, s64, {64*(P1 if g1 else P2)}\ns_addc_u32 s65, s65, 0")
        return
    for j in range(4): A(f"buffer_load_dwordx4 v{8+j}, s[{rW}:{rW+3}], s50 offen offset:{j*1024} lds")
    A(f"s_add_u32 s50, s50, {64*(P1 if g1 else P2)}")
def issue_h(A, m0, flag="sc1"):
    A(m0 + "\ns_nop 0")
    if GLOB:
        for j in range(4): A(f"global_load_lds_dwordx4 v12, s[66:67] offset:{j*1024} {flag}")
        A("s_add_u32 s66, s66, 16384\ns_addc_u32 s67, s67, 0")
        return
    for j in range(4): A(f"buffer_load_dwordx4 v12, s[{rH}:{rH+3}], s51 offen offset:{j*1024} {flag} lds")
    A("s_add_u32 s51, s51, 16384")
def ld_main(A, o, g1, wdone=4, pre_bar=None, post_bar=None, after_h=None):
    N = N1 if g1 else N2; P = "1" if g1 else "2"
    cnt = []
    for z in range(R):
        if z >= wdone: issue_w(A, g1, f"s_add_u32 m0, s52, {z*32768}")
        issue_h(A, f"s_add_u32 m0, s52, {z*32768 + 16384}")
        cnt.append(8 if z >= wdone else 4)
    if after_h: after_h()
    A(f"s_waitcnt vmcnt({sum(cnt[1:])})")
    stamp(A, o, 3 if g1 else 6)
    A("s_barrier")
    for n, c in ((0, sum(cnt[2:])), (1, cnt[3] + 8)):
        A(f"s_waitcnt vmcnt({c})\ns_barrier")
        issue_w(A, g1, f"s_add_u32 m0, s52, {n*32768}"); issue_h(A, "s_add_u32 m0, m0, 16384")
    A("s_mov_b32 s53, 2")
    if o.get("lalign", 6): A(f".p2align {o.get('lalign', 6)}")
    for _ in range(o.get("lpad", 0)): A("s_nop 0")
    A(f"L_l_loop{P}:")
    A(f"s_and_b32 s54, s53, {R-1}\ns_lshl_b32 s54, s54, 15")
    if o.get("wrapw"):
        A(f"s_and_b32 s58, s53, 3\ns_mul_i32 s58, s58, {64*(P1 if g1 else P2)}\ns_add_u32 s64, s{sW1 if g1 else sW2}, s58\ns_addc_u32 s65, s{(sW1 if g1 else sW2)+1}, 0")
    if o.get("wraph"):
        A(f"s_add_u32 s66, s{rH}, s54\ns_addc_u32 s67, s{rH+1}, 0")
    A("s_waitcnt vmcnt(16)")
    if pre_bar: pre_bar()
    A("s_barrier")
    if post_bar: post_bar()
    if o.get("series"): A(f"s_memrealtime s[90:91]\ns_memtime s[88:89]\ns_add_u32 m0, s53, {0 if g1 else 32}\ns_waitcnt lgkmcnt(0)\nv_writelane_b32 v26, s90, m0\nv_writelane_b32 v27, s88, m0")
    issue_w(A, g1, "s_add_u32 m0, s52, s54"); issue_h(A, "s_add_u32 m0, m0, 16384")
    m = o.get("m" + P, 0 if g1 else 16)
    if not m:
        A(f"s_add_u32 s53, s53, 1\ns_cmp_lt_u32 s53, {N-R}\ns_cbranch_scc1 L_l_loop{P}")
        return
    A(f"s_add_u32 s53, s53, 1\ns_cmp_lt_u32 s53, {m}\ns_cbranch_scc1 L_l_loop{P}")
    A("s_waitcnt vmcnt(16)\ns_barrier")
    A(f".p2align 6\nL_l_loopb{P}:")
    A(f"s_and_b32 s54, s53, {R-1}\ns_lshl_b32 s54, s54, 15")
    A("s_waitcnt vmcnt(8)\ns_barrier")
    issue_w(A, g1, "s_add_u32 m0, s52, s54"); issue_h(A, "s_add_u32 m0, m0, 16384")
    A(f"s_add_u32 s53, s53, 1\ns_cmp_lt_u32 s53, {N-R}\ns_cbranch_scc1 L_l_loopb{P}")

def w2rows(A, dst, srow):
    A(f"v_and_b32 v{dst}, 31, v2\nv_lshlrev_b32 v{dst}, 7, v{dst}\nv_lshrrev_b32 v7, 5, v2\nv_mul_u32_u24 v7, 1792, v7\nv_add_u32 v7, s{srow}, v7\nv_lshl_add_u32 v{dst}, v7, 12, v{dst}")

def s2line(A, dst, tmp):
    A(f"s_lshl_b32 s{dst}, s{sDT2}, 1\ns_add_u32 s{dst}, s{dst}, s{sHK}\ns_mul_i32 s{dst}, s{dst}, {S2R}\ns_and_b32 s{tmp}, s{sST}, {S2R-1}\ns_add_u32 s{dst}, s{dst}, s{tmp}\ns_lshl_b32 s{dst}, s{dst}, 11\ns_add_u32 s{dst}, s{dst}, {S2_OFF}")
def touch_flags(A, o, worker):
    if not o.get("ftouch", 1): return
    lab = "L_l_nt" + ("w" if worker else "s")
    A(f"s_cmp_lg_u32 s3, 7\ns_cbranch_scc1 {lab}")
    if worker: A(f"buffer_load_dword v31, v13, s[{rF}:{rF+3}], s56 offen sc1")
    s2line(A, 58, 59)
    A(f"v_lshl_add_u32 v21, v2, 7, s58")
    A(f"s_lshl_b32 s58, s2, 10\ns_add_u32 s58, s58, {S3_OFF - 16*128}\nv_lshl_add_u32 v22, v2, 7, s58\nv_cmp_gt_u32 vcc, 16, v2\ns_nop 1\nv_cndmask_b32 v21, v22, v21, vcc")
    A(f"s_mov_b64 exec, 0xffffff\nbuffer_load_dword v31, v21, s[{rF}:{rF+3}], 0 offen sc1\ns_mov_b64 exec, -1\n{lab}:")

def gen_loader(A, o):
    A("L_loader:")
    if o.get("lprio"): A(f"s_setprio {o['lprio']}")
    A("s_sub_u32 s62, s3, 4\ns_lshl_b32 s52, s62, 12\nv_and_b32 v2, 63, v0")
    A("v_lshrrev_b32 v3, 4, v2\nv_and_b32 v4, 15, v2\nv_lshrrev_b32 v5, 1, v4\nv_and_b32 v4, 1, v4\nv_lshlrev_b32 v4, 4, v4")
    A("s_waitcnt lgkmcnt(0)")
    common_setup(A, o)
    nr = o.get("lnrows", 3)
    aff = o.get("aff", 1); n2 = o.get("n2", 0)
    if aff:
        dup = o.get("dup", 1)
        kk = 18 if dup else 14; npair = 3 if dup else 4
        A(f"v_mul_u32_u24 v13, {(65536 + kk - 1)//kk}, v2\nv_lshrrev_b32 v13, 16, v13\nv_mul_u32_u24 v14, {kk}, v13\nv_sub_u32 v14, v2, v14")
        A(f"s_and_b32 s48, s{sXCD}, 3\ns_lshr_b32 s49, s{sXCD}, 2\ns_mul_i32 s58, s48, 14\ns_add_u32 s59, s48, 1\ns_and_b32 s59, s59, 3\ns_lshl_b32 s59, s59, 1")
        A("v_cmp_gt_u32 vcc, 14, v14\nv_add_u32 v16, s58, v14\nv_subrev_u32 v17, 14, v14\nv_lshrrev_b32 v18, 1, v17\nv_lshlrev_b32 v18, 3, v18\nv_and_b32 v17, 1, v17\nv_add3_u32 v17, v17, v18, s59")
        A("v_cmp_gt_u32 s[60:61], 14, v17\nv_add_u32 v17, s58, v17\nv_cndmask_b32 v16, v17, v16, vcc\ns_or_b64 s[60:61], s[60:61], vcc")
        A("s_xor_b32 s58, s49, 1\nv_mov_b32 v17, s58\nv_mov_b32 v18, s49\nv_cndmask_b32 v17, v17, v18, vcc\nv_lshl_add_u32 v17, v13, 1, v17")
        A(f"v_cmp_gt_u32 vcc, {npair}, v13\ns_and_b64 vcc, vcc, s[60:61]\nv_mul_u32_u24 v17, {P1}, v17\nv_lshl_add_u32 v13, v16, 7, v17\nv_mov_b32 v17, 0x7fffffff\nv_cndmask_b32 v13, v17, v13, vcc")
        skip = o.get("skip", 0)
        A(f"s_sub_u32 s48, s{sN}, {skip}\ns_cselect_b32 s49, 0x7ff00000, 0\ns_mul_i32 s48, s48, {nr}\ns_add_u32 s48, s48, s62\ns_mul_i32 s55, s48, {2*npair*P1}\nv_mov_b32 v25, v13")
        if skip: A("s_cmp_lg_u32 s49, 0\ns_cselect_b32 s55, s49, s55")
    else:
        A(f"s_mul_i32 s48, s2, {nr}\ns_add_u32 s48, s48, s62\ns_mul_i32 s55, s48, {P1}\nv_min_u32 v13, 55, v2\nv_lshlrev_b32 v13, 7, v13")
    def lnpf(r_, lab):
        if nr == 0: return
        if nr < 4: A(f"s_cmp_ge_u32 s62, {nr}\ns_cbranch_scc1 {lab}")
        A(f"buffer_load_dword v31, v13, s[{r_}:{r_+3}], s55 offen\n{lab}:")
    A("s_cmp_ge_u32 s2, 224\ns_cbranch_scc1 L_l_spare")
    srd(A, rW, sW1, 0, S*F*2)
    A("s_barrier")
    lnpf(rW, "L_l_nopf")
    ld_waddr(A, True)
    ld_haddr(A, True)
    A(f"s_and_b32 s56, s{sDT1}, 6\ns_and_b32 s59, s{sXCD}, 1\ns_add_u32 s56, s56, s59\ns_lshl_b32 s56, s56, {15 - S1L}\ns_add_u32 s56, s56, {S1_OFF}\nv_lshrrev_b32 v13, {S1L - 2}, v2\nv_lshlrev_b32 v13, 7, v13\nv_and_b32 v14, {(1 << (S1L - 2)) - 1}, v2\nv_lshl_add_u32 v13, v14, 4, v13")
    touch_flags(A, o, True)
    A("s_waitcnt lgkmcnt(0)")
    make_tag(A)
    wa, wb, wc = o.get("wa", 0), o.get("wb", 0), o.get("wc", 4)
    prog = o.get("prog", 8)
    iw = lambda z: issue_w(A, True, f"s_add_u32 m0, s52, {z*32768}")
    A("s_barrier")
    for z in range(wa): iw(z)
    if wb: A("s_barrier")
    for z in range(wa, wa + wb): iw(z)
    if o.get("b2", 1): A("s_barrier")
    for z in range(wa + wb, wa + wb + wc): iw(z)
    p1 = f"buffer_load_dwordx4 v[16:19], v13, s[{rF}:{rF+3}], s56 offen sc1"
    def gen_store(lab):
        A(f"s_cmp_lg_u32 s2, 0\ns_cbranch_scc1 {lab}")
        A(f"v_mov_b32 v16, s{sTAG}\nv_mov_b32 v17, 0\ns_mov_b64 exec, 1\nbuffer_store_dword v16, v17, s[{rF}:{rF+3}], 0 offen offset:{GEN_OFF} sc1\ns_mov_b64 exec, -1")
    stamp(A, o, 1)
    A("s_mov_b32 s57, 0xff\ns_mov_b32 s63, 0xff\ns_cmp_lg_u32 s3, 4\ns_cbranch_scc1 L_l_s1seen")
    poll(A, "L_l_p1", p1, [16, 17, 18, 19], mask=(1 << (2*prog)) - 1 if prog else None)
    stamp(A, o, 2)
    if o.get("stamp"): A("s_sub_u32 s84, 0x200000, s59")
    if prog: A(f"s_mov_b32 s57, {prog-4}\ns_mov_b32 s63, {prog-6}")
    else: gen_store("L_l_s1seen")
    A("L_l_s1seen:\ns_barrier")
    def late_check():
        A("s_cmp_lg_u32 s53, s57\ns_cbranch_scc1 L_l_nochk")
        poll(A, "L_l_p1b", p1, [16, 17, 18, 19], pre=16)
        gen_store("L_l_nochk")
        A("L_l_nochk:")
    def late_issue():
        A(f"s_cmp_lg_u32 s53, s63\ns_cbranch_scc1 L_l_noiss\n{p1}\nL_l_noiss:")
    ld_main(A, o, True, wa + wb + wc, late_check if prog else None, late_issue if prog else None)
    ld_waddr(A, False)
    post = o.get("post", 1)
    if post:
        A(f"s_lshl_b32 s48, s{sN}, 5\ns_lshl_b32 s49, s62, 3\ns_add_u32 s49, s49, s48\ns_lshr_b32 s58, s{sXCD}, 2\ns_and_b32 s59, s{sXCD}, 3\ns_lshl_b32 s59, s59, 10")
        def rowaddr(dst, pp, par):
            A(f"v_and_b32 v7, 1, v{pp}\nv_mul_u32_u24 v7, 1792, v7\nv_and_b32 v{pp}, -2, v{pp}\nv_add3_u32 v7, v7, v{pp}, s{par}\nv_add_u32 v7, 256, v7\nv_lshl_add_u32 v{dst}, v7, 12, v{dst}")
        A("v_and_b32 v13, 7, v2\nv_lshl_add_u32 v13, v13, 7, s59\nv_lshrrev_b32 v6, 3, v2\nv_add_u32 v6, s49, v6")
        rowaddr(13, 6, 58)
        A(f"v_xor_b32 v15, 4096, v13")
        A("s_xor_b32 s58, s58, 1\ns_add_u32 s59, s59, 256\nv_and_b32 v14, 1, v2\nv_lshl_add_u32 v14, v14, 7, s59\nv_lshrrev_b32 v6, 1, v2\nv_add_u32 v6, s48, v6")
        rowaddr(14, 6, 58)
    else:
        A(f"s_lshl_b32 s48, s2, 2\ns_add_u32 s48, s48, s62\ns_add_u32 s48, s48, 896")
        w2rows(A, 13, 48)
    te = o.get("tearly", 1)
    if post and te: A(f"s_cmp_ge_u32 s62, {te}\ns_cselect_b32 s48, 0x7ff00000, 0\nbuffer_load_dword v31, v13, s[{rW}:{rW+3}], s48 offen")
    w2l = o.get("w2late", 0)
    m1 = o.get("m1", 0)
    plan = [(8, [0, 1]), (8, [2]), (None, [3])] if m1 else [(16, [0]), (12, [1]), (8, [2]), (None, [3])]
    if w2l: plan = [(8, []), (0, []), (None, [])] if m1 else [(16, []), (8, []), (0, []), (None, [])]
    for c, zs in plan:
        if c is not None: A(f"s_waitcnt vmcnt({c + (1 if post and te else 0)})")
        A("s_barrier")
        for z in zs: issue_w(A, False, f"s_add_u32 m0, s52, {z*32768}")
    if w2l == 1:
        for z in range(R): issue_w(A, False, f"s_add_u32 m0, s52, {z*32768}")
    if not post: A(f"buffer_load_dword v31, v13, s[{rW}:{rW+3}], 0 offen")
    A("s_barrier")
    if w2l == 2:
        for z in range(R): issue_w(A, False, f"s_add_u32 m0, s52, {z*32768}")
    def post_pf():
        A(f"s_cmp_lt_u32 s62, {te}\ns_cbranch_scc1 L_l_tl\nbuffer_load_dword v31, v29, s[{rW}:{rW+3}], 0 offen")
        if o.get("dup2", 1): A(f"s_cmp_lg_u32 s62, 3\ns_cbranch_scc1 L_l_tl\nbuffer_load_dword v31, v30, s[{rW}:{rW+3}], 0 offen")
        A("L_l_tl:")
    A("v_mov_b32 v29, v13\nv_mov_b32 v30, v14")
    if post and not o.get("postlate", 0): post_pf()
    A("L_l_g2:")
    ld_haddr(A, False)
    srd(A, rS, sOUT, 0, S*D*2)
    A(f"s_lshl_b32 s58, s{sST}, 7\ns_lshr_b32 s59, s62, 1\ns_lshl_b32 s59, s59, 6\ns_add_u32 s58, s58, s59\ns_lshl_b32 s59, s{sHK}, 5\ns_add_u32 s58, s58, s59\ns_lshl_b32 s58, s58, 11")
    A(f"s_lshl_b32 s59, s{sDT2}, 8\ns_add_u32 s58, s58, s59\ns_and_b32 s59, s62, 1\ns_lshl_b32 s59, s59, 7\ns_add_u32 s58, s58, s59\nv_lshl_add_u32 v23, v2, 11, s58")
    A(f"s_lshl_b32 s58, s2, 10\ns_lshl_b32 s59, s62, 8\ns_add_u32 s58, s58, s59\ns_add_u32 s58, s58, {S3_OFF}\nv_mov_b32 v24, s58")
    s2line(A, 56, 58)
    A(f"v_lshlrev_b32 v13, {S2S}, v2")
    stamp(A, o, 4)
    A("s_cmp_lg_u32 s3, 4\ns_cbranch_scc1 L_l_s2seen")
    poll(A, "L_l_p2", f"buffer_load_dword v16, v13, s[{rF}:{rF+3}], s56 offen sc1", [16], mask=(1 << 14) - 1)
    stamp(A, o, 5)
    if o.get("stamp"): A("s_sub_u32 s86, 0x200000, s59")
    A("L_l_s2seen:\ns_barrier")
    ld_main(A, o, False, after_h=post_pf if post and o.get('postlate', 0) else None)
    x = 0
    if o.get("otouch", 1):
        x = 2
        A(f"s_mov_b64 exec, 0xffffffff\ns_mov_b32 exec_hi, 0\nbuffer_load_dword v31, v23, s[{rS}:{rS+3}], 0 offen sc1\ns_mov_b64 exec, 1\nbuffer_load_dword v31, v24, s[{rF}:{rF+3}], 0 offen sc1\ns_mov_b64 exec, -1")
    for c in (8, 0, None) if o.get("m2", 16) else (16, 8, 0, None):
        if c is not None: A(f"s_waitcnt vmcnt({c + x})")
        A("s_barrier")
    if o.get("stamp"):
        A("s_cmp_lg_u32 s3, 4\ns_cbranch_scc1 L_l_nost")
        stamp_flush(A, o, range(1, 9), 2)
        A("L_l_nost:")
    if o.get("series"):
        A(f"s_cmp_lg_u32 s3, 7\ns_cbranch_scc1 L_end\ns_add_u32 s92, s{sWS}, {WS_STAMP + 65536}\ns_addc_u32 s93, s{sWS+1}, 0\ns_lshl_b32 s89, s2, 8\nv_lshl_add_u32 v28, v2, 2, s89\nglobal_store_dword v28, v26, s[92:93]\nv_add_u32 v28, 0x10000, v28\nglobal_store_dword v28, v27, s[92:93]")
    A("s_endpgm")
    A("L_l_spare:")
    srd(A, rH, sW1, 0, S*F*2)
    A("s_barrier")
    lnpf(rH, "L_l_nopf2")
    if o.get("cwarm", 0):
        A("s_cmp_lg_u32 s3, 7\ns_cbranch_scc1 L_l_ncw\ns_getpc_b64 s[58:59]\nL_l_pc:")
        A(f"s_sub_u32 s58, s58, L_l_pc-{NAME}\ns_subb_u32 s59, s59, 0\ns_sub_u32 s60, s{sN}, 28\ns_lshl_b32 s60, s60, 13\nv_lshl_add_u32 v21, v2, 7, s60")
        A(f"v_min_u32 v21, L_end-{NAME}, v21\nglobal_load_dword v31, v21, s[58:59]\nL_l_ncw:")
    touch_flags(A, o, False)
    ld_waddr(A, False)
    A("s_waitcnt lgkmcnt(0)")
    make_tag(A)
    A("s_barrier\ns_barrier")
    if o.get("wb", 0): A("s_barrier")
    A("s_cmp_lg_u32 s3, 4\ns_cbranch_scc1 L_l_spw")
    A("s_sub_u32 s48, s2, 224\ns_lshl_b32 s49, s48, 13\nv_lshl_add_u32 v13, v2, 7, s49")
    w2rows(A, 14, 48)
    r0 = 256 * nr
    def sp_w2(lab, r0_, r1_):
        if r0_ < r1_: A(f"s_mov_b32 s48, {r0_*P2}\n{lab}:\nbuffer_load_dword v31, v14, s[{rW}:{rW+3}], s48 offen\ns_add_u32 s48, s48, {32*P2}\ns_cmp_lt_u32 s48, {r1_*P2}\ns_cbranch_scc1 {lab}")
    if o.get("spare", 1):
        if post: sp_w2("L_l_sp0", 0, 256)
        if aff:
            A(f"s_sub_u32 s48, s{sN}, {28 - (32 - o.get('skip', 0))*nr}\ns_mul_i32 s48, s48, {2*npair*P1}\nL_l_sp1:\nbuffer_load_dword v31, v25, s[{rH}:{rH+3}], s48 offen\ns_add_u32 s48, s48, {8*npair*P1}\ns_cmp_lt_u32 s48, {S*P1}\ns_cbranch_scc1 L_l_sp1")
        else: A(f"s_mov_b32 s48, {r0*P1}\nL_l_sp1:\nbuffer_load_dword v31, v13, s[{rH}:{rH+3}], s48 offen\ns_add_u32 s48, s48, {32*8192}\ns_cmp_lt_u32 s48, {S*P1}\ns_cbranch_scc1 L_l_sp1")
        if post: sp_w2("L_l_sp2", 1152, o.get("spw2", 1792))
        else: sp_w2("L_l_sp2", 0, 896)
    if o.get("stamp"):
        A("s_waitcnt vmcnt(0)"); stamp(A, o, 0); stamp_flush(A, o, [0], 1); A("s_mov_b64 exec, -1")
    A("L_l_spw:\nv_mov_b32 v29, 0x7fffffff\nv_mov_b32 v30, 0x7fffffff")
    for z in range(R): issue_w(A, False, f"s_add_u32 m0, s52, {z*32768}")
    A("s_branch L_l_g2")

HEAD = open(__file__.replace("gen2.py", "head.txt")).read()
def build(o):
    global GLOB, S1L, S2R, S2S
    S1L = o.get('s1l', 3); S2R = o.get('s2r', 1); S2S = o.get('s2s', 7)
    GLOB = o.get('glob', 1)
    global PAD, HSTR, USTR, H_BYTES, U_BYTES
    PAD = o.get("pad", 8192); HSTR, USTR = 64*8192 + PAD, 112*8192 + PAD; H_BYTES, U_BYTES = 8*HSTR, 8*USTR
    A = Asm()
    A.L.append(HEAD.rstrip("\n"))
    if o.get("tail_e"):
        A(f"; @launch kernel={NAME} grid=(256,1,1) block=(512,1,1) lds={LDS_LN + 256}")
        A("; @launch kernel=empty_kernel grid=(256,1,1) block=(64,1,1) lds=0")
    else: A(f"; @launch grid=(256,1,1) block=(512,1,1) lds={LDS_LN + 256}")
    A('.amdgcn_target "amdgcn-amd-amdhsa--gfx950"\n.text')
    A(f".globl {NAME}\n.p2align 8\n.type {NAME},@function\n{NAME}:")
    A("s_cmp_ge_u32 s2, 256\ns_cbranch_scc1 L_end")
    stamp(A, o, 0)
    A("s_load_dwordx16 s[4:19], s[0:1], 0")
    A("v_readfirstlane_b32 s3, v0\ns_nop 0\ns_lshr_b32 s3, s3, 6\ns_cmp_ge_u32 s3, 4\ns_cbranch_scc1 L_loader")
    gen_ln(A, o)
    A("s_cmp_ge_u32 s2, 224\ns_cbranch_scc1 L_c_g2")
    cons_prologue(A, o, True)
    cons_loop(A, o)
    cons_epi1(A, o)
    A("L_c_g2:")
    cons_prologue(A, o, False)
    A("s_branch L_c_main")
    cons_epi2(A, o)
    gen_loader(A, o)
    A("L_end:\ns_endpgm")
    def desc(name, v):
        A(f".p2align 6\n.amdhsa_kernel {name}\n  .amdhsa_next_free_vgpr {v}\n  .amdhsa_next_free_sgpr 102\n  .amdhsa_accum_offset {v}\n"
          "  .amdhsa_group_segment_fixed_size 0\n  .amdhsa_kernarg_size 64\n  .amdhsa_user_sgpr_count 2\n"
          "  .amdhsa_user_sgpr_kernarg_segment_ptr 1\n  .amdhsa_system_sgpr_workgroup_id_x 1\n.end_amdhsa_kernel")
    if o.get("tail_e"):
        A(".globl empty_kernel\n.p2align 8\n.type empty_kernel,@function\nempty_kernel:")
        A("s_cmp_ge_u32 s2, 256\ns_cbranch_scc1 L_em_end\ns_memrealtime s[70:71]\ns_load_dwordx2 s[18:19], s[0:1], 56")
        stamp_flush(A, o, [0], 3)
        A("L_em_end:\ns_endpgm")
    A('.section .rodata,"a"')
    desc(NAME, 192 if o.get('kk', 1) else 160)
    if o.get("tail_e"): desc("empty_kernel", 32)
    return A.text()

if __name__ == "__main__":
    o = {}
    for kv in sys.argv[2:]:
        k, v = kv.split("=", 1)
        o[k] = int(v) if v.lstrip("-").isdigit() else v
    open(sys.argv[1], "w").write(build(o))
```

```python
import sys, struct, math
S, D, F = 2048, 1024, 3584
WS_H, WS_U, WS_FLG, WS_STAMP = 0, 6 << 20, 20 << 20, 24 << 20
PAD = 8192
HSTR, USTR = 64*8192 + PAD, 112*8192 + PAD
H_BYTES, U_BYTES = 8*HSTR, 8*USTR
GEN_OFF, S1_OFF, S2_OFF, S3_OFF = 0, 65536, 131072, 262144
FLG_BYTES = S3_OFF + 256*1024
R = 4
LDS_LN = R*32768
NAME = "standalone__mixer_token_mlp__prompt_kernel"
N1, N2 = 32, 28
P1, P2 = F*2, S*2

GC0 = -2.0*math.sqrt(2.0/math.pi)*math.log2(math.e); GC1 = GC0*0.044715
GS = (-GC1) ** (1.0/3.0); GK = -GC0/GS
def f32(x): return "0x%08x" % struct.unpack("<I", struct.pack("<f", x))[0]

class Asm:
    def __init__(self): self.L = []
    def __call__(self, s):
        for l in s.split("\n"):
            l = l.strip()
            if l: self.L.append(l if (l.endswith(":") or l.startswith(".") or l.startswith(";")) else "    " + l)
    def text(self): return "\n".join(self.L) + "\n"

sX, sW1, sB1, sW2, sB2, sOUT, sDBG, sWS = 4, 6, 8, 10, 12, 14, 16, 18
sTAG, sXCD, sN, sFT, sDT1, sST, sDT2, sHK = 20, 21, 22, 23, 24, 25, 26, 27
rW, rH, rF, rM, rS = 28, 32, 36, 40, 44
sPH, sN7 = 68, 69
ACC, XW, XH, YW, YH = 32, 96, 112, 128, 144
VWA, VHA = 8, 16

def srd(A, r, base, off, nbytes):
    if off: A(f"s_add_u32 s{r}, s{base}, {off}\ns_addc_u32 s{r+1}, s{base+1}, 0")
    else: A(f"s_mov_b32 s{r}, s{base}\ns_mov_b32 s{r+1}, s{base+1}")
    A(f"s_mov_b32 s{r+2}, {nbytes}\ns_mov_b32 s{r+3}, 0x20000")

def stamp(A, o, i, cyc=None):
    if o.get("stamp"):
        A(f"s_memrealtime s[{70+2*i}:{71+2*i}]")
        if cyc is not None: A(f"s_memtime s[{94+2*cyc}:{95+2*cyc}]")
def stamp_flush(A, o, lst, slot=0):
    if not o.get("stamp"): return
    A("s_waitcnt lgkmcnt(0)")
    A(f"s_add_u32 s92, s{sWS}, {WS_STAMP + slot*16384}\ns_addc_u32 s93, s{sWS+1}, 0\nv_mov_b32 v28, s2\nv_lshlrev_b32 v28, 6, v28\ns_mov_b64 exec, 1")
    for i in lst: A(f"v_mov_b32 v1, s{70+2*i}\nglobal_store_dword v28, v1, s[92:93] offset:{4*i}")

def poll(A, label, load, regs, mask=None, pre=None):
    A(f"s_mov_b32 s59, 0x200000")
    if mask is not None: A(f"s_mov_b64 exec, {mask}")
    if pre is not None: A(f"s_waitcnt vmcnt({pre})\ns_branch {label}_c")
    A(f"{label}:\n{load}\ns_sub_u32 s59, s59, 1\ns_cbranch_scc1 {label}_x\ns_waitcnt vmcnt(0)\n{label}_c:")
    A(f"v_cmp_ne_u32 vcc, s{sTAG}, v{regs[0]}")
    for r_ in regs[1:]: A(f"v_cmp_ne_u32 s[60:61], s{sTAG}, v{r_}\ns_or_b64 vcc, vcc, s[60:61]")
    A(f"s_cmp_lg_u64 vcc, 0\ns_cbranch_scc1 {label}\n{label}_x:")
    if mask is not None: A("s_mov_b64 exec, -1")

def gen_ln(A, o):
    A("s_lshr_b32 s48, s2, 2\ns_and_b32 s49, s2, 3")
    A("s_lshl_b32 s50, s48, 5\ns_lshl_b32 s51, s49, 2\ns_add_u32 s50, s50, s51\ns_lshl_b32 s50, s50, 11")
    A("v_lshlrev_b32 v1, 3, v0")
    rowoff = [(16*(j//4) + j % 4) * 2048 for j in range(8)]
    for j in range(8): A(f"s_add_u32 s{52+j}, s50, {rowoff[j]}")
    A("s_waitcnt lgkmcnt(0)")
    srd(A, rM, sX, 0, S*D*2)
    for j in range(8): A(f"buffer_load_dwordx2 v[{2+2*j}:{3+2*j}], v1, s[{rM}:{rM+3}], s{52+j} offen")
    A("s_barrier")
    A(f"s_add_u32 s50, s{sX}, s50\ns_addc_u32 s51, s{sX+1}, 0")
    for j in range(8): A(f"s_load_dword s{52+j}, s[50:51], {rowoff[j]}")
    common_setup(A, o)
    srd(A, rS, sWS, WS_H, H_BYTES)
    A(f"v_lshrrev_b32 v62, 5, v0\nv_mul_u32_u24 v62, {HSTR}, v62")
    A("v_bfe_u32 v63, v0, 4, 1\nv_lshlrev_b32 v63, 12, v63\nv_add_u32 v62, v62, v63")
    A("v_and_b32 v63, 15, v0\nv_lshlrev_b32 v63, 4, v63\nv_add_u32 v62, v62, v63")
    A("s_lshl_b32 s48, s48, 13\ns_lshl_b32 s49, s49, 8\ns_add_u32 s48, s48, s49")
    if o.get("hpf"):
        A("v_and_b32 v63, 7, v0\nv_cmp_eq_u32 vcc, 0, v63\ns_and_saveexec_b64 s[60:61], vcc")
        for t in range(4): A(f"buffer_load_dword v19, v62, s[{rS}:{rS+3}], s48 offen offset:{t*1024}")
        A("s_mov_b64 exec, s[60:61]")
    A(f"v_lshrrev_b32 v64, 4, v0\nv_lshlrev_b32 v64, 4, v64\nv_add_u32 v64, {LDS_LN}, v64")
    A(f"v_and_b32 v65, 3, v0\nv_lshlrev_b32 v65, 4, v65\nv_bfe_u32 v66, v0, 2, 1\nv_lshlrev_b32 v66, 2, v66\nv_add_u32 v65, v65, v66\nv_add_u32 v65, {LDS_LN}, v65")
    A("s_waitcnt lgkmcnt(0)")
    make_tag(A)
    for j in range(8): A(f"s_lshl_b32 s{52+j}, s{52+j}, 16")
    for j in range(8):
        A(f"s_waitcnt vmcnt({7-j + (4 if o.get('hpf') else 0)})")
        for c in range(4):
            src = 2 + 2*j + c//2; d = 70 + 4*j + c
            A(f"v_lshlrev_b32 v{d}, 16, v{src}" if c % 2 == 0 else f"v_and_b32 v{d}, 0xffff0000, v{src}")
        for c in range(4): A(f"v_subrev_f32 v{70+4*j+c}, s{52+j}, v{70+4*j+c}")
        b = 70 + 4*j
        A(f"v_add_f32 v{20+j}, v{b}, v{b+1}\nv_mul_f32 v{28+j}, v{b}, v{b}")
        A(f"v_add_f32 v{20+j}, v{20+j}, v{b+2}\nv_fmac_f32 v{28+j}, v{b+1}, v{b+1}")
        A(f"v_add_f32 v{20+j}, v{20+j}, v{b+3}\nv_fmac_f32 v{28+j}, v{b+2}, v{b+2}\nv_fmac_f32 v{28+j}, v{b+3}, v{b+3}")
    stamp(A, o, 1)
    A("s_nop 1")
    for p in range(8): A(f"v_permlane32_swap_b32 v{20+2*p}, v{21+2*p}")
    for p in range(8): A(f"v_add_f32 v{20+2*p}, v{20+2*p}, v{21+2*p}")
    A("s_nop 1")
    for q in range(4): A(f"v_permlane16_swap_b32 v{20+4*q}, v{22+4*q}")
    for q in range(4): A(f"v_add_f32 v{40+q}, v{20+4*q}, v{22+4*q}")
    for sh in (8, 4, 2, 1):
        A("s_nop 1")
        for q in range(4): A(f"v_add_f32_dpp v{40+q}, v{40+q}, v{40+q} row_ror:{sh} row_mask:0xf bank_mask:0xf")
    A("ds_write_b128 v64, v[40:43]")
    A("s_waitcnt lgkmcnt(0)\ns_barrier")
    for w in range(4): A(f"ds_read2_b32 v[{44+2*w}:{45+2*w}], v65 offset0:{16*w} offset1:{16*w+2}")
    A("s_waitcnt lgkmcnt(0)")
    A("v_add_f32 v44, v44, v46\nv_add_f32 v45, v45, v47\nv_add_f32 v48, v48, v50\nv_add_f32 v49, v49, v51\nv_add_f32 v44, v44, v48\nv_add_f32 v45, v45, v49")
    A(f"v_mul_f32 v44, {f32(1.0/D)}, v44\nv_mul_f32 v45, {f32(1.0/D)}, v45")
    A("v_fma_f32 v45, -v44, v44, v45\nv_max_f32 v45, 0, v45")
    A(f"v_add_f32 v45, {f32(1e-5)}, v45\nv_rsq_f32 v45, v45\ns_nop 0" + f"\nv_mul_f32 v45, {f32(GS)}, v45" + "\nv_mul_f32 v44, v44, v45\nv_sub_f32 v44, 0, v44")
    A("s_nop 1")
    gmap = [0, 2, 1, 3]
    for e in range(8):
        j = gmap[e % 4] + 4*(e // 4)
        A(f"v_readlane_b32 s{52+j}, v45, {e}\nv_readlane_b32 s{60+j}, v44, {e}")
    A("s_nop 1")
    for j in range(8): A(f"v_mov_b32 v{20+j}, s{60+j}")
    for t in range(4):
        for j in range(8):
            d = 70 + 4*j + t
            A(f"v_fma_f32 v{d}, v{d}, s{52+j}, v{20+j}")
        for jj in range(4):
            A(f"v_cvt_pk_bf16_f32 v{44+4*t+jj}, v{70+4*(2*jj)+t}, v{70+4*(2*jj+1)+t}")
        A(f"buffer_store_dwordx4 v[{44+4*t}:{47+4*t}], v62, s[{rS}:{rS+3}], s48 offen offset:{t*1024} {o.get('hst', 'sc1').replace('_', ' ')}")
    A(f"s_lshr_b32 s48, s2, {S1L}\ns_lshl_b32 s48, s48, 7\ns_and_b32 s49, s2, {(1 << S1L) - 1}\ns_lshl_b32 s49, s49, 2\ns_add_u32 s48, s48, s49\ns_lshl_b32 s49, s3, {16 - S1L}\ns_add_u32 s48, s48, s49\ns_add_u32 s48, s48, {S1_OFF}")
    A(f"v_and_b32 v2, 63, v0\nv_lshlrev_b32 v3, {15 - S1L}, v2\nv_mov_b32 v4, s{sTAG}")
    if o.get("wb", 0): A("s_barrier")
    A("s_waitcnt vmcnt(0)")
    A(f"s_mov_b64 exec, 3\nbuffer_store_dword v4, v3, s[{rF}:{rF+3}], s48 offen sc1\ns_mov_b64 exec, -1")
    stamp(A, o, 2)
    if o.get("spearly", 0): A("s_cmp_ge_u32 s2, 224\ns_cbranch_scc1 L_c_g2")
    A("s_barrier")

def common_setup(A, o):
    A(f"s_add_u32 s{rF}, s{sWS}, {WS_FLG}\ns_addc_u32 s{rF+1}, s{sWS+1}, 0\ns_mov_b32 s{rF+2}, {FLG_BYTES}\ns_mov_b32 s{rF+3}, 0x20000")
    A(f"s_load_dword s{sTAG}, s[{rF}:{rF+1}], {GEN_OFF}")
    A(f"s_and_b32 s{sXCD}, s2, 7\ns_lshr_b32 s{sN}, s2, 3")
    A(f"s_mul_i32 s66, s{sN}, 37\ns_lshr_b32 s66, s66, 8\ns_mul_i32 s67, s66, 7\ns_sub_u32 s{sN7}, s{sN}, s67")
    A(f"s_and_b32 s67, s{sXCD}, 3\ns_mul_i32 s{sFT}, s67, 7\ns_add_u32 s{sFT}, s{sFT}, s{sN7}")
    A(f"s_and_b32 s{sDT2}, s{sXCD}, 4\ns_add_u32 s{sDT1}, s{sDT2}, s66")
    A(f"s_and_b32 s{sHK}, s{sN}, 1\ns_lshl_b32 s{sST}, s67, 2\ns_bfe_u32 s66, s{sN}, 0x20001\ns_add_u32 s{sST}, s{sST}, s66")
    A(f"s_lshr_b32 s66, s{sN}, 3\ns_add_u32 s{sDT2}, s{sDT2}, s66")
def make_tag(A):
    A(f"s_mul_i32 s{sTAG}, s{sTAG}, 0x9e3779b1\ns_add_u32 s{sTAG}, s{sTAG}, 0x7f4a7c15")

def substep(A, o, cur, nxt, slot, ks, barrier):
    cw, ch = cur; nw, nh = nxt
    hi = slot >= 2
    base = (slot % 2) * 32768
    rd = []
    def wread(fb):
        for r_ in range(2):
            rd.append(f"ds_read_b64_tr_b16 v[{nw+4*fb+2*r_}:{nw+4*fb+2*r_+1}], v{VWA+4*hi+fb} offset:{base + ks*8192 + r_*4096}")
    def hread(t):
        rd.append(f"ds_read_b128 v[{nh+4*t}:{nh+4*t+3}], v{VHA+hi} offset:{base + 16384 + ks*8192 + t*1024}")
    wread(0)
    for t in range(4): hread(t)
    for fb in range(1, 4): wread(fb)
    A("s_waitcnt lgkmcnt(0)")
    if barrier: A("s_barrier")
    k = 0
    for m in range(16):
        fb, t = m // 4, m % 4
        if o.get("snake", 1) and fb % 2: t = 3 - t
        a = ACC + 16*fb + 4*t
        A(f"v_mfma_f32_16x16x32_bf16 v[{a}:{a+3}], v[{cw+4*fb}:{cw+4*fb+3}], v[{ch+4*t}:{ch+4*t+3}], v[{a}:{a+3}]")
        for _ in range(o.get("rdper", 1)):
            if k < len(rd): A(rd[k]); k += 1

WB, HB = 96, (128, 160)
def rd_w(slot, fb):
    hi = slot >= 2; base = (slot % 2) * 32768
    return [f"ds_read_b64_tr_b16 v[{WB+8*fb+4*ks+2*r_}:{WB+8*fb+4*ks+2*r_+1}], v{VWA+4*hi+fb} offset:{base + ks*8192 + r_*4096}" for ks in range(2) for r_ in range(2)]
def rd_h(slot, hb):
    hi = slot >= 2; base = (slot % 2) * 32768
    return [f"ds_read_b128 v[{hb+16*ks+4*t}:{hb+16*ks+4*t+3}], v{VHA+hi} offset:{base + 16384 + ks*8192 + t*1024}" for t in range(4) for ks in range(2)]
def step_kk(A, o, slot):
    hb, hn = HB[slot % 2], HB[1 - slot % 2]
    nx = (slot + 1) % R
    first = rd_w(slot, 1) + rd_w(slot, 2) + rd_w(slot, 3)
    second = rd_w(nx, 0) + rd_h(nx, hn)
    m = 0; flip = 0
    for fb in range(4):
        if fb == 0: A("s_waitcnt lgkmcnt(0)")
        if fb == 1: A("s_waitcnt lgkmcnt(4)")
        if fb == 2: A("s_waitcnt lgkmcnt(0)\ns_barrier")
        for t in (range(4) if fb % 2 == 0 else range(3, -1, -1)):
            a = ACC + 16*fb + 4*t
            for ks in ((1, 0) if flip else (0, 1)):
                w = WB + 8*fb + 4*ks; h = hb + 16*ks + 4*t
                A(f"v_mfma_f32_16x16x32_bf16 v[{a}:{a+3}], v[{w}:{w+3}], v[{h}:{h+3}], v[{a}:{a+3}]")
                if m < 12: A(first[m])
                elif 16 <= m < 28: A(second[m-16])
                m += 1
            flip ^= 1

def cons_prologue(A, o, g1):
    tile = sFT if g1 else sST
    srd(A, rM, sB1 if g1 else sB2, 0, (F if g1 else S)*2)
    A("s_and_b32 s62, s3, 1\ns_lshr_b32 s63, s3, 1")
    A("v_lshrrev_b32 v3, 4, v2\nv_and_b32 v4, 15, v2")
    A(f"s_lshl_b32 s50, s{tile}, 8\ns_lshl_b32 s51, s63, 7\ns_add_u32 s50, s50, s51")
    if not g1: A(f"s_lshl_b32 s51, s{sHK}, 6\ns_add_u32 s50, s50, s51")
    A("v_lshlrev_b32 v5, 3, v3")
    nb = 4 if g1 else 2
    for fb in range(nb): A(f"buffer_load_dwordx2 v[{20+2*fb}:{21+2*fb}], v5, s[{rM}:{rM+3}], s50 offen offset:{fb*32}")
    if not g1:
        A(f"s_lshl_b32 s54, s2, 10\ns_lshl_b32 s55, s3, 8\ns_add_u32 s54, s54, s55\ns_add_u32 s54, s54, {S3_OFF}\ns_xor_b32 s55, s54, 0x2000")
        A(f"s_getreg_b32 s64, hwreg(HW_REG_XCC_ID, 0, 4)\ns_add_u32 s64, s64, 1\ns_add_u32 s64, s64, s{sTAG}\nv_mov_b32 v6, s64\nv_mov_b32 v7, 128")
        A(f"s_mov_b64 exec, 1\nbuffer_store_dword v6, v7, s[{rF}:{rF+3}], s54 offen sc1\ns_mov_b64 exec, -1")
    A("v_lshrrev_b32 v6, 2, v4\nv_lshl_add_u32 v7, v3, 2, v6")
    A("v_and_b32 v18, 7, v7\nv_lshlrev_b32 v7, 8, v7\nv_and_b32 v19, 3, v4\nv_lshl_add_u32 v7, v19, 3, v7")
    A("s_lshl_b32 s50, s63, 2")
    if not g1: A(f"s_lshl_b32 s51, s{sHK}, 1\ns_xor_b32 s50, s50, s51\ns_xor_b32 s50, s50, 2")
    for fb in range(4):
        A(f"s_xor_b32 s51, s50, {fb}\nv_xor_b32 v19, s51, v18\nv_lshl_add_u32 v{VWA+fb}, v19, 5, v7\nv_add_u32 v{VWA+4+fb}, 0x10000, v{VWA+fb}")
    A(f"s_lshl_b32 s50, s62, 12\nv_lshl_add_u32 v{VHA}, v2, 4, s50\nv_add_u32 v{VHA+1}, 0x10000, v{VHA}")
    A(f"s_waitcnt vmcnt({0 if g1 else 1})")
    for fb in range(4):
        for r_ in range(4):
            a = ACC + 16*fb + r_
            if fb >= 4 - nb:
                src = 20 + 2*(fb - (4 - nb)) + r_//2
                A(f"v_lshlrev_b32 v{a}, 16, v{src}" if r_ % 2 == 0 else f"v_and_b32 v{a}, 0xffff0000, v{src}")
                if g1: A(f"v_mul_f32 v{a}, {f32(GS)}, v{a}")
            else: A(f"v_mov_b32 v{a}, 0")
            for t in range(1, 4): A(f"v_mov_b32 v{a+4*t}, v{a}")
    if g1:
        srd(A, rS, sWS, WS_U, U_BYTES)
        A(f"s_lshl_b32 s48, s{sFT}, 2\ns_lshl_b32 s49, s63, 1\ns_add_u32 s48, s48, s49\ns_lshl_b32 s48, s48, 13\ns_mul_i32 s49, s{sDT1}, {USTR}\ns_add_u32 s48, s48, s49")
        A("s_lshl_b32 s49, s62, 12\ns_add_u32 s48, s48, s49\ns_add_u32 s49, s48, 8192\nv_lshlrev_b32 v4, 4, v2")
        A(f"v_mov_b32 v22, {f32(GK)}\nv_mov_b32 v23, v22\nv_mov_b32 v24, {f32(GS)}\nv_mov_b32 v25, v24")
        A(f"s_cmp_ge_u32 s{sFT}, 14\ns_cselect_b32 s52, 1, 0\ns_cselect_b32 s53, 14, 0\ns_sub_u32 s53, s{sFT}, s53\ns_lshl_b32 s53, s53, {S2S}")
        A(f"s_lshl_b32 s50, s{sDT1}, 1\ns_add_u32 s52, s52, s50\ns_mul_i32 s52, s52, {S2R*2048}\ns_add_u32 s52, s52, s53\ns_add_u32 s52, s52, {S2_OFF}")
        A(f"v_lshlrev_b32 v20, 11, v2\nv_mov_b32 v21, s{sTAG}")
    else:
        srd(A, rS, sOUT, 0, S*D*2)
        A("v_lshlrev_b32 v3, 13, v3\nv_lshl_add_u32 v20, v4, 3, v3\nv_add_u32 v21, 4096, v20")
        A(f"s_lshl_b32 s56, s{sST}, 7\ns_lshl_b32 s57, s63, 6\ns_add_u32 s56, s56, s57\ns_lshl_b32 s57, s{sHK}, 5\ns_add_u32 s56, s56, s57\ns_lshl_b32 s56, s56, 11")
        A(f"s_lshl_b32 s57, s{sDT2}, 8\ns_add_u32 s56, s56, s57\ns_lshl_b32 s57, s62, 7\ns_add_u32 s56, s56, s57")
        A("s_xor_b32 s52, s56, 0x10000\ns_add_u32 s53, s52, 32768\ns_add_u32 s57, s56, 32768")
        A(f"v_mov_b32 v22, 0\nv_mov_b32 v23, s{sTAG}")
    A(f"s_mov_b32 s{sPH}, {1 if g1 else 2}\ns_mov_b32 s65, {(N1 if g1 else N2)//R}")

def cons_loop(A, o):
    A("L_c_main:")
    A("s_barrier")
    A("s_barrier")
    A(f"v_mov_b32 v5, 128\ns_cmp_eq_u32 s{sPH}, 1\ns_cbranch_scc1 L_c_noid")
    A(f"buffer_load_dword v30, v5, s[{rF}:{rF+3}], s55 offen sc1")
    stamp(A, o, 7, 2)
    A("s_branch L_c_go\nL_c_noid:")
    stamp(A, o, 3, 0)
    A("L_c_go:")
    X, Y = (XW, XH), (YW, YH)
    kk = o.get("kk", 1)
    if kk:
        for x in rd_w(0, 0) + rd_h(0, HB[0]): A(x)
    else:
        for fb in range(4):
            for r_ in range(2): A(f"ds_read_b64_tr_b16 v[{XW+4*fb+2*r_}:{XW+4*fb+2*r_+1}], v{VWA+fb} offset:{r_*4096}")
        for t in range(4): A(f"ds_read_b128 v[{XH+4*t}:{XH+4*t+3}], v{VHA} offset:{16384+t*1024}")
    if o.get("cprio"): A(f"s_setprio {o['cprio']}")
    A(".p2align 6")
    for _ in range(o.get("cpad", 0)): A("s_nop 0")
    A("L_c_loop:")
    for r_ in range(R):
        if kk: step_kk(A, o, r_); continue
        substep(A, o, X, Y, r_, 1, False)
        substep(A, o, Y, X, (r_+1) % R, 0, True)
    A("s_sub_u32 s65, s65, 1\ns_cmp_lg_u32 s65, 0\ns_cbranch_scc1 L_c_loop")
    A(f"s_waitcnt lgkmcnt(0)\ns_cmp_eq_u32 s{sPH}, 2\ns_cbranch_scc1 L_c_epi2")

def cons_epi1(A, o):
    stamp(A, o, 4, 1)
    A("s_nop 1")
    T = XW
    pr = lambda r_: f"v[{r_}:{r_+1}]"
    for kbl in range(2):
        for t in range(4):
            regs = [ACC + 16*(2*kbl + h) + 4*t + r_ for h in range(2) for r_ in range(4)]
            tb = T + ((kbl*4 + t) % 2) * 16
            for e in range(0, 8, 2): A(f"v_pk_fma_f32 {pr(tb+e)}, {pr(regs[e])}, {pr(regs[e])}, v[22:23]")
            for e in range(0, 8, 2): A(f"v_pk_mul_f32 {pr(tb+e)}, {pr(tb+e)}, {pr(regs[e])} neg_lo:[1,0] neg_hi:[1,0]")
            for e in range(8): A(f"v_exp_f32 v{tb+e}, v{tb+e}")
            for e in range(0, 8, 2): A(f"v_pk_fma_f32 {pr(tb+e)}, {pr(tb+e)}, v[24:25], v[24:25]")
            for e in range(8): A(f"v_rcp_f32 v{tb+e}, v{tb+e}")
            for e in range(0, 8, 2): A(f"v_pk_mul_f32 {pr(tb+e)}, {pr(tb+e)}, {pr(regs[e])}")
            q = 4*kbl + t; d = 128 + 4*q
            for e in range(4): A(f"v_cvt_pk_bf16_f32 v{d+e}, v{tb+2*e}, v{tb+2*e+1}")
            ul = o.get("ulate", 0)
            for qq in ([q] if q > ul else range(ul + 1) if q == ul else []):
                A(f"buffer_store_dwordx4 v[{128+4*qq}:{131+4*qq}], v4, s[{rS}:{rS+3}], s{48+qq//4} offen offset:{(qq%4)*1024} sc1")
    stamp(A, o, 5)
    A("s_waitcnt vmcnt(0)\ns_barrier")
    A("s_cmp_lg_u32 s3, 0\ns_cbranch_scc1 L_c_g2")
    A(f"s_mov_b64 exec, {(1 << S2R) - 1}\nbuffer_store_dword v21, v20, s[{rF}:{rF+3}], s52 offen sc1\ns_mov_b64 exec, -1")
    stamp(A, o, 6)

def cons_epi2(A, o):
    A("L_c_epi2:")
    stamp(A, o, 8, 3)
    def oaddr(sb, r_, base): return f"v{20 + r_//2}, s[{rS}:{rS+3}], s{base + sb} offen offset:{(r_%2)*2048}"
    A("s_waitcnt vmcnt(0)\nv_readfirstlane_b32 s61, v30")
    for sb in range(2):
        for r_ in range(4):
            a = ACC + 16*sb + r_; d = YW + 8*sb + 2*r_
            A(f"v_cvt_pk_bf16_f32 v{d}, v{a}, v{a+4}\nv_cvt_pk_bf16_f32 v{d+1}, v{a+8}, v{a+12}")
    def send(flag):
        for sb in range(2):
            for r_ in range(4):
                d = YW + 8*sb + 2*r_
                A(f"buffer_store_dwordx2 v[{d}:{d+1}], {oaddr(sb, r_, 52)} {flag}")
        A("s_waitcnt vmcnt(0)")
        A(f"s_mov_b64 exec, 1\nbuffer_store_dword v23, v22, s[{rF}:{rF+3}], s54 offen {flag}")
    A("s_cmp_eq_u32 s61, s64\ns_cbranch_scc0 L_c_far")
    send("")
    A("s_branch L_c_sent\nL_c_far:")
    send("sc1")
    A("L_c_sent:")
    poll(A, "L_c_p3", f"buffer_load_dword v18, v22, s[{rF}:{rF+3}], s55 offen sc1", [18], mask=1)
    stamp(A, o, 9)
    for sb in range(2):
        for r_ in range(4):
            d = XW + 8*sb + 2*r_
            A(f"buffer_load_dwordx2 v[{d}:{d+1}], {oaddr(sb, r_, 56)} sc1")
    for sb in range(2):
        for r_ in range(4):
            q = 4*sb + r_
            A("s_waitcnt vmcnt(7)")
            a = ACC + 32 + 16*sb + r_; d = XW + 8*sb + 2*r_; t_ = XW + 16 + 4*(q % 2)
            A(f"v_lshlrev_b32 v{t_}, 16, v{d}\nv_and_b32 v{t_+1}, 0xffff0000, v{d}\nv_lshlrev_b32 v{t_+2}, 16, v{d+1}\nv_and_b32 v{t_+3}, 0xffff0000, v{d+1}")
            for t in range(4): A(f"v_add_f32 v{a+4*t}, v{a+4*t}, v{t_+t}")
            A(f"v_cvt_pk_bf16_f32 v{d}, v{a}, v{a+4}\nv_cvt_pk_bf16_f32 v{d+1}, v{a+8}, v{a+12}")
            A(f"buffer_store_dwordx2 v[{d}:{d+1}], {oaddr(sb, r_, 56)} {o.get('fin', '')}")
    if o.get("wbl"):
        A(f"s_cmp_lg_u32 s3, 3\ns_cbranch_scc1 L_c_nwb\ns_waitcnt vmcnt(0)\nbuffer_wbl2 sc1\nL_c_nwb:")
    if o.get("stamp"):
        A("s_cmp_lg_u32 s3, 0\ns_cbranch_scc1 L_end\ns_waitcnt vmcnt(0)")
        stamp(A, o, 10)
        stamp_flush(A, o, range(11))
        A("s_sub_u32 s94, s96, s94\nv_mov_b32 v29, s94\nglobal_store_dword v28, v29, s[92:93] offset:56")
        A("s_sub_u32 s98, s100, s98\nv_mov_b32 v29, s98\nglobal_store_dword v28, v29, s[92:93] offset:60")
        if o.get("spinend"):
            A(f"s_cmp_lg_u32 s2, {o.get('spinwg', 0)}\ns_cbranch_scc1 L_end\ns_sub_u32 s60, s{70 + 2*o.get('spinq', 0)}, s70\ns_lshl_b32 s60, s60, 2\ns_add_u32 s70, s70, s60\ns_add_u32 s70, s70, 20000\ns_mov_b32 s59, 200000")
            A("L_sp:\ns_sub_u32 s59, s59, 1\ns_cbranch_scc1 L_end\ns_memrealtime s[72:73]\ns_waitcnt lgkmcnt(0)\ns_sub_u32 s72, s72, s70\ns_cmp_lt_i32 s72, 0\ns_cbranch_scc1 L_sp")
    A("s_endpgm")

def ld_waddr(A, g1):
    pitch = P1 if g1 else P2
    srd(A, rW, sW1 if g1 else sW2, 0, S*F*2)
    A(f"s_mov_b32 s48, {pitch}\ns_lshl_b32 s49, s62, 4\ns_lshl_b32 s50, s{sFT if g1 else sST}, 8")
    for j in range(4):
        A(f"v_add_u32 v6, {4*(j%2)}, v3\nv_xor_b32 v6, v6, v5\nv_lshl_add_u32 v6, v6, 5, v4")
        A(f"s_add_u32 s51, s49, {4*j}\nv_add_u32 v7, s51, v3\nv_mul_lo_u32 v7, v7, s48\nv_add3_u32 v{8+j}, v7, v6, s50")
        if j: A(f"v_subrev_u32 v{8+j}, {j*1024}, v{8+j}")
    A("s_mov_b32 s50, 0" if g1 else f"s_mul_i32 s50, s{sHK}, {N2*64*P2}")
    if GLOB: A(f"s_add_u32 s64, s{sW1 if g1 else sW2}, s50\ns_addc_u32 s65, s{(sW1 if g1 else sW2)+1}, 0")
def ld_haddr(A, g1):
    srd(A, rH, sWS, WS_H if g1 else WS_U, H_BYTES if g1 else U_BYTES)
    A(f"s_mul_i32 s48, s{sDT1 if g1 else sDT2}, {HSTR if g1 else USTR}\ns_add_u32 s48, s48, s52\nv_lshl_add_u32 v12, v2, 4, s48")
    A("s_mov_b32 s51, 0" if g1 else f"s_mul_i32 s51, s{sHK}, {N2*16384}")
    if GLOB: A(f"s_add_u32 s66, s{rH}, s51\ns_addc_u32 s67, s{rH+1}, 0")
def issue_w(A, g1, m0):
    A(m0 + "\ns_nop 0")
    if GLOB:
        for j in range(4): A(f"global_load_lds_dwordx4 v{8+j}, s[64:65] offset:{j*1024}")
        A(f"s_add_u32 s64, s64, {64*(P1 if g1 else P2)}\ns_addc_u32 s65, s65, 0")
        return
    for j in range(4): A(f"buffer_load_dwordx4 v{8+j}, s[{rW}:{rW+3}], s50 offen offset:{j*1024} lds")
    A(f"s_add_u32 s50, s50, {64*(P1 if g1 else P2)}")
def issue_h(A, m0, flag="sc1"):
    A(m0 + "\ns_nop 0")
    if GLOB:
        for j in range(4): A(f"global_load_lds_dwordx4 v12, s[66:67] offset:{j*1024} {flag}")
        A("s_add_u32 s66, s66, 16384\ns_addc_u32 s67, s67, 0")
        return
    for j in range(4): A(f"buffer_load_dwordx4 v12, s[{rH}:{rH+3}], s51 offen offset:{j*1024} {flag} lds")
    A("s_add_u32 s51, s51, 16384")
def ld_main(A, o, g1, wdone=4, pre_bar=None, post_bar=None, after_h=None, after_issue=None, slot=None):
    N = N1 if g1 else N2; P = "1" if g1 else "2"
    cnt = []
    for z in range(R):
        if z >= wdone: issue_w(A, g1, f"s_add_u32 m0, s52, {z*32768}")
        issue_h(A, f"s_add_u32 m0, s52, {z*32768 + 16384}")
        cnt.append(8 if z >= wdone else 4)
    if after_h: after_h()
    A(f"s_waitcnt vmcnt({sum(cnt[1:])})")
    stamp(A, o, 3 if g1 else 6)
    A("s_barrier")
    for n, c in ((0, sum(cnt[2:])), (1, cnt[3] + 8)):
        A(f"s_waitcnt vmcnt({c})\ns_barrier")
        issue_w(A, g1, f"s_add_u32 m0, s52, {n*32768}"); issue_h(A, "s_add_u32 m0, m0, 16384")
        if after_issue and g1: after_issue()
        if slot: slot(A)
    A("s_mov_b32 s53, 2")
    if o.get("lalign", 6): A(f".p2align {o.get('lalign', 6)}")
    for _ in range(o.get("lpad", 0)): A("s_nop 0")
    A(f"L_l_loop{P}:")
    A(f"s_and_b32 s54, s53, {R-1}\ns_lshl_b32 s54, s54, 15")
    if o.get("wrapw"):
        A(f"s_and_b32 s58, s53, 3\ns_mul_i32 s58, s58, {64*(P1 if g1 else P2)}\ns_add_u32 s64, s{sW1 if g1 else sW2}, s58\ns_addc_u32 s65, s{(sW1 if g1 else sW2)+1}, 0")
    if o.get("wraph"):
        A(f"s_add_u32 s66, s{rH}, s54\ns_addc_u32 s67, s{rH+1}, 0")
    A("s_waitcnt vmcnt(16)")
    if pre_bar: pre_bar()
    A("s_barrier")
    if post_bar: post_bar()
    if o.get("series"): A(f"s_memrealtime s[90:91]\ns_memtime s[88:89]\ns_add_u32 m0, s53, {0 if g1 else 32}\ns_waitcnt lgkmcnt(0)\nv_writelane_b32 v26, s90, m0\nv_writelane_b32 v27, s88, m0")
    issue_w(A, g1, "s_add_u32 m0, s52, s54"); issue_h(A, "s_add_u32 m0, m0, 16384")
    if after_issue: after_issue()
    if slot: slot(A)
    m = o.get("m" + P, 0 if g1 else 16)
    if not m:
        A(f"s_add_u32 s53, s53, 1\ns_cmp_lt_u32 s53, {N-R}\ns_cbranch_scc1 L_l_loop{P}")
        return
    A(f"s_add_u32 s53, s53, 1\ns_cmp_lt_u32 s53, {m}\ns_cbranch_scc1 L_l_loop{P}")
    A("s_waitcnt vmcnt(16)\ns_barrier")
    if slot: slot(A)
    A(f".p2align 6\nL_l_loopb{P}:")
    A(f"s_and_b32 s54, s53, {R-1}\ns_lshl_b32 s54, s54, 15")
    A("s_waitcnt vmcnt(8)\ns_barrier")
    issue_w(A, g1, "s_add_u32 m0, s52, s54"); issue_h(A, "s_add_u32 m0, m0, 16384")
    if slot: slot(A)
    A(f"s_add_u32 s53, s53, 1\ns_cmp_lt_u32 s53, {N-R}\ns_cbranch_scc1 L_l_loopb{P}")

def w2unit(A, dst, nl, sbase, r0, other, cnt, col0):
    sh = nl.bit_length() - 1
    A(f"s_lshr_b32 s58, s{sXCD}, 2" + ("\ns_xor_b32 s58, s58, 1" if other else "") + f"\ns_add_u32 s58, s58, {r0}\ns_and_b32 s59, s{sXCD}, 3\ns_lshl_b32 s59, s59, 10\ns_add_u32 s59, s59, {col0*128}")
    A(f"v_and_b32 v{dst}, {nl-1}, v2\nv_lshl_add_u32 v{dst}, v{dst}, 7, s59\nv_lshrrev_b32 v6, {sh}, v2\nv_cmp_gt_u32 vcc, {cnt}, v6\nv_add_u32 v6, s{sbase}, v6")
    A(f"v_and_b32 v7, 1, v6\nv_mul_u32_u24 v7, 1792, v7\nv_and_b32 v6, -2, v6\nv_add3_u32 v7, v7, v6, s58\nv_lshl_add_u32 v{dst}, v7, 12, v{dst}")
    A(f"v_mov_b32 v6, 0x7fffffff\nv_cndmask_b32 v{dst}, v6, v{dst}, vcc")
def sc2_setup(A, j0):
    A(f"s_and_b32 s98, s{sN}, 1\ns_mul_i32 s98, s98, 1792\ns_and_b32 s99, s{sN}, -2\ns_add_u32 s98, s98, s99\ns_lshr_b32 s99, s{sXCD}, 2\ns_add_u32 s98, s98, s99\ns_add_u32 s98, s98, {896 + 32*j0}\ns_lshl_b32 s98, s98, 12")
    A(f"s_and_b32 s99, s{sXCD}, 3\ns_lshl_b32 s99, s99, 10\ns_add_u32 s98, s98, s99\ns_lshl_b32 s99, s62, 8\ns_add_u32 s98, s98, s99\ns_add_u32 s98, s98, s{sW2}\ns_addc_u32 s99, s{sW2+1}, 0\ns_mov_b32 s97, 20")
def sc2_unit(A):
    for q in range(4): A(f"s_load_dword s96, s[98:99], {64*q}")
    A(f"s_add_u32 s98, s98, {32*P2}\ns_addc_u32 s99, s99, 0")
_lab = [0]
def sc2_slot(A):
    _lab[0] += 1
    A(f"s_cmp_eq_u32 s97, 0\ns_cbranch_scc1 L_l_sc{_lab[0]}")
    sc2_unit(A)
    A(f"s_sub_u32 s97, s97, 1\nL_l_sc{_lab[0]}:")
def w2rows(A, dst, srow):
    A(f"v_and_b32 v{dst}, 31, v2\nv_lshlrev_b32 v{dst}, 7, v{dst}\nv_lshrrev_b32 v7, 5, v2\nv_mul_u32_u24 v7, 1792, v7\nv_add_u32 v7, s{srow}, v7\nv_lshl_add_u32 v{dst}, v7, 12, v{dst}")

def s2line(A, dst, tmp):
    A(f"s_lshl_b32 s{dst}, s{sDT2}, 1\ns_add_u32 s{dst}, s{dst}, s{sHK}\ns_mul_i32 s{dst}, s{dst}, {S2R}\ns_and_b32 s{tmp}, s{sST}, {S2R-1}\ns_add_u32 s{dst}, s{dst}, s{tmp}\ns_lshl_b32 s{dst}, s{dst}, 11\ns_add_u32 s{dst}, s{dst}, {S2_OFF}")
def touch_flags(A, o, worker):
    if not o.get("ftouch", 1): return
    lab = "L_l_nt" + ("w" if worker else "s")
    A(f"s_cmp_lg_u32 s3, 7\ns_cbranch_scc1 {lab}")
    if worker: A(f"buffer_load_dword v31, v13, s[{rF}:{rF+3}], s56 offen sc1")
    s2line(A, 58, 59)
    A(f"v_lshl_add_u32 v21, v2, 7, s58")
    A(f"s_lshl_b32 s58, s2, 10\ns_add_u32 s58, s58, {S3_OFF - 16*128}\nv_lshl_add_u32 v22, v2, 7, s58\nv_cmp_gt_u32 vcc, 16, v2\ns_nop 1\nv_cndmask_b32 v21, v22, v21, vcc")
    A(f"s_mov_b64 exec, 0xffffff\nbuffer_load_dword v31, v21, s[{rF}:{rF+3}], 0 offen sc1\ns_mov_b64 exec, -1\n{lab}:")

def gen_loader(A, o):
    A("L_loader:")
    if o.get("lprio"): A(f"s_setprio {o['lprio']}")
    A("s_sub_u32 s62, s3, 4\ns_lshl_b32 s52, s62, 12\nv_and_b32 v2, 63, v0")
    A("v_lshrrev_b32 v3, 4, v2\nv_and_b32 v4, 15, v2\nv_lshrrev_b32 v5, 1, v4\nv_and_b32 v4, 1, v4\nv_lshlrev_b32 v4, 4, v4")
    A("s_waitcnt lgkmcnt(0)")
    common_setup(A, o)
    nr = o.get("lnrows", 3)
    aff = o.get("aff", 1); n2 = o.get("n2", 0)
    if aff:
        dup = o.get("dup", 1)
        kk = 18 if dup else 14; npair = 3 if dup else 4
        A(f"v_mul_u32_u24 v13, {(65536 + kk - 1)//kk}, v2\nv_lshrrev_b32 v13, 16, v13\nv_mul_u32_u24 v14, {kk}, v13\nv_sub_u32 v14, v2, v14")
        A(f"s_and_b32 s48, s{sXCD}, 3\ns_lshr_b32 s49, s{sXCD}, 2\ns_mul_i32 s58, s48, 14\ns_add_u32 s59, s48, 1\ns_and_b32 s59, s59, 3\ns_lshl_b32 s59, s59, 1")
        A("v_cmp_gt_u32 vcc, 14, v14\nv_add_u32 v16, s58, v14\nv_subrev_u32 v17, 14, v14\nv_lshrrev_b32 v18, 1, v17\nv_lshlrev_b32 v18, 3, v18\nv_and_b32 v17, 1, v17\nv_add3_u32 v17, v17, v18, s59")
        A("v_cmp_gt_u32 s[60:61], 14, v17\nv_add_u32 v17, s58, v17\nv_cndmask_b32 v16, v17, v16, vcc\ns_or_b64 s[60:61], s[60:61], vcc")
        A("s_xor_b32 s58, s49, 1\nv_mov_b32 v17, s58\nv_mov_b32 v18, s49\nv_cndmask_b32 v17, v17, v18, vcc\nv_lshl_add_u32 v17, v13, 1, v17")
        A(f"v_cmp_gt_u32 vcc, {npair}, v13\ns_and_b64 vcc, vcc, s[60:61]\nv_mul_u32_u24 v17, {P1}, v17\nv_lshl_add_u32 v13, v16, 7, v17\nv_mov_b32 v17, 0x7fffffff\nv_cndmask_b32 v13, v17, v13, vcc")
        skip = o.get("skip", 0)
        A(f"s_sub_u32 s48, s{sN}, {skip}\ns_cselect_b32 s49, 0x7ff00000, 0\ns_mul_i32 s48, s48, {nr}\ns_add_u32 s48, s48, s62\ns_mul_i32 s55, s48, {2*npair*P1}\nv_mov_b32 v25, v13")
        if skip: A("s_cmp_lg_u32 s49, 0\ns_cselect_b32 s55, s49, s55")
    else:
        A(f"s_mul_i32 s48, s2, {nr}\ns_add_u32 s48, s48, s62\ns_mul_i32 s55, s48, {P1}\nv_min_u32 v13, 55, v2\nv_lshlrev_b32 v13, 7, v13")
    def lnpf(r_, lab):
        if nr == 0: return
        if nr < 4: A(f"s_cmp_ge_u32 s62, {nr}\ns_cbranch_scc1 {lab}")
        A(f"buffer_load_dword v31, v13, s[{r_}:{r_+3}], s55 offen\n{lab}:")
    A("s_cmp_ge_u32 s2, 224\ns_cbranch_scc1 L_l_spare")
    srd(A, rW, sW1, 0, S*F*2)
    A("s_barrier")
    lnpf(rW, "L_l_nopf")
    ld_waddr(A, True)
    ld_haddr(A, True)
    A(f"s_and_b32 s56, s{sDT1}, 6\ns_and_b32 s59, s{sXCD}, 1\ns_add_u32 s56, s56, s59\ns_lshl_b32 s56, s56, {15 - S1L}\ns_add_u32 s56, s56, {S1_OFF}\nv_lshrrev_b32 v13, {S1L - 2}, v2\nv_lshlrev_b32 v13, 7, v13\nv_and_b32 v14, {(1 << (S1L - 2)) - 1}, v2\nv_lshl_add_u32 v13, v14, 4, v13")
    touch_flags(A, o, True)
    A("s_waitcnt lgkmcnt(0)")
    make_tag(A)
    wa, wb, wc = o.get("wa", 0), o.get("wb", 0), o.get("wc", 4)
    prog = o.get("prog", 8)
    iw = lambda z: issue_w(A, True, f"s_add_u32 m0, s52, {z*32768}")
    A("s_barrier")
    for z in range(wa): iw(z)
    if wb: A("s_barrier")
    for z in range(wa, wa + wb): iw(z)
    A("s_barrier")
    for z in range(wa + wb, wa + wb + wc): iw(z)
    p1 = f"buffer_load_dwordx4 v[16:19], v13, s[{rF}:{rF+3}], s56 offen sc1"
    def gen_store(lab):
        A(f"s_cmp_lg_u32 s2, 0\ns_cbranch_scc1 {lab}")
        A(f"v_mov_b32 v16, s{sTAG}\nv_mov_b32 v17, 0\ns_mov_b64 exec, 1\nbuffer_store_dword v16, v17, s[{rF}:{rF+3}], 0 offen offset:{GEN_OFF} sc1\ns_mov_b64 exec, -1")
    spf = o.get("spf", 0)
    def sc_pf():
        for q in range(4): A(f"s_load_dword s96, s[48:49], {64*q}")
        A(f"s_sub_u32 s48, s48, {28*P2}\ns_subb_u32 s49, s49, 0")
    if spf:
        A(f"s_and_b32 s48, s{sN}, 1\ns_mul_i32 s48, s48, 1792\ns_and_b32 s49, s{sN}, -2\ns_add_u32 s48, s48, s49\ns_lshr_b32 s49, s{sXCD}, 2\ns_add_u32 s48, s48, s49\ns_add_u32 s48, s48, {256 + 31*28}\ns_lshl_b32 s48, s48, 12")
        A(f"s_and_b32 s49, s{sXCD}, 3\ns_lshl_b32 s49, s49, 10\ns_add_u32 s48, s48, s49\ns_lshl_b32 s49, s62, 8\ns_add_u32 s48, s48, s49\ns_add_u32 s48, s48, s{sW2}\ns_addc_u32 s49, s{sW2+1}, 0")
    stamp(A, o, 1)
    A("s_mov_b32 s57, 0xff\ns_mov_b32 s63, 0xff\ns_cmp_lg_u32 s3, 4\ns_cbranch_scc1 L_l_s1seen")
    poll(A, "L_l_p1", p1, [16, 17, 18, 19], mask=(1 << (2*prog)) - 1 if prog else None)
    stamp(A, o, 2)
    if o.get("stamp"): A("s_sub_u32 s84, 0x200000, s59")
    if prog: A(f"s_mov_b32 s57, {prog-4}\ns_mov_b32 s63, {prog-6}\ns_mov_b32 s50, -1\ns_mov_b32 s51, 0xffffff")
    else: gen_store("L_l_s1seen")
    A("L_l_s1seen:\ns_barrier")
    def late_check():
        A("s_cmp_lg_u32 s53, s57\ns_cbranch_scc1 L_l_nochk")
        if o.get("spearly", 0):
            poll(A, "L_l_p1b", p1, [16, 17, 18, 19], pre=16, mask="s[50:51]")
            A("s_cmp_eq_u32 s57, 24\ns_mov_b32 s57, 24\ns_mov_b32 s63, 22\ns_mov_b32 s51, -1\ns_cbranch_scc0 L_l_nochk")
        else: poll(A, "L_l_p1b", p1, [16, 17, 18, 19], pre=16)
        gen_store("L_l_nochk")
        A("L_l_nochk:")
    def late_issue():
        A(f"s_cmp_lg_u32 s53, s63\ns_cbranch_scc1 L_l_noiss\n{p1}\nL_l_noiss:")
    ld_main(A, o, True, wa + wb + wc, late_check if prog else None, late_issue if prog else None, after_issue=sc_pf if spf else None)
    if spf: A('s_mov_b32 s46, s48\ns_mov_b32 s47, s49')
    ld_waddr(A, False)
    post = o.get("post", 1)
    inl = o.get("inl", 1); sp2 = o.get("spf2", 0)
    if inl:
        A(f"s_mul_i32 s48, s{sN}, 23")
        w2unit(A, 13, 2, 48, 256, True, 23, 2)
        nw = 4
        if sp2: sc2_setup(A, 0)
    elif post:
        nw = o.get("pw", 4)
        A(f"s_mul_i32 s48, s{sN}, {8*nw}\ns_lshl_b32 s49, s62, 3\ns_add_u32 s49, s49, s48\ns_lshr_b32 s58, s{sXCD}, 2\ns_and_b32 s59, s{sXCD}, 3\ns_lshl_b32 s59, s59, 10")
        def rowaddr(dst, pp, par):
            A(f"v_and_b32 v7, 1, v{pp}\nv_mul_u32_u24 v7, 1792, v7\nv_and_b32 v{pp}, -2, v{pp}\nv_add3_u32 v7, v7, v{pp}, s{par}\nv_add_u32 v7, 256, v7\nv_lshl_add_u32 v{dst}, v7, 12, v{dst}")
        A("v_and_b32 v13, 7, v2\nv_lshl_add_u32 v13, v13, 7, s59\nv_lshrrev_b32 v6, 3, v2\nv_add_u32 v6, s49, v6")
        rowaddr(13, 6, 58)
        A(f"v_xor_b32 v15, 4096, v13")
        A("s_xor_b32 s58, s58, 1\ns_add_u32 s59, s59, 256\nv_and_b32 v14, 1, v2\nv_lshl_add_u32 v14, v14, 7, s59\nv_lshrrev_b32 v6, 1, v2\nv_add_u32 v6, s48, v6")
        rowaddr(14, 6, 58)
        if nw < 4: A(f"v_mov_b32 v6, 0x7fffffff\nv_cmp_gt_u32 vcc, {16*nw}, v2\ns_nop 1\nv_cndmask_b32 v14, v6, v14, vcc")
    else:
        A(f"s_lshl_b32 s48, s2, 2\ns_add_u32 s48, s48, s62\ns_add_u32 s48, s48, 896")
        w2rows(A, 13, 48)
    te = 0 if spf else o.get("tearly", 1)
    if post and te: A(f"s_cmp_ge_u32 s62, {te}\ns_cselect_b32 s48, 0x7ff00000, 0\nbuffer_load_dword v31, v13, s[{rW}:{rW+3}], s48 offen")
    w2l = o.get("w2late", 0)
    m1 = o.get("m1", 0)
    plan = [(8, [0, 1]), (8, [2]), (None, [3])] if m1 else [(16, [0]), (12, [1]), (8, [2]), (None, [3])]
    if w2l: plan = [(8, []), (0, []), (None, [])] if m1 else [(16, []), (8, []), (0, []), (None, [])]
    for c, zs in plan:
        if c is not None: A(f"s_waitcnt vmcnt({c + (1 if post and te else 0)})")
        A("s_barrier")
        for z in zs: issue_w(A, False, f"s_add_u32 m0, s52, {z*32768}")
        if sp2: sc2_unit(A)
        if spf:
            for q in range(4): A(f"s_load_dword s96, s[46:47], {64*q}")
            A(f"s_sub_u32 s46, s46, {28*P2}\ns_subb_u32 s47, s47, 0")
    if w2l == 1:
        for z in range(R): issue_w(A, False, f"s_add_u32 m0, s52, {z*32768}")
    if not post: A(f"buffer_load_dword v31, v13, s[{rW}:{rW+3}], 0 offen")
    if sp2:
        for _ in range(4): sc2_unit(A)
    A("s_barrier")
    if w2l == 2:
        for z in range(R): issue_w(A, False, f"s_add_u32 m0, s52, {z*32768}")
    def post_pf():
        if te < 4 and not spf: A(f"s_cmp_lt_u32 s62, {te}\ns_cbranch_scc1 L_l_tl\ns_cmp_ge_u32 s62, {nw}\ns_cbranch_scc1 L_l_tm\nbuffer_load_dword v31, v29, s[{rW}:{rW+3}], 0 offen\nL_l_tm:")
        if o.get("dup2", 1): A(f"s_cmp_lg_u32 s62, 3\ns_cbranch_scc1 L_l_tl\nbuffer_load_dword v31, v30, s[{rW}:{rW+3}], 0 offen")
        A("L_l_tl:")
    A("v_mov_b32 v29, v13\nv_mov_b32 v30, v14")
    if post and not inl and not o.get("postlate", 0): post_pf()
    A("L_l_g2:")
    ld_haddr(A, False)
    srd(A, rS, sOUT, 0, S*D*2)
    A(f"s_lshl_b32 s58, s{sST}, 7\ns_lshr_b32 s59, s62, 1\ns_lshl_b32 s59, s59, 6\ns_add_u32 s58, s58, s59\ns_lshl_b32 s59, s{sHK}, 5\ns_add_u32 s58, s58, s59\ns_lshl_b32 s58, s58, 11")
    A(f"s_lshl_b32 s59, s{sDT2}, 8\ns_add_u32 s58, s58, s59\ns_and_b32 s59, s62, 1\ns_lshl_b32 s59, s59, 7\ns_add_u32 s58, s58, s59\nv_lshl_add_u32 v23, v2, 11, s58")
    A(f"s_lshl_b32 s58, s2, 10\ns_lshl_b32 s59, s62, 8\ns_add_u32 s58, s58, s59\ns_add_u32 s58, s58, {S3_OFF}\nv_mov_b32 v24, s58")
    if inl:
        A(f"s_mul_i32 s48, s{sN}, 28\ns_mul_i32 s49, s62, 7\ns_add_u32 s49, s49, s48")
        w2unit(A, 29, 8, 49, 896, False, 7, 0)
        w2unit(A, 30, 2, 48, 896, True, 28, 2)
        A(f"s_mul_i32 s57, s62, {o.get('ind', 2)}\ns_add_u32 s57, s57, {o.get('in0', 4)}\ns_cmp_eq_u32 s62, 0\ns_cselect_b32 s63, {o.get('in0', 4) + 4*o.get('ind', 2)}, 0xff")
    def inl_pf():
        if not sp2: A(f"s_cmp_lg_u32 s53, s57\ns_cbranch_scc1 L_l_i1\nbuffer_load_dword v31, v29, s[{rW}:{rW+3}], 0 offen\nL_l_i1:")
        A(f"s_cmp_lg_u32 s53, s63\ns_cbranch_scc1 L_l_i2\nbuffer_load_dword v31, v30, s[{rW}:{rW+3}], 0 offen\nL_l_i2:")
    s2line(A, 56, 58)
    A(f"v_lshlrev_b32 v13, {S2S}, v2")
    stamp(A, o, 4)
    A("s_cmp_lg_u32 s3, 4\ns_cbranch_scc1 L_l_s2seen")
    poll(A, "L_l_p2", f"buffer_load_dword v16, v13, s[{rF}:{rF+3}], s56 offen sc1", [16], mask=(1 << 14) - 1)
    stamp(A, o, 5)
    if o.get("stamp"): A("s_sub_u32 s86, 0x200000, s59")
    A("L_l_s2seen:\ns_barrier")
    ld_main(A, o, False, after_h=post_pf if post and o.get('postlate', 0) else None, after_issue=inl_pf if inl else None, slot=sc2_slot if sp2 else None)
    x = 0
    if o.get("otouch", 1):
        x = 2
        A(f"s_mov_b64 exec, 0xffffffff\ns_mov_b32 exec_hi, 0\nbuffer_load_dword v31, v23, s[{rS}:{rS+3}], 0 offen sc1\ns_mov_b64 exec, 1\nbuffer_load_dword v31, v24, s[{rF}:{rF+3}], 0 offen sc1\ns_mov_b64 exec, -1")
    for c in (8, 0, None) if o.get("m2", 16) else (16, 8, 0, None):
        if c is not None: A(f"s_waitcnt vmcnt({c + x})")
        A("s_barrier")
    if o.get("stamp"):
        A("s_cmp_lg_u32 s3, 4\ns_cbranch_scc1 L_l_nost")
        stamp_flush(A, o, range(1, 9), 2)
        A("L_l_nost:")
    if o.get("series"):
        A(f"s_cmp_lg_u32 s3, 7\ns_cbranch_scc1 L_end\ns_add_u32 s92, s{sWS}, {WS_STAMP + 65536}\ns_addc_u32 s93, s{sWS+1}, 0\ns_lshl_b32 s89, s2, 8\nv_lshl_add_u32 v28, v2, 2, s89\nglobal_store_dword v28, v26, s[92:93]\nv_add_u32 v28, 0x10000, v28\nglobal_store_dword v28, v27, s[92:93]")
    A("s_endpgm")
    A("L_l_spare:")
    srd(A, rH, sW1, 0, S*F*2)
    A("s_barrier")
    lnpf(rH, "L_l_nopf2")
    if o.get("cwarm", 0):
        A("s_cmp_lg_u32 s3, 7\ns_cbranch_scc1 L_l_ncw\ns_getpc_b64 s[58:59]\nL_l_pc:")
        A(f"s_sub_u32 s58, s58, L_l_pc-{NAME}\ns_subb_u32 s59, s59, 0\ns_sub_u32 s60, s{sN}, 28\ns_lshl_b32 s60, s60, 13\nv_lshl_add_u32 v21, v2, 7, s60")
        A(f"v_min_u32 v21, L_end-{NAME}, v21\nglobal_load_dword v31, v21, s[58:59]\nL_l_ncw:")
    touch_flags(A, o, False)
    ld_waddr(A, False)
    A("s_waitcnt lgkmcnt(0)")
    make_tag(A)
    A("s_barrier")
    if not o.get("spearly", 0): A("s_barrier")
    if o.get("wb", 0): A("s_barrier")
    A("s_cmp_lg_u32 s3, 4\ns_cbranch_scc1 L_l_spw")
    A("s_sub_u32 s48, s2, 224\ns_lshl_b32 s49, s48, 13\nv_lshl_add_u32 v13, v2, 7, s49")
    w2rows(A, 14, 48)
    r0 = 256 * nr
    def sp_w2(lab, r0_, r1_):
        if r0_ < r1_: A(f"s_mov_b32 s48, {r0_*P2}\n{lab}:\nbuffer_load_dword v31, v14, s[{rW}:{rW+3}], s48 offen\ns_add_u32 s48, s48, {32*P2}\ns_cmp_lt_u32 s48, {r1_*P2}\ns_cbranch_scc1 {lab}")
    if o.get("spare", 1):
        if post: sp_w2("L_l_sp0", 0, 256)
        if aff:
            A(f"s_sub_u32 s48, s{sN}, {28 - (32 - o.get('skip', 0))*nr}\ns_mul_i32 s48, s48, {2*npair*P1}\nL_l_sp1:\nbuffer_load_dword v31, v25, s[{rH}:{rH+3}], s48 offen\ns_add_u32 s48, s48, {8*npair*P1}\ns_cmp_lt_u32 s48, {S*P1}\ns_cbranch_scc1 L_l_sp1")
        else: A(f"s_mov_b32 s48, {r0*P1}\nL_l_sp1:\nbuffer_load_dword v31, v13, s[{rH}:{rH+3}], s48 offen\ns_add_u32 s48, s48, {32*8192}\ns_cmp_lt_u32 s48, {S*P1}\ns_cbranch_scc1 L_l_sp1")
        if inl:
            A(f"s_sub_u32 s48, s{sN}, 28\ns_lshl_b32 s48, s48, 3")
            w2unit(A, 14, 8, 48, 256, False, 8, 0)
            sp_w2("L_l_sp2", 0, 640)
            if sp2:
                w2unit(A, 14, 8, sN, 896, False, 1, 0)
                A(f"v_lshrrev_b32 v6, 3, v2\nv_readfirstlane_b32 s48, v14\nv_and_b32 v14, 7, v2\nv_lshlrev_b32 v14, 7, v14\nv_lshl_add_u32 v14, v6, 17, v14\ns_nop 2\nbuffer_load_dword v31, v14, s[{rW}:{rW+3}], s48 offen")
        elif post: sp_w2("L_l_sp2", 256 + 224*nw, o.get("spw2", 1792))
        else: sp_w2("L_l_sp2", 0, 896)
    if o.get("stamp"):
        A("s_waitcnt vmcnt(0)"); stamp(A, o, 0); stamp_flush(A, o, [0], 1); A("s_mov_b64 exec, -1")
    A("L_l_spw:")
    if sp2: sc2_setup(A, 8)
    A("v_mov_b32 v29, 0x7fffffff\nv_mov_b32 v30, 0x7fffffff")
    for z in range(R): issue_w(A, False, f"s_add_u32 m0, s52, {z*32768}")
    A("s_branch L_l_g2")

HEAD = open(__file__.replace("gen2.py", "head.txt")).read()
def build(o):
    global GLOB, S1L, S2R, S2S
    S1L = o.get('s1l', 3); S2R = o.get('s2r', 1); S2S = o.get('s2s', 7)
    GLOB = o.get('glob', 1)
    global PAD, HSTR, USTR, H_BYTES, U_BYTES
    PAD = o.get("pad", 8192); HSTR, USTR = 64*8192 + PAD, 112*8192 + PAD; H_BYTES, U_BYTES = 8*HSTR, 8*USTR
    A = Asm()
    A.L.append(HEAD.rstrip("\n"))
    if o.get("tail_e"):
        A(f"; @launch kernel={NAME} grid=(256,1,1) block=(512,1,1) lds={LDS_LN + 256}")
        A("; @launch kernel=empty_kernel grid=(256,1,1) block=(64,1,1) lds=0")
    else: A(f"; @launch grid=(256,1,1) block=(512,1,1) lds={LDS_LN + 256}")
    A('.amdgcn_target "amdgcn-amd-amdhsa--gfx950"\n.text')
    A(f".globl {NAME}\n.p2align 8\n.type {NAME},@function\n{NAME}:")
    A("s_cmp_ge_u32 s2, 256\ns_cbranch_scc1 L_end")
    stamp(A, o, 0)
    A("s_load_dwordx16 s[4:19], s[0:1], 0")
    A("v_readfirstlane_b32 s3, v0\ns_nop 0\ns_lshr_b32 s3, s3, 6\ns_cmp_ge_u32 s3, 4\ns_cbranch_scc1 L_loader")
    gen_ln(A, o)
    A("s_cmp_ge_u32 s2, 224\ns_cbranch_scc1 L_c_g2")
    cons_prologue(A, o, True)
    cons_loop(A, o)
    cons_epi1(A, o)
    A("L_c_g2:")
    cons_prologue(A, o, False)
    A("s_branch L_c_main")
    cons_epi2(A, o)
    gen_loader(A, o)
    A("L_end:\ns_endpgm")
    def desc(name, v):
        A(f".p2align 6\n.amdhsa_kernel {name}\n  .amdhsa_next_free_vgpr {v}\n  .amdhsa_next_free_sgpr 102\n  .amdhsa_accum_offset {v}\n"
          "  .amdhsa_group_segment_fixed_size 0\n  .amdhsa_kernarg_size 64\n  .amdhsa_user_sgpr_count 2\n"
          "  .amdhsa_user_sgpr_kernarg_segment_ptr 1\n  .amdhsa_system_sgpr_workgroup_id_x 1\n.end_amdhsa_kernel")
    if o.get("tail_e"):
        A(".globl empty_kernel\n.p2align 8\n.type empty_kernel,@function\nempty_kernel:")
        A("s_cmp_ge_u32 s2, 256\ns_cbranch_scc1 L_em_end\ns_memrealtime s[70:71]\ns_load_dwordx2 s[18:19], s[0:1], 56")
        stamp_flush(A, o, [0], 3)
        A("L_em_end:\ns_endpgm")
    A('.section .rodata,"a"')
    desc(NAME, 192 if o.get('kk', 1) else 160)
    if o.get("tail_e"): desc("empty_kernel", 32)
    return A.text()

if __name__ == "__main__":
    o = {}
    for kv in sys.argv[2:]:
        k, v = kv.split("=", 1)
        o[k] = int(v) if v.lstrip("-").isdigit() else v
    open(sys.argv[1], "w").write(build(o))
```

```python
import sys, struct, math
S, D, F = 2048, 1024, 3584
WS_H, WS_U, WS_FLG, WS_STAMP = 0, 6 << 20, 20 << 20, 24 << 20
PAD = 8192
HSTR, USTR = 64*8192 + PAD, 112*8192 + PAD
H_BYTES, U_BYTES = 8*HSTR, 8*USTR
GEN_OFF, S1_OFF, S2_OFF, S3_OFF = 0, 65536, 131072, 262144
FLG_BYTES = S3_OFF + 256*1024
R = 4
LDS_LN = R*32768
NAME = "standalone__mixer_token_mlp__prompt_kernel"
N1, N2 = 32, 28
P1, P2 = F*2, S*2

GC0 = -2.0*math.sqrt(2.0/math.pi)*math.log2(math.e); GC1 = GC0*0.044715
GS = (-GC1) ** (1.0/3.0); GK = -GC0/GS
def f32(x): return "0x%08x" % struct.unpack("<I", struct.pack("<f", x))[0]

class Asm:
    def __init__(self): self.L = []
    def __call__(self, s):
        for l in s.split("\n"):
            l = l.strip()
            if l: self.L.append(l if (l.endswith(":") or l.startswith(".") or l.startswith(";")) else "    " + l)
    def text(self): return "\n".join(self.L) + "\n"

sX, sW1, sB1, sW2, sB2, sOUT, sDBG, sWS = 4, 6, 8, 10, 12, 14, 16, 18
sTAG, sXCD, sN, sFT, sDT1, sST, sDT2, sHK = 20, 21, 22, 23, 24, 25, 26, 27
rW, rH, rF, rM, rS = 28, 32, 36, 40, 44
sPH, sN7 = 68, 69
ACC, XW, XH, YW, YH = 32, 96, 112, 128, 144
VWA, VHA = 8, 16

def srd(A, r, base, off, nbytes):
    if off: A(f"s_add_u32 s{r}, s{base}, {off}\ns_addc_u32 s{r+1}, s{base+1}, 0")
    else: A(f"s_mov_b32 s{r}, s{base}\ns_mov_b32 s{r+1}, s{base+1}")
    A(f"s_mov_b32 s{r+2}, {nbytes}\ns_mov_b32 s{r+3}, 0x20000")

def stamp(A, o, i, cyc=None):
    if o.get("stamp"):
        A(f"s_memrealtime s[{70+2*i}:{71+2*i}]")
        if cyc is not None: A(f"s_memtime s[{94+2*cyc}:{95+2*cyc}]")
def stamp_flush(A, o, lst, slot=0):
    if not o.get("stamp"): return
    A("s_waitcnt lgkmcnt(0)")
    A(f"s_add_u32 s92, s{sWS}, {WS_STAMP + slot*16384}\ns_addc_u32 s93, s{sWS+1}, 0\nv_mov_b32 v28, s2\nv_lshlrev_b32 v28, 6, v28\ns_mov_b64 exec, 1")
    for i in lst: A(f"v_mov_b32 v1, s{70+2*i}\nglobal_store_dword v28, v1, s[92:93] offset:{4*i}")

def poll(A, label, load, regs, mask=None, pre=None):
    A(f"s_mov_b32 s59, 0x200000")
    if mask is not None: A(f"s_mov_b64 exec, {mask}")
    if pre is not None: A(f"s_waitcnt vmcnt({pre})\ns_branch {label}_c")
    A(f"{label}:\n{load}\ns_sub_u32 s59, s59, 1\ns_cbranch_scc1 {label}_x\ns_waitcnt vmcnt(0)\n{label}_c:")
    A(f"v_cmp_ne_u32 vcc, s{sTAG}, v{regs[0]}")
    for r_ in regs[1:]: A(f"v_cmp_ne_u32 s[60:61], s{sTAG}, v{r_}\ns_or_b64 vcc, vcc, s[60:61]")
    A(f"s_cmp_lg_u64 vcc, 0\ns_cbranch_scc1 {label}\n{label}_x:")
    if mask is not None: A("s_mov_b64 exec, -1")

def gen_ln(A, o):
    A("s_lshr_b32 s48, s2, 2\ns_and_b32 s49, s2, 3")
    A("s_lshl_b32 s50, s48, 5\ns_lshl_b32 s51, s49, 2\ns_add_u32 s50, s50, s51\ns_lshl_b32 s50, s50, 11")
    A("v_lshlrev_b32 v1, 3, v0")
    rowoff = [(16*(j//4) + j % 4) * 2048 for j in range(8)]
    for j in range(8): A(f"s_add_u32 s{52+j}, s50, {rowoff[j]}")
    A("s_waitcnt lgkmcnt(0)")
    srd(A, rM, sX, 0, S*D*2)
    for j in range(8): A(f"buffer_load_dwordx2 v[{2+2*j}:{3+2*j}], v1, s[{rM}:{rM+3}], s{52+j} offen")
    A("s_barrier")
    A(f"s_add_u32 s50, s{sX}, s50\ns_addc_u32 s51, s{sX+1}, 0")
    for j in range(8): A(f"s_load_dword s{52+j}, s[50:51], {rowoff[j]}")
    common_setup(A, o)
    srd(A, rS, sWS, WS_H, H_BYTES)
    A(f"v_lshrrev_b32 v62, 5, v0\nv_mul_u32_u24 v62, {HSTR}, v62")
    A("v_bfe_u32 v63, v0, 4, 1\nv_lshlrev_b32 v63, 12, v63\nv_add_u32 v62, v62, v63")
    A("v_and_b32 v63, 15, v0\nv_lshlrev_b32 v63, 4, v63\nv_add_u32 v62, v62, v63")
    A("s_lshl_b32 s48, s48, 13\ns_lshl_b32 s49, s49, 8\ns_add_u32 s48, s48, s49")
    if o.get("hpf"):
        A("v_and_b32 v63, 7, v0\nv_cmp_eq_u32 vcc, 0, v63\ns_and_saveexec_b64 s[60:61], vcc")
        for t in range(4): A(f"buffer_load_dword v19, v62, s[{rS}:{rS+3}], s48 offen offset:{t*1024}")
        A("s_mov_b64 exec, s[60:61]")
    A(f"v_lshrrev_b32 v64, 4, v0\nv_lshlrev_b32 v64, 4, v64\nv_add_u32 v64, {LDS_LN}, v64")
    A(f"v_and_b32 v65, 3, v0\nv_lshlrev_b32 v65, 4, v65\nv_bfe_u32 v66, v0, 2, 1\nv_lshlrev_b32 v66, 2, v66\nv_add_u32 v65, v65, v66\nv_add_u32 v65, {LDS_LN}, v65")
    A("s_waitcnt lgkmcnt(0)")
    make_tag(A)
    for j in range(8): A(f"s_lshl_b32 s{52+j}, s{52+j}, 16")
    for j in range(8):
        A(f"s_waitcnt vmcnt({7-j + (4 if o.get('hpf') else 0)})")
        for c in range(4):
            src = 2 + 2*j + c//2; d = 70 + 4*j + c
            A(f"v_lshlrev_b32 v{d}, 16, v{src}" if c % 2 == 0 else f"v_and_b32 v{d}, 0xffff0000, v{src}")
        for c in range(4): A(f"v_subrev_f32 v{70+4*j+c}, s{52+j}, v{70+4*j+c}")
        b = 70 + 4*j
        A(f"v_add_f32 v{20+j}, v{b}, v{b+1}\nv_mul_f32 v{28+j}, v{b}, v{b}")
        A(f"v_add_f32 v{20+j}, v{20+j}, v{b+2}\nv_fmac_f32 v{28+j}, v{b+1}, v{b+1}")
        A(f"v_add_f32 v{20+j}, v{20+j}, v{b+3}\nv_fmac_f32 v{28+j}, v{b+2}, v{b+2}\nv_fmac_f32 v{28+j}, v{b+3}, v{b+3}")
    stamp(A, o, 1)
    A("s_nop 1")
    for p in range(8): A(f"v_permlane32_swap_b32 v{20+2*p}, v{21+2*p}")
    for p in range(8): A(f"v_add_f32 v{20+2*p}, v{20+2*p}, v{21+2*p}")
    A("s_nop 1")
    for q in range(4): A(f"v_permlane16_swap_b32 v{20+4*q}, v{22+4*q}")
    for q in range(4): A(f"v_add_f32 v{40+q}, v{20+4*q}, v{22+4*q}")
    for sh in (8, 4, 2, 1):
        A("s_nop 1")
        for q in range(4): A(f"v_add_f32_dpp v{40+q}, v{40+q}, v{40+q} row_ror:{sh} row_mask:0xf bank_mask:0xf")
    A("ds_write_b128 v64, v[40:43]")
    A("s_waitcnt lgkmcnt(0)\ns_barrier")
    for w in range(4): A(f"ds_read2_b32 v[{44+2*w}:{45+2*w}], v65 offset0:{16*w} offset1:{16*w+2}")
    A("s_waitcnt lgkmcnt(0)")
    A("v_add_f32 v44, v44, v46\nv_add_f32 v45, v45, v47\nv_add_f32 v48, v48, v50\nv_add_f32 v49, v49, v51\nv_add_f32 v44, v44, v48\nv_add_f32 v45, v45, v49")
    A(f"v_mul_f32 v44, {f32(1.0/D)}, v44\nv_mul_f32 v45, {f32(1.0/D)}, v45")
    A("v_fma_f32 v45, -v44, v44, v45\nv_max_f32 v45, 0, v45")
    A(f"v_add_f32 v45, {f32(1e-5)}, v45\nv_rsq_f32 v45, v45\ns_nop 0" + f"\nv_mul_f32 v45, {f32(GS)}, v45" + "\nv_mul_f32 v44, v44, v45\nv_sub_f32 v44, 0, v44")
    A("s_nop 1")
    gmap = [0, 2, 1, 3]
    for e in range(8):
        j = gmap[e % 4] + 4*(e // 4)
        A(f"v_readlane_b32 s{52+j}, v45, {e}\nv_readlane_b32 s{60+j}, v44, {e}")
    A("s_nop 1")
    for j in range(8): A(f"v_mov_b32 v{20+j}, s{60+j}")
    for t in range(4):
        for j in range(8):
            d = 70 + 4*j + t
            A(f"v_fma_f32 v{d}, v{d}, s{52+j}, v{20+j}")
        for jj in range(4):
            A(f"v_cvt_pk_bf16_f32 v{44+4*t+jj}, v{70+4*(2*jj)+t}, v{70+4*(2*jj+1)+t}")
        A(f"buffer_store_dwordx4 v[{44+4*t}:{47+4*t}], v62, s[{rS}:{rS+3}], s48 offen offset:{t*1024} {o.get('hst', 'sc1').replace('_', ' ')}")
    A(f"s_lshr_b32 s48, s2, {S1L}\ns_lshl_b32 s48, s48, 7\ns_and_b32 s49, s2, {(1 << S1L) - 1}\ns_lshl_b32 s49, s49, 2\ns_add_u32 s48, s48, s49\ns_lshl_b32 s49, s3, {16 - S1L}\ns_add_u32 s48, s48, s49\ns_add_u32 s48, s48, {S1_OFF}")
    A(f"v_and_b32 v2, 63, v0\nv_lshlrev_b32 v3, {15 - S1L}, v2\nv_mov_b32 v4, s{sTAG}")
    if o.get("wb", 0): A("s_barrier")
    A("s_waitcnt vmcnt(0)")
    A(f"s_mov_b64 exec, 3\nbuffer_store_dword v4, v3, s[{rF}:{rF+3}], s48 offen sc1\ns_mov_b64 exec, -1")
    stamp(A, o, 2)
    if o.get("spearly", 0): A("s_cmp_ge_u32 s2, 224\ns_cbranch_scc1 L_c_g2")
    A("s_barrier")

def common_setup(A, o):
    A(f"s_add_u32 s{rF}, s{sWS}, {WS_FLG}\ns_addc_u32 s{rF+1}, s{sWS+1}, 0\ns_mov_b32 s{rF+2}, {FLG_BYTES}\ns_mov_b32 s{rF+3}, 0x20000")
    A(f"s_load_dword s{sTAG}, s[{rF}:{rF+1}], {GEN_OFF}")
    A(f"s_and_b32 s{sXCD}, s2, 7\ns_lshr_b32 s{sN}, s2, 3")
    A(f"s_mul_i32 s66, s{sN}, 37\ns_lshr_b32 s66, s66, 8\ns_mul_i32 s67, s66, 7\ns_sub_u32 s{sN7}, s{sN}, s67")
    A(f"s_and_b32 s67, s{sXCD}, 3\ns_mul_i32 s{sFT}, s67, 7\ns_add_u32 s{sFT}, s{sFT}, s{sN7}")
    A(f"s_and_b32 s{sDT2}, s{sXCD}, 4\ns_add_u32 s{sDT1}, s{sDT2}, s66")
    A(f"s_and_b32 s{sHK}, s{sN}, 1\ns_lshl_b32 s{sST}, s67, 2\ns_bfe_u32 s66, s{sN}, 0x20001\ns_add_u32 s{sST}, s{sST}, s66")
    A(f"s_lshr_b32 s66, s{sN}, 3\ns_add_u32 s{sDT2}, s{sDT2}, s66")
def make_tag(A):
    A(f"s_mul_i32 s{sTAG}, s{sTAG}, 0x9e3779b1\ns_add_u32 s{sTAG}, s{sTAG}, 0x7f4a7c15")

def substep(A, o, cur, nxt, slot, ks, barrier):
    cw, ch = cur; nw, nh = nxt
    hi = slot >= 2
    base = (slot % 2) * 32768
    rd = []
    def wread(fb):
        for r_ in range(2):
            rd.append(f"ds_read_b64_tr_b16 v[{nw+4*fb+2*r_}:{nw+4*fb+2*r_+1}], v{VWA+4*hi+fb} offset:{base + ks*8192 + r_*4096}")
    def hread(t):
        rd.append(f"ds_read_b128 v[{nh+4*t}:{nh+4*t+3}], v{VHA+hi} offset:{base + 16384 + ks*8192 + t*1024}")
    wread(0)
    for t in range(4): hread(t)
    for fb in range(1, 4): wread(fb)
    A("s_waitcnt lgkmcnt(0)")
    if barrier: A("s_barrier")
    k = 0
    for m in range(16):
        fb, t = m // 4, m % 4
        if o.get("snake", 1) and fb % 2: t = 3 - t
        a = ACC + 16*fb + 4*t
        A(f"v_mfma_f32_16x16x32_bf16 v[{a}:{a+3}], v[{cw+4*fb}:{cw+4*fb+3}], v[{ch+4*t}:{ch+4*t+3}], v[{a}:{a+3}]")
        for _ in range(o.get("rdper", 1)):
            if k < len(rd): A(rd[k]); k += 1

WB, HB = 96, (128, 160)
def rd_w(slot, fb):
    hi = slot >= 2; base = (slot % 2) * 32768
    return [f"ds_read_b64_tr_b16 v[{WB+8*fb+4*ks+2*r_}:{WB+8*fb+4*ks+2*r_+1}], v{VWA+4*hi+fb} offset:{base + ks*8192 + r_*4096}" for ks in range(2) for r_ in range(2)]
def rd_h(slot, hb):
    hi = slot >= 2; base = (slot % 2) * 32768
    return [f"ds_read_b128 v[{hb+16*ks+4*t}:{hb+16*ks+4*t+3}], v{VHA+hi} offset:{base + 16384 + ks*8192 + t*1024}" for t in range(4) for ks in range(2)]
def step_kk(A, o, slot):
    hb, hn = HB[slot % 2], HB[1 - slot % 2]
    nx = (slot + 1) % R
    first = rd_w(slot, 1) + rd_w(slot, 2) + rd_w(slot, 3)
    second = rd_w(nx, 0) + rd_h(nx, hn)
    m = 0; flip = 0
    for fb in range(4):
        if fb == 0: A("s_waitcnt lgkmcnt(0)")
        if fb == 1: A("s_waitcnt lgkmcnt(4)")
        if fb == 2: A("s_waitcnt lgkmcnt(0)\ns_barrier")
        for t in (range(4) if fb % 2 == 0 else range(3, -1, -1)):
            a = ACC + 16*fb + 4*t
            for ks in ((1, 0) if flip else (0, 1)):
                w = WB + 8*fb + 4*ks; h = hb + 16*ks + 4*t
                A(f"v_mfma_f32_16x16x32_bf16 v[{a}:{a+3}], v[{w}:{w+3}], v[{h}:{h+3}], v[{a}:{a+3}]")
                if m < 12: A(first[m])
                elif 16 <= m < 28: A(second[m-16])
                m += 1
            flip ^= 1

def cons_prologue(A, o, g1):
    tile = sFT if g1 else sST
    srd(A, rM, sB1 if g1 else sB2, 0, (F if g1 else S)*2)
    A("s_and_b32 s62, s3, 1\ns_lshr_b32 s63, s3, 1")
    A("v_lshrrev_b32 v3, 4, v2\nv_and_b32 v4, 15, v2")
    A(f"s_lshl_b32 s50, s{tile}, 8\ns_lshl_b32 s51, s63, 7\ns_add_u32 s50, s50, s51")
    if not g1: A(f"s_lshl_b32 s51, s{sHK}, 6\ns_add_u32 s50, s50, s51")
    A("v_lshlrev_b32 v5, 3, v3")
    nb = 4 if g1 else 2
    for fb in range(nb): A(f"buffer_load_dwordx2 v[{20+2*fb}:{21+2*fb}], v5, s[{rM}:{rM+3}], s50 offen offset:{fb*32}")
    if not g1:
        A(f"s_lshl_b32 s54, s2, 10\ns_lshl_b32 s55, s3, 8\ns_add_u32 s54, s54, s55\ns_add_u32 s54, s54, {S3_OFF}\ns_xor_b32 s55, s54, 0x2000")
        A(f"s_getreg_b32 s64, hwreg(HW_REG_XCC_ID, 0, 4)\ns_add_u32 s64, s64, 1\ns_add_u32 s64, s64, s{sTAG}\nv_mov_b32 v6, s64\nv_mov_b32 v7, 128")
        A(f"s_mov_b64 exec, 1\nbuffer_store_dword v6, v7, s[{rF}:{rF+3}], s54 offen sc1\ns_mov_b64 exec, -1")
    A("v_lshrrev_b32 v6, 2, v4\nv_lshl_add_u32 v7, v3, 2, v6")
    A("v_and_b32 v18, 7, v7\nv_lshlrev_b32 v7, 8, v7\nv_and_b32 v19, 3, v4\nv_lshl_add_u32 v7, v19, 3, v7")
    A("s_lshl_b32 s50, s63, 2")
    if not g1: A(f"s_lshl_b32 s51, s{sHK}, 1\ns_xor_b32 s50, s50, s51\ns_xor_b32 s50, s50, 2")
    for fb in range(4):
        A(f"s_xor_b32 s51, s50, {fb}\nv_xor_b32 v19, s51, v18\nv_lshl_add_u32 v{VWA+fb}, v19, 5, v7\nv_add_u32 v{VWA+4+fb}, 0x10000, v{VWA+fb}")
    A(f"s_lshl_b32 s50, s62, 12\nv_lshl_add_u32 v{VHA}, v2, 4, s50\nv_add_u32 v{VHA+1}, 0x10000, v{VHA}")
    A(f"s_waitcnt vmcnt({0 if g1 else 1})")
    for fb in range(4):
        for r_ in range(4):
            a = ACC + 16*fb + r_
            if fb >= 4 - nb:
                src = 20 + 2*(fb - (4 - nb)) + r_//2
                A(f"v_lshlrev_b32 v{a}, 16, v{src}" if r_ % 2 == 0 else f"v_and_b32 v{a}, 0xffff0000, v{src}")
                if g1: A(f"v_mul_f32 v{a}, {f32(GS)}, v{a}")
            else: A(f"v_mov_b32 v{a}, 0")
            for t in range(1, 4): A(f"v_mov_b32 v{a+4*t}, v{a}")
    if g1:
        srd(A, rS, sWS, WS_U, U_BYTES)
        A(f"s_lshl_b32 s48, s{sFT}, 2\ns_lshl_b32 s49, s63, 1\ns_add_u32 s48, s48, s49\ns_lshl_b32 s48, s48, 13\ns_mul_i32 s49, s{sDT1}, {USTR}\ns_add_u32 s48, s48, s49")
        A("s_lshl_b32 s49, s62, 12\ns_add_u32 s48, s48, s49\ns_add_u32 s49, s48, 8192\nv_lshlrev_b32 v4, 4, v2")
        A(f"v_mov_b32 v22, {f32(GK)}\nv_mov_b32 v23, v22\nv_mov_b32 v24, {f32(GS)}\nv_mov_b32 v25, v24")
        A(f"s_cmp_ge_u32 s{sFT}, 14\ns_cselect_b32 s52, 1, 0\ns_cselect_b32 s53, 14, 0\ns_sub_u32 s53, s{sFT}, s53\ns_lshl_b32 s53, s53, {S2S}")
        A(f"s_lshl_b32 s50, s{sDT1}, 1\ns_add_u32 s52, s52, s50\ns_mul_i32 s52, s52, {S2R*2048}\ns_add_u32 s52, s52, s53\ns_add_u32 s52, s52, {S2_OFF}")
        A(f"v_lshlrev_b32 v20, 11, v2\nv_mov_b32 v21, s{sTAG}")
    else:
        srd(A, rS, sOUT, 0, S*D*2)
        A("v_lshlrev_b32 v3, 13, v3\nv_lshl_add_u32 v20, v4, 3, v3\nv_add_u32 v21, 4096, v20")
        A(f"s_lshl_b32 s56, s{sST}, 7\ns_lshl_b32 s57, s63, 6\ns_add_u32 s56, s56, s57\ns_lshl_b32 s57, s{sHK}, 5\ns_add_u32 s56, s56, s57\ns_lshl_b32 s56, s56, 11")
        A(f"s_lshl_b32 s57, s{sDT2}, 8\ns_add_u32 s56, s56, s57\ns_lshl_b32 s57, s62, 7\ns_add_u32 s56, s56, s57")
        A("s_xor_b32 s52, s56, 0x10000\ns_add_u32 s53, s52, 32768\ns_add_u32 s57, s56, 32768")
        A(f"v_mov_b32 v22, 0\nv_mov_b32 v23, s{sTAG}")
    A(f"s_mov_b32 s{sPH}, {1 if g1 else 2}\ns_mov_b32 s65, {(N1 if g1 else N2)//R}")

def cons_loop(A, o):
    A("L_c_main:")
    A("s_barrier")
    A("s_barrier")
    A(f"v_mov_b32 v5, 128\ns_cmp_eq_u32 s{sPH}, 1\ns_cbranch_scc1 L_c_noid")
    A(f"buffer_load_dword v30, v5, s[{rF}:{rF+3}], s55 offen sc1")
    stamp(A, o, 7, 2)
    A("s_branch L_c_go\nL_c_noid:")
    stamp(A, o, 3, 0)
    A("L_c_go:")
    X, Y = (XW, XH), (YW, YH)
    kk = o.get("kk", 1)
    if kk:
        for x in rd_w(0, 0) + rd_h(0, HB[0]): A(x)
    else:
        for fb in range(4):
            for r_ in range(2): A(f"ds_read_b64_tr_b16 v[{XW+4*fb+2*r_}:{XW+4*fb+2*r_+1}], v{VWA+fb} offset:{r_*4096}")
        for t in range(4): A(f"ds_read_b128 v[{XH+4*t}:{XH+4*t+3}], v{VHA} offset:{16384+t*1024}")
    if o.get("cprio"): A(f"s_setprio {o['cprio']}")
    A(".p2align 6")
    for _ in range(o.get("cpad", 0)): A("s_nop 0")
    A("L_c_loop:")
    for r_ in range(R):
        if kk: step_kk(A, o, r_); continue
        substep(A, o, X, Y, r_, 1, False)
        substep(A, o, Y, X, (r_+1) % R, 0, True)
    A("s_sub_u32 s65, s65, 1\ns_cmp_lg_u32 s65, 0\ns_cbranch_scc1 L_c_loop")
    A(f"s_waitcnt lgkmcnt(0)\ns_cmp_eq_u32 s{sPH}, 2\ns_cbranch_scc1 L_c_epi2")

def cons_epi1(A, o):
    stamp(A, o, 4, 1)
    A("s_nop 1")
    T = XW
    pr = lambda r_: f"v[{r_}:{r_+1}]"
    for kbl in range(2):
        for t in range(4):
            regs = [ACC + 16*(2*kbl + h) + 4*t + r_ for h in range(2) for r_ in range(4)]
            tb = T + ((kbl*4 + t) % 2) * 16
            for e in range(0, 8, 2): A(f"v_pk_fma_f32 {pr(tb+e)}, {pr(regs[e])}, {pr(regs[e])}, v[22:23]")
            for e in range(0, 8, 2): A(f"v_pk_mul_f32 {pr(tb+e)}, {pr(tb+e)}, {pr(regs[e])} neg_lo:[1,0] neg_hi:[1,0]")
            for e in range(8): A(f"v_exp_f32 v{tb+e}, v{tb+e}")
            for e in range(0, 8, 2): A(f"v_pk_fma_f32 {pr(tb+e)}, {pr(tb+e)}, v[24:25], v[24:25]")
            for e in range(8): A(f"v_rcp_f32 v{tb+e}, v{tb+e}")
            for e in range(0, 8, 2): A(f"v_pk_mul_f32 {pr(tb+e)}, {pr(tb+e)}, {pr(regs[e])}")
            q = 4*kbl + t; d = 128 + 4*q
            for e in range(4): A(f"v_cvt_pk_bf16_f32 v{d+e}, v{tb+2*e}, v{tb+2*e+1}")
            ul = o.get("ulate", 0)
            for qq in ([q] if q > ul else range(ul + 1) if q == ul else []):
                A(f"buffer_store_dwordx4 v[{128+4*qq}:{131+4*qq}], v4, s[{rS}:{rS+3}], s{48+qq//4} offen offset:{(qq%4)*1024} sc1")
    stamp(A, o, 5)
    A("s_waitcnt vmcnt(0)\ns_barrier")
    A("s_cmp_lg_u32 s3, 0\ns_cbranch_scc1 L_c_g2")
    A(f"s_mov_b64 exec, {(1 << S2R) - 1}\nbuffer_store_dword v21, v20, s[{rF}:{rF+3}], s52 offen sc1\ns_mov_b64 exec, -1")
    stamp(A, o, 6)

def cons_epi2(A, o):
    A("L_c_epi2:")
    stamp(A, o, 8, 3)
    def oaddr(sb, r_, base): return f"v{20 + r_//2}, s[{rS}:{rS+3}], s{base + sb} offen offset:{(r_%2)*2048}"
    A("s_waitcnt vmcnt(0)\nv_readfirstlane_b32 s61, v30")
    for sb in range(2):
        for r_ in range(4):
            a = ACC + 16*sb + r_; d = YW + 8*sb + 2*r_
            A(f"v_cvt_pk_bf16_f32 v{d}, v{a}, v{a+4}\nv_cvt_pk_bf16_f32 v{d+1}, v{a+8}, v{a+12}")
    def send(flag):
        for sb in range(2):
            for r_ in range(4):
                d = YW + 8*sb + 2*r_
                A(f"buffer_store_dwordx2 v[{d}:{d+1}], {oaddr(sb, r_, 52)} {flag}")
        A("s_waitcnt vmcnt(0)")
        A(f"s_mov_b64 exec, 1\nbuffer_store_dword v23, v22, s[{rF}:{rF+3}], s54 offen {flag}")
    A("s_cmp_eq_u32 s61, s64\ns_cbranch_scc0 L_c_far")
    send("")
    A("s_branch L_c_sent\nL_c_far:")
    send("sc1")
    A("L_c_sent:")
    poll(A, "L_c_p3", f"buffer_load_dword v18, v22, s[{rF}:{rF+3}], s55 offen sc1", [18], mask=1)
    stamp(A, o, 9)
    for sb in range(2):
        for r_ in range(4):
            d = XW + 8*sb + 2*r_
            A(f"buffer_load_dwordx2 v[{d}:{d+1}], {oaddr(sb, r_, 56)} sc1")
    for sb in range(2):
        for r_ in range(4):
            q = 4*sb + r_
            A("s_waitcnt vmcnt(7)")
            a = ACC + 32 + 16*sb + r_; d = XW + 8*sb + 2*r_; t_ = XW + 16 + 4*(q % 2)
            A(f"v_lshlrev_b32 v{t_}, 16, v{d}\nv_and_b32 v{t_+1}, 0xffff0000, v{d}\nv_lshlrev_b32 v{t_+2}, 16, v{d+1}\nv_and_b32 v{t_+3}, 0xffff0000, v{d+1}")
            for t in range(4): A(f"v_add_f32 v{a+4*t}, v{a+4*t}, v{t_+t}")
            A(f"v_cvt_pk_bf16_f32 v{d}, v{a}, v{a+4}\nv_cvt_pk_bf16_f32 v{d+1}, v{a+8}, v{a+12}")
            A(f"buffer_store_dwordx2 v[{d}:{d+1}], {oaddr(sb, r_, 56)} {o.get('fin', '')}")
    if o.get("wbl"):
        A(f"s_cmp_lg_u32 s3, 3\ns_cbranch_scc1 L_c_nwb\ns_waitcnt vmcnt(0)\nbuffer_wbl2 sc1\nL_c_nwb:")
    if o.get("stamp"):
        A("s_cmp_lg_u32 s3, 0\ns_cbranch_scc1 L_end\ns_waitcnt vmcnt(0)")
        stamp(A, o, 10)
        stamp_flush(A, o, range(11))
        A("s_sub_u32 s94, s96, s94\nv_mov_b32 v29, s94\nglobal_store_dword v28, v29, s[92:93] offset:56")
        A("s_sub_u32 s98, s100, s98\nv_mov_b32 v29, s98\nglobal_store_dword v28, v29, s[92:93] offset:60")
        if o.get("spinend"):
            A(f"s_cmp_lg_u32 s2, {o.get('spinwg', 0)}\ns_cbranch_scc1 L_end\ns_sub_u32 s60, s{70 + 2*o.get('spinq', 0)}, s70\ns_lshl_b32 s60, s60, 2\ns_add_u32 s70, s70, s60\ns_add_u32 s70, s70, 20000\ns_mov_b32 s59, 200000")
            A("L_sp:\ns_sub_u32 s59, s59, 1\ns_cbranch_scc1 L_end\ns_memrealtime s[72:73]\ns_waitcnt lgkmcnt(0)\ns_sub_u32 s72, s72, s70\ns_cmp_lt_i32 s72, 0\ns_cbranch_scc1 L_sp")
    A("s_endpgm")

def ld_waddr(A, g1):
    pitch = P1 if g1 else P2
    srd(A, rW, sW1 if g1 else sW2, 0, S*F*2)
    A(f"s_mov_b32 s48, {pitch}\ns_lshl_b32 s49, s62, 4\ns_lshl_b32 s50, s{sFT if g1 else sST}, 8")
    for j in range(4):
        A(f"v_add_u32 v6, {4*(j%2)}, v3\nv_xor_b32 v6, v6, v5\nv_lshl_add_u32 v6, v6, 5, v4")
        A(f"s_add_u32 s51, s49, {4*j}\nv_add_u32 v7, s51, v3\nv_mul_lo_u32 v7, v7, s48\nv_add3_u32 v{8+j}, v7, v6, s50")
        if j: A(f"v_subrev_u32 v{8+j}, {j*1024}, v{8+j}")
    A("s_mov_b32 s50, 0" if g1 else f"s_mul_i32 s50, s{sHK}, {N2*64*P2}")
    if GLOB: A(f"s_add_u32 s64, s{sW1 if g1 else sW2}, s50\ns_addc_u32 s65, s{(sW1 if g1 else sW2)+1}, 0")
def ld_haddr(A, g1):
    srd(A, rH, sWS, WS_H if g1 else WS_U, H_BYTES if g1 else U_BYTES)
    A(f"s_mul_i32 s48, s{sDT1 if g1 else sDT2}, {HSTR if g1 else USTR}\ns_add_u32 s48, s48, s52\nv_lshl_add_u32 v12, v2, 4, s48")
    A("s_mov_b32 s51, 0" if g1 else f"s_mul_i32 s51, s{sHK}, {N2*16384}")
    if GLOB: A(f"s_add_u32 s66, s{rH}, s51\ns_addc_u32 s67, s{rH+1}, 0")
def issue_w(A, g1, m0):
    A(m0 + "\ns_nop 0")
    if GLOB:
        for j in range(4): A(f"global_load_lds_dwordx4 v{8+j}, s[64:65] offset:{j*1024}")
        A(f"s_add_u32 s64, s64, {64*(P1 if g1 else P2)}\ns_addc_u32 s65, s65, 0")
        return
    for j in range(4): A(f"buffer_load_dwordx4 v{8+j}, s[{rW}:{rW+3}], s50 offen offset:{j*1024} lds")
    A(f"s_add_u32 s50, s50, {64*(P1 if g1 else P2)}")
def issue_h(A, m0, flag="sc1"):
    A(m0 + "\ns_nop 0")
    if GLOB:
        for j in range(4): A(f"global_load_lds_dwordx4 v12, s[66:67] offset:{j*1024} {flag}")
        A("s_add_u32 s66, s66, 16384\ns_addc_u32 s67, s67, 0")
        return
    for j in range(4): A(f"buffer_load_dwordx4 v12, s[{rH}:{rH+3}], s51 offen offset:{j*1024} {flag} lds")
    A("s_add_u32 s51, s51, 16384")
def ld_main(A, o, g1, wdone=4, pre_bar=None, post_bar=None, after_h=None, after_issue=None, slot=None):
    N = N1 if g1 else N2; P = "1" if g1 else "2"
    cnt = []
    for z in range(R):
        if z >= wdone: issue_w(A, g1, f"s_add_u32 m0, s52, {z*32768}")
        issue_h(A, f"s_add_u32 m0, s52, {z*32768 + 16384}")
        cnt.append(8 if z >= wdone else 4)
    if after_h: after_h()
    A(f"s_waitcnt vmcnt({sum(cnt[1:])})")
    stamp(A, o, 3 if g1 else 6)
    A("s_barrier")
    for n, c in ((0, sum(cnt[2:])), (1, cnt[3] + 8)):
        A(f"s_waitcnt vmcnt({c})\ns_barrier")
        issue_w(A, g1, f"s_add_u32 m0, s52, {n*32768}"); issue_h(A, "s_add_u32 m0, m0, 16384")
        if after_issue and g1: after_issue()
        if slot: slot(A)
    A("s_mov_b32 s53, 2")
    if o.get("lalign", 6): A(f".p2align {o.get('lalign', 6)}")
    for _ in range(o.get("lpad", 0)): A("s_nop 0")
    A(f"L_l_loop{P}:")
    A(f"s_and_b32 s54, s53, {R-1}\ns_lshl_b32 s54, s54, 15")
    if o.get("wrapw"):
        A(f"s_and_b32 s58, s53, 3\ns_mul_i32 s58, s58, {64*(P1 if g1 else P2)}\ns_add_u32 s64, s{sW1 if g1 else sW2}, s58\ns_addc_u32 s65, s{(sW1 if g1 else sW2)+1}, 0")
    if o.get("wraph"):
        A(f"s_add_u32 s66, s{rH}, s54\ns_addc_u32 s67, s{rH+1}, 0")
    A("s_waitcnt vmcnt(16)")
    if pre_bar: pre_bar()
    A("s_barrier")
    if post_bar: post_bar()
    if o.get("series"): A(f"s_memrealtime s[90:91]\ns_memtime s[88:89]\ns_add_u32 m0, s53, {0 if g1 else 32}\ns_waitcnt lgkmcnt(0)\nv_writelane_b32 v26, s90, m0\nv_writelane_b32 v27, s88, m0")
    issue_w(A, g1, "s_add_u32 m0, s52, s54"); issue_h(A, "s_add_u32 m0, m0, 16384")
    if after_issue: after_issue()
    if slot: slot(A)
    m = o.get("m" + P, 0 if g1 else 20)
    if not m:
        A(f"s_add_u32 s53, s53, 1\ns_cmp_lt_u32 s53, {N-R}\ns_cbranch_scc1 L_l_loop{P}")
        return
    A(f"s_add_u32 s53, s53, 1\ns_cmp_lt_u32 s53, {m}\ns_cbranch_scc1 L_l_loop{P}")
    A("s_waitcnt vmcnt(16)\ns_barrier")
    if slot: slot(A)
    A(f".p2align 6\nL_l_loopb{P}:")
    A(f"s_and_b32 s54, s53, {R-1}\ns_lshl_b32 s54, s54, 15")
    A("s_waitcnt vmcnt(8)\ns_barrier")
    issue_w(A, g1, "s_add_u32 m0, s52, s54"); issue_h(A, "s_add_u32 m0, m0, 16384")
    if slot: slot(A)
    A(f"s_add_u32 s53, s53, 1\ns_cmp_lt_u32 s53, {N-R}\ns_cbranch_scc1 L_l_loopb{P}")

def w2unit(A, dst, nl, sbase, r0, other, cnt, col0):
    sh = nl.bit_length() - 1
    A(f"s_lshr_b32 s58, s{sXCD}, 2" + ("\ns_xor_b32 s58, s58, 1" if other else "") + f"\ns_add_u32 s58, s58, {r0}\ns_and_b32 s59, s{sXCD}, 3\ns_lshl_b32 s59, s59, 10\ns_add_u32 s59, s59, {col0*128}")
    A(f"v_and_b32 v{dst}, {nl-1}, v2\nv_lshl_add_u32 v{dst}, v{dst}, 7, s59\nv_lshrrev_b32 v6, {sh}, v2\nv_cmp_gt_u32 vcc, {cnt}, v6\nv_add_u32 v6, s{sbase}, v6")
    A(f"v_and_b32 v7, 1, v6\nv_mul_u32_u24 v7, 1792, v7\nv_and_b32 v6, -2, v6\nv_add3_u32 v7, v7, v6, s58\nv_lshl_add_u32 v{dst}, v7, 12, v{dst}")
    A(f"v_mov_b32 v6, 0x7fffffff\nv_cndmask_b32 v{dst}, v6, v{dst}, vcc")
def sc2_setup(A, j0):
    A(f"s_and_b32 s98, s{sN}, 1\ns_mul_i32 s98, s98, 1792\ns_and_b32 s99, s{sN}, -2\ns_add_u32 s98, s98, s99\ns_lshr_b32 s99, s{sXCD}, 2\ns_add_u32 s98, s98, s99\ns_add_u32 s98, s98, {896 + 32*j0}\ns_lshl_b32 s98, s98, 12")
    A(f"s_and_b32 s99, s{sXCD}, 3\ns_lshl_b32 s99, s99, 10\ns_add_u32 s98, s98, s99\ns_lshl_b32 s99, s62, 8\ns_add_u32 s98, s98, s99\ns_add_u32 s98, s98, s{sW2}\ns_addc_u32 s99, s{sW2+1}, 0\ns_mov_b32 s97, 20")
def sc2_unit(A):
    for q in range(4): A(f"s_load_dword s96, s[98:99], {64*q}")
    A(f"s_add_u32 s98, s98, {32*P2}\ns_addc_u32 s99, s99, 0")
_lab = [0]
def sc2_slot(A):
    _lab[0] += 1
    A(f"s_cmp_eq_u32 s97, 0\ns_cbranch_scc1 L_l_sc{_lab[0]}")
    sc2_unit(A)
    A(f"s_sub_u32 s97, s97, 1\nL_l_sc{_lab[0]}:")
def w2rows(A, dst, srow):
    A(f"v_and_b32 v{dst}, 31, v2\nv_lshlrev_b32 v{dst}, 7, v{dst}\nv_lshrrev_b32 v7, 5, v2\nv_mul_u32_u24 v7, 1792, v7\nv_add_u32 v7, s{srow}, v7\nv_lshl_add_u32 v{dst}, v7, 12, v{dst}")

def s2line(A, dst, tmp):
    A(f"s_lshl_b32 s{dst}, s{sDT2}, 1\ns_add_u32 s{dst}, s{dst}, s{sHK}\ns_mul_i32 s{dst}, s{dst}, {S2R}\ns_and_b32 s{tmp}, s{sST}, {S2R-1}\ns_add_u32 s{dst}, s{dst}, s{tmp}\ns_lshl_b32 s{dst}, s{dst}, 11\ns_add_u32 s{dst}, s{dst}, {S2_OFF}")
def touch_flags(A, o, worker):
    if not o.get("ftouch", 1): return
    lab = "L_l_nt" + ("w" if worker else "s")
    A(f"s_cmp_lg_u32 s3, 7\ns_cbranch_scc1 {lab}")
    if worker: A(f"buffer_load_dword v31, v13, s[{rF}:{rF+3}], s56 offen sc1")
    s2line(A, 58, 59)
    A(f"v_lshl_add_u32 v21, v2, 7, s58")
    A(f"s_lshl_b32 s58, s2, 10\ns_add_u32 s58, s58, {S3_OFF - 16*128}\nv_lshl_add_u32 v22, v2, 7, s58\nv_cmp_gt_u32 vcc, 16, v2\ns_nop 1\nv_cndmask_b32 v21, v22, v21, vcc")
    A(f"s_mov_b64 exec, 0xffffff\nbuffer_load_dword v31, v21, s[{rF}:{rF+3}], 0 offen sc1\ns_mov_b64 exec, -1\n{lab}:")

def gen_loader(A, o):
    A("L_loader:")
    if o.get("lprio"): A(f"s_setprio {o['lprio']}")
    A("s_sub_u32 s62, s3, 4\ns_lshl_b32 s52, s62, 12\nv_and_b32 v2, 63, v0")
    A("v_lshrrev_b32 v3, 4, v2\nv_and_b32 v4, 15, v2\nv_lshrrev_b32 v5, 1, v4\nv_and_b32 v4, 1, v4\nv_lshlrev_b32 v4, 4, v4")
    A("s_waitcnt lgkmcnt(0)")
    common_setup(A, o)
    nr = o.get("lnrows", 3)
    aff = o.get("aff", 1); n2 = o.get("n2", 0)
    if aff:
        dup = o.get("dup", 1)
        kk = 18 if dup else 14; npair = 3 if dup else 4
        A(f"v_mul_u32_u24 v13, {(65536 + kk - 1)//kk}, v2\nv_lshrrev_b32 v13, 16, v13\nv_mul_u32_u24 v14, {kk}, v13\nv_sub_u32 v14, v2, v14")
        A(f"s_and_b32 s48, s{sXCD}, 3\ns_lshr_b32 s49, s{sXCD}, 2\ns_mul_i32 s58, s48, 14\ns_add_u32 s59, s48, 1\ns_and_b32 s59, s59, 3\ns_lshl_b32 s59, s59, 1")
        A("v_cmp_gt_u32 vcc, 14, v14\nv_add_u32 v16, s58, v14\nv_subrev_u32 v17, 14, v14\nv_lshrrev_b32 v18, 1, v17\nv_lshlrev_b32 v18, 3, v18\nv_and_b32 v17, 1, v17\nv_add3_u32 v17, v17, v18, s59")
        A("v_cmp_gt_u32 s[60:61], 14, v17\nv_add_u32 v17, s58, v17\nv_cndmask_b32 v16, v17, v16, vcc\ns_or_b64 s[60:61], s[60:61], vcc")
        A("s_xor_b32 s58, s49, 1\nv_mov_b32 v17, s58\nv_mov_b32 v18, s49\nv_cndmask_b32 v17, v17, v18, vcc\nv_lshl_add_u32 v17, v13, 1, v17")
        A(f"v_cmp_gt_u32 vcc, {npair}, v13\ns_and_b64 vcc, vcc, s[60:61]\nv_mul_u32_u24 v17, {P1}, v17\nv_lshl_add_u32 v13, v16, 7, v17\nv_mov_b32 v17, 0x7fffffff\nv_cndmask_b32 v13, v17, v13, vcc")
        skip = o.get("skip", 0)
        A(f"s_sub_u32 s48, s{sN}, {skip}\ns_cselect_b32 s49, 0x7ff00000, 0\ns_mul_i32 s48, s48, {nr}\ns_add_u32 s48, s48, s62\ns_mul_i32 s55, s48, {2*npair*P1}\nv_mov_b32 v25, v13")
        if skip: A("s_cmp_lg_u32 s49, 0\ns_cselect_b32 s55, s49, s55")
    else:
        A(f"s_mul_i32 s48, s2, {nr}\ns_add_u32 s48, s48, s62\ns_mul_i32 s55, s48, {P1}\nv_min_u32 v13, 55, v2\nv_lshlrev_b32 v13, 7, v13")
    def lnpf(r_, lab):
        if nr == 0: return
        if nr < 4: A(f"s_cmp_ge_u32 s62, {nr}\ns_cbranch_scc1 {lab}")
        A(f"buffer_load_dword v31, v13, s[{r_}:{r_+3}], s55 offen\n{lab}:")
    A("s_cmp_ge_u32 s2, 224\ns_cbranch_scc1 L_l_spare")
    srd(A, rW, sW1, 0, S*F*2)
    A("s_barrier")
    lnpf(rW, "L_l_nopf")
    ld_waddr(A, True)
    ld_haddr(A, True)
    A(f"s_and_b32 s56, s{sDT1}, 6\ns_and_b32 s59, s{sXCD}, 1\ns_add_u32 s56, s56, s59\ns_lshl_b32 s56, s56, {15 - S1L}\ns_add_u32 s56, s56, {S1_OFF}\nv_lshrrev_b32 v13, {S1L - 2}, v2\nv_lshlrev_b32 v13, 7, v13\nv_and_b32 v14, {(1 << (S1L - 2)) - 1}, v2\nv_lshl_add_u32 v13, v14, 4, v13")
    touch_flags(A, o, True)
    A("s_waitcnt lgkmcnt(0)")
    make_tag(A)
    wa, wb, wc = o.get("wa", 0), o.get("wb", 0), o.get("wc", 4)
    prog = o.get("prog", 8)
    iw = lambda z: issue_w(A, True, f"s_add_u32 m0, s52, {z*32768}")
    A("s_barrier")
    for z in range(wa): iw(z)
    if wb: A("s_barrier")
    for z in range(wa, wa + wb): iw(z)
    A("s_barrier")
    for z in range(wa + wb, wa + wb + wc): iw(z)
    p1 = f"buffer_load_dwordx4 v[16:19], v13, s[{rF}:{rF+3}], s56 offen sc1"
    def gen_store(lab):
        A(f"s_cmp_lg_u32 s2, 0\ns_cbranch_scc1 {lab}")
        A(f"v_mov_b32 v16, s{sTAG}\nv_mov_b32 v17, 0\ns_mov_b64 exec, 1\nbuffer_store_dword v16, v17, s[{rF}:{rF+3}], 0 offen offset:{GEN_OFF} sc1\ns_mov_b64 exec, -1")
    spf = o.get("spf", 0)
    def sc_pf():
        for q in range(4): A(f"s_load_dword s96, s[48:49], {64*q}")
        A(f"s_sub_u32 s48, s48, {28*P2}\ns_subb_u32 s49, s49, 0")
    if spf:
        A(f"s_and_b32 s48, s{sN}, 1\ns_mul_i32 s48, s48, 1792\ns_and_b32 s49, s{sN}, -2\ns_add_u32 s48, s48, s49\ns_lshr_b32 s49, s{sXCD}, 2\ns_add_u32 s48, s48, s49\ns_add_u32 s48, s48, {256 + 31*28}\ns_lshl_b32 s48, s48, 12")
        A(f"s_and_b32 s49, s{sXCD}, 3\ns_lshl_b32 s49, s49, 10\ns_add_u32 s48, s48, s49\ns_lshl_b32 s49, s62, 8\ns_add_u32 s48, s48, s49\ns_add_u32 s48, s48, s{sW2}\ns_addc_u32 s49, s{sW2+1}, 0")
    stamp(A, o, 1)
    A("s_mov_b32 s57, 0xff\ns_mov_b32 s63, 0xff\ns_cmp_lg_u32 s3, 4\ns_cbranch_scc1 L_l_s1seen")
    poll(A, "L_l_p1", p1, [16, 17, 18, 19], mask=(1 << (2*prog)) - 1 if prog else None)
    stamp(A, o, 2)
    if o.get("stamp"): A("s_sub_u32 s84, 0x200000, s59")
    if prog: A(f"s_mov_b32 s57, {prog-4}\ns_mov_b32 s63, {prog-6}\ns_mov_b32 s50, -1\ns_mov_b32 s51, 0xffffff")
    else: gen_store("L_l_s1seen")
    A("L_l_s1seen:\ns_barrier")
    def late_check():
        A("s_cmp_lg_u32 s53, s57\ns_cbranch_scc1 L_l_nochk")
        if o.get("spearly", 0):
            poll(A, "L_l_p1b", p1, [16, 17, 18, 19], pre=16, mask="s[50:51]")
            A("s_cmp_eq_u32 s57, 24\ns_mov_b32 s57, 24\ns_mov_b32 s63, 22\ns_mov_b32 s51, -1\ns_cbranch_scc0 L_l_nochk")
        else: poll(A, "L_l_p1b", p1, [16, 17, 18, 19], pre=16)
        gen_store("L_l_nochk")
        A("L_l_nochk:")
    def late_issue():
        A(f"s_cmp_lg_u32 s53, s63\ns_cbranch_scc1 L_l_noiss\n{p1}\nL_l_noiss:")
    ld_main(A, o, True, wa + wb + wc, late_check if prog else None, late_issue if prog else None, after_issue=sc_pf if spf else None)
    if spf: A('s_mov_b32 s46, s48\ns_mov_b32 s47, s49')
    ld_waddr(A, False)
    post = o.get("post", 1)
    inl = o.get("inl", 1); sp2 = o.get("spf2", 0)
    if inl:
        if o.get("tearly", 0):
            A(f"s_mul_i32 s48, s{sN}, 23")
            w2unit(A, 13, 2, 48, 256, True, 23, 2)
        nw = 4
        if sp2: sc2_setup(A, 0)
    elif post:
        nw = o.get("pw", 4)
        A(f"s_mul_i32 s48, s{sN}, {8*nw}\ns_lshl_b32 s49, s62, 3\ns_add_u32 s49, s49, s48\ns_lshr_b32 s58, s{sXCD}, 2\ns_and_b32 s59, s{sXCD}, 3\ns_lshl_b32 s59, s59, 10")
        def rowaddr(dst, pp, par):
            A(f"v_and_b32 v7, 1, v{pp}\nv_mul_u32_u24 v7, 1792, v7\nv_and_b32 v{pp}, -2, v{pp}\nv_add3_u32 v7, v7, v{pp}, s{par}\nv_add_u32 v7, 256, v7\nv_lshl_add_u32 v{dst}, v7, 12, v{dst}")
        A("v_and_b32 v13, 7, v2\nv_lshl_add_u32 v13, v13, 7, s59\nv_lshrrev_b32 v6, 3, v2\nv_add_u32 v6, s49, v6")
        rowaddr(13, 6, 58)
        A(f"v_xor_b32 v15, 4096, v13")
        A("s_xor_b32 s58, s58, 1\ns_add_u32 s59, s59, 256\nv_and_b32 v14, 1, v2\nv_lshl_add_u32 v14, v14, 7, s59\nv_lshrrev_b32 v6, 1, v2\nv_add_u32 v6, s48, v6")
        rowaddr(14, 6, 58)
        if nw < 4: A(f"v_mov_b32 v6, 0x7fffffff\nv_cmp_gt_u32 vcc, {16*nw}, v2\ns_nop 1\nv_cndmask_b32 v14, v6, v14, vcc")
    else:
        A(f"s_lshl_b32 s48, s2, 2\ns_add_u32 s48, s48, s62\ns_add_u32 s48, s48, 896")
        w2rows(A, 13, 48)
    te = 0 if spf else o.get("tearly", 0)
    if post and te: A(f"s_cmp_ge_u32 s62, {te}\ns_cselect_b32 s48, 0x7ff00000, 0\nbuffer_load_dword v31, v13, s[{rW}:{rW+3}], s48 offen")
    w2l = o.get("w2late", 0)
    m1 = o.get("m1", 0)
    plan = [(8, [0, 1]), (8, [2]), (None, [3])] if m1 else [(16, [0]), (12, [1]), (8, [2]), (None, [3])]
    if w2l: plan = [(8, []), (0, []), (None, [])] if m1 else [(16, []), (8, []), (0, []), (None, [])]
    for c, zs in plan:
        if c is not None: A(f"s_waitcnt vmcnt({c + (1 if post and te else 0)})")
        A("s_barrier")
        for z in zs: issue_w(A, False, f"s_add_u32 m0, s52, {z*32768}")
        if sp2: sc2_unit(A)
        if spf:
            for q in range(4): A(f"s_load_dword s96, s[46:47], {64*q}")
            A(f"s_sub_u32 s46, s46, {28*P2}\ns_subb_u32 s47, s47, 0")
    if w2l == 1:
        for z in range(R): issue_w(A, False, f"s_add_u32 m0, s52, {z*32768}")
    if not post: A(f"buffer_load_dword v31, v13, s[{rW}:{rW+3}], 0 offen")
    if sp2:
        for _ in range(4): sc2_unit(A)
    A("s_barrier")
    if w2l == 2:
        for z in range(R): issue_w(A, False, f"s_add_u32 m0, s52, {z*32768}")
    def post_pf():
        if te < 4 and not spf: A(f"s_cmp_lt_u32 s62, {te}\ns_cbranch_scc1 L_l_tl\ns_cmp_ge_u32 s62, {nw}\ns_cbranch_scc1 L_l_tm\nbuffer_load_dword v31, v29, s[{rW}:{rW+3}], 0 offen\nL_l_tm:")
        if o.get("dup2", 1): A(f"s_cmp_lg_u32 s62, 3\ns_cbranch_scc1 L_l_tl\nbuffer_load_dword v31, v30, s[{rW}:{rW+3}], 0 offen")
        A("L_l_tl:")
    if not inl: A("v_mov_b32 v29, v13\nv_mov_b32 v30, v14")
    if post and not inl and not o.get("postlate", 0): post_pf()
    A("L_l_g2:")
    ld_haddr(A, False)
    srd(A, rS, sOUT, 0, S*D*2)
    A(f"s_lshl_b32 s58, s{sST}, 7\ns_lshr_b32 s59, s62, 1\ns_lshl_b32 s59, s59, 6\ns_add_u32 s58, s58, s59\ns_lshl_b32 s59, s{sHK}, 5\ns_add_u32 s58, s58, s59\ns_lshl_b32 s58, s58, 11")
    A(f"s_lshl_b32 s59, s{sDT2}, 8\ns_add_u32 s58, s58, s59\ns_and_b32 s59, s62, 1\ns_lshl_b32 s59, s59, 7\ns_add_u32 s58, s58, s59\nv_lshl_add_u32 v23, v2, 11, s58")
    A(f"s_lshl_b32 s58, s2, 10\ns_lshl_b32 s59, s62, 8\ns_add_u32 s58, s58, s59\ns_add_u32 s58, s58, {S3_OFF}\nv_mov_b32 v24, s58")
    if inl:
        upw = o.get("upw", 6)
        A(f"s_mul_i32 s48, s{sN}, {4*upw}\ns_mul_i32 s49, s62, {upw}\ns_add_u32 s49, s49, s48")
        w2unit(A, 29, 8, 49, 1792 - 128*upw, False, upw, 0)
        if o.get("dupd", 99) < 99: w2unit(A, 30, 2, 48, 1792 - 128*upw, True, 4*upw, 2)
        if o.get("stag", 2):
            sh = o.get("stag", 2) - 1
            A(f"s_lshr_b32 s57, s{sN}, {sh}\ns_add_u32 s57, s57, {o.get('in0', 2)}\ns_add_u32 s63, s57, {o.get('dupd', 99)}\ns_cmp_eq_u32 s62, 0\ns_cselect_b32 s63, s63, 0xff")
        else: A(f"s_mul_i32 s57, s62, {o.get('ind', 2)}\ns_add_u32 s57, s57, {o.get('in0', 2)}\ns_cmp_eq_u32 s62, 0\ns_cselect_b32 s63, {o.get('in0', 2) + 4*o.get('ind', 2)}, 0xff")
    def inl_pf():
        if not sp2: A(f"s_cmp_lg_u32 s53, s57\ns_cbranch_scc1 L_l_i1\nbuffer_load_dword v31, v29, s[{rW}:{rW+3}], 0 offen\nL_l_i1:")
        if o.get("dupd", 99) < 99: A(f"s_cmp_lg_u32 s53, s63\ns_cbranch_scc1 L_l_i2\nbuffer_load_dword v31, v30, s[{rW}:{rW+3}], 0 offen\nL_l_i2:")
    s2line(A, 56, 58)
    A(f"v_lshlrev_b32 v13, {S2S}, v2")
    stamp(A, o, 4)
    A("s_cmp_lg_u32 s3, 4\ns_cbranch_scc1 L_l_s2seen")
    poll(A, "L_l_p2", f"buffer_load_dword v16, v13, s[{rF}:{rF+3}], s56 offen sc1", [16], mask=(1 << 14) - 1)
    stamp(A, o, 5)
    if o.get("stamp"): A("s_sub_u32 s86, 0x200000, s59")
    A("L_l_s2seen:\ns_barrier")
    ld_main(A, o, False, after_h=post_pf if post and o.get('postlate', 0) else None, after_issue=inl_pf if inl else None, slot=sc2_slot if sp2 else None)
    x = 0
    if o.get("otouch", 1):
        x = 2
        A(f"s_mov_b64 exec, 0xffffffff\ns_mov_b32 exec_hi, 0\nbuffer_load_dword v31, v23, s[{rS}:{rS+3}], 0 offen sc1\ns_mov_b64 exec, 1\nbuffer_load_dword v31, v24, s[{rF}:{rF+3}], 0 offen sc1\ns_mov_b64 exec, -1")
    for c in (8, 0, None) if o.get("m2", 20) else (16, 8, 0, None):
        if c is not None: A(f"s_waitcnt vmcnt({c + x})")
        A("s_barrier")
    if o.get("stamp"):
        A("s_cmp_lg_u32 s3, 4\ns_cbranch_scc1 L_l_nost")
        stamp_flush(A, o, range(1, 9), 2)
        A("L_l_nost:")
    if o.get("series"):
        A(f"s_cmp_lg_u32 s3, 7\ns_cbranch_scc1 L_end\ns_add_u32 s92, s{sWS}, {WS_STAMP + 65536}\ns_addc_u32 s93, s{sWS+1}, 0\ns_lshl_b32 s89, s2, 8\nv_lshl_add_u32 v28, v2, 2, s89\nglobal_store_dword v28, v26, s[92:93]\nv_add_u32 v28, 0x10000, v28\nglobal_store_dword v28, v27, s[92:93]")
    A("s_endpgm")
    A("L_l_spare:")
    srd(A, rH, sW1, 0, S*F*2)
    A("s_barrier")
    lnpf(rH, "L_l_nopf2")
    if o.get("cwarm", 0):
        A("s_cmp_lg_u32 s3, 7\ns_cbranch_scc1 L_l_ncw\ns_getpc_b64 s[58:59]\nL_l_pc:")
        A(f"s_sub_u32 s58, s58, L_l_pc-{NAME}\ns_subb_u32 s59, s59, 0\ns_sub_u32 s60, s{sN}, 28\ns_lshl_b32 s60, s60, 13\nv_lshl_add_u32 v21, v2, 7, s60")
        A(f"v_min_u32 v21, L_end-{NAME}, v21\nglobal_load_dword v31, v21, s[58:59]\nL_l_ncw:")
    touch_flags(A, o, False)
    ld_waddr(A, False)
    A("s_waitcnt lgkmcnt(0)")
    make_tag(A)
    A("s_barrier")
    if not o.get("spearly", 0): A("s_barrier")
    if o.get("wb", 0): A("s_barrier")
    A("s_cmp_lg_u32 s3, 4\ns_cbranch_scc1 L_l_spw")
    A("s_sub_u32 s48, s2, 224\ns_lshl_b32 s49, s48, 13\nv_lshl_add_u32 v13, v2, 7, s49")
    w2rows(A, 14, 48)
    r0 = 256 * nr
    def sp_w2(lab, r0_, r1_):
        if r0_ < r1_: A(f"s_mov_b32 s48, {r0_*P2}\n{lab}:\nbuffer_load_dword v31, v14, s[{rW}:{rW+3}], s48 offen\ns_add_u32 s48, s48, {32*P2}\ns_cmp_lt_u32 s48, {r1_*P2}\ns_cbranch_scc1 {lab}")
    if o.get("spare", 1):
        if post: sp_w2("L_l_sp0", 0, 256)
        if aff:
            A(f"s_sub_u32 s48, s{sN}, {28 - (32 - o.get('skip', 0))*nr}\ns_mul_i32 s48, s48, {2*npair*P1}\nL_l_sp1:\nbuffer_load_dword v31, v25, s[{rH}:{rH+3}], s48 offen\ns_add_u32 s48, s48, {8*npair*P1}\ns_cmp_lt_u32 s48, {S*P1}\ns_cbranch_scc1 L_l_sp1")
        else: A(f"s_mov_b32 s48, {r0*P1}\nL_l_sp1:\nbuffer_load_dword v31, v13, s[{rH}:{rH+3}], s48 offen\ns_add_u32 s48, s48, {32*8192}\ns_cmp_lt_u32 s48, {S*P1}\ns_cbranch_scc1 L_l_sp1")
        if inl:
            if o.get("spw", 1):
                for z in range(R): issue_w(A, False, f"s_add_u32 m0, s52, {z*32768}")
            A(f"s_sub_u32 s48, s{sN}, 28\ns_lshl_b32 s48, s48, 3")
            w2unit(A, 14, 8, 48, 256, False, 8, 0)
            sp_w2("L_l_sp2", 0, 1792 - 128*o.get("upw", 6) - 256)
            if sp2:
                w2unit(A, 14, 8, sN, 896, False, 1, 0)
                A(f"v_lshrrev_b32 v6, 3, v2\nv_readfirstlane_b32 s48, v14\nv_and_b32 v14, 7, v2\nv_lshlrev_b32 v14, 7, v14\nv_lshl_add_u32 v14, v6, 17, v14\ns_nop 2\nbuffer_load_dword v31, v14, s[{rW}:{rW+3}], s48 offen")
        elif post: sp_w2("L_l_sp2", 256 + 224*nw, o.get("spw2", 1792))
        else: sp_w2("L_l_sp2", 0, 896)
    if o.get("stamp"):
        A("s_waitcnt vmcnt(0)"); stamp(A, o, 0); stamp_flush(A, o, [0], 1); A("s_mov_b64 exec, -1")
    if o.get("spw", 1): A("s_branch L_l_g2")
    A("L_l_spw:")
    if sp2: sc2_setup(A, 8)
    A("v_mov_b32 v29, 0x7fffffff\nv_mov_b32 v30, 0x7fffffff")
    for z in range(R): issue_w(A, False, f"s_add_u32 m0, s52, {z*32768}")
    A("s_branch L_l_g2")

HEAD = open(__file__.replace("gen2.py", "head.txt")).read()
def build(o):
    global GLOB, S1L, S2R, S2S
    S1L = o.get('s1l', 3); S2R = o.get('s2r', 1); S2S = o.get('s2s', 7)
    GLOB = o.get('glob', 1)
    global PAD, HSTR, USTR, H_BYTES, U_BYTES
    PAD = o.get("pad", 8192); HSTR, USTR = 64*8192 + PAD, 112*8192 + PAD; H_BYTES, U_BYTES = 8*HSTR, 8*USTR
    A = Asm()
    A.L.append(HEAD.rstrip("\n"))
    if o.get("tail_e"):
        A(f"; @launch kernel={NAME} grid=(256,1,1) block=(512,1,1) lds={LDS_LN + 256}")
        A("; @launch kernel=empty_kernel grid=(256,1,1) block=(64,1,1) lds=0")
    else: A(f"; @launch grid=(256,1,1) block=(512,1,1) lds={LDS_LN + 256}")
    A('.amdgcn_target "amdgcn-amd-amdhsa--gfx950"\n.text')
    A(f".globl {NAME}\n.p2align 8\n.type {NAME},@function\n{NAME}:")
    A("s_cmp_ge_u32 s2, 256\ns_cbranch_scc1 L_end")
    stamp(A, o, 0)
    A("s_load_dwordx16 s[4:19], s[0:1], 0")
    A("v_readfirstlane_b32 s3, v0\ns_nop 0\ns_lshr_b32 s3, s3, 6\ns_cmp_ge_u32 s3, 4\ns_cbranch_scc1 L_loader")
    gen_ln(A, o)
    A("s_cmp_ge_u32 s2, 224\ns_cbranch_scc1 L_c_g2")
    cons_prologue(A, o, True)
    cons_loop(A, o)
    cons_epi1(A, o)
    A("L_c_g2:")
    cons_prologue(A, o, False)
    A("s_branch L_c_main")
    cons_epi2(A, o)
    gen_loader(A, o)
    A("L_end:\ns_endpgm")
    def desc(name, v):
        A(f".p2align 6\n.amdhsa_kernel {name}\n  .amdhsa_next_free_vgpr {v}\n  .amdhsa_next_free_sgpr 102\n  .amdhsa_accum_offset {v}\n"
          "  .amdhsa_group_segment_fixed_size 0\n  .amdhsa_kernarg_size 64\n  .amdhsa_user_sgpr_count 2\n"
          "  .amdhsa_user_sgpr_kernarg_segment_ptr 1\n  .amdhsa_system_sgpr_workgroup_id_x 1\n.end_amdhsa_kernel")
    if o.get("tail_e"):
        A(".globl empty_kernel\n.p2align 8\n.type empty_kernel,@function\nempty_kernel:")
        A("s_cmp_ge_u32 s2, 256\ns_cbranch_scc1 L_em_end\ns_memrealtime s[70:71]\ns_load_dwordx2 s[18:19], s[0:1], 56")
        stamp_flush(A, o, [0], 3)
        A("L_em_end:\ns_endpgm")
    A('.section .rodata,"a"')
    desc(NAME, 192 if o.get('kk', 1) else 160)
    if o.get("tail_e"): desc("empty_kernel", 32)
    return A.text()

if __name__ == "__main__":
    o = {}
    for kv in sys.argv[2:]:
        k, v = kv.split("=", 1)
        o[k] = int(v) if v.lstrip("-").isdigit() else v
    open(sys.argv[1], "w").write(build(o))
```

```python
import sys, struct, math
S, D, F = 2048, 1024, 3584
NAME = "standalone__mixer_token_mlp__prompt_kernel"
WS_H, WS_U, WS_FLG, WS_STAMP = 0, 6 << 20, 20 << 20, 24 << 20
HSTR, USTR = 64*8192 + 8192, 112*8192 + 8192
H_BYTES, U_BYTES = 8*HSTR, 8*USTR
GEN_OFF, S1_OFF, S2_OFF, S3_OFF = 0, 65536, 131072, 393216
FLG_BYTES = S3_OFF + 256*1024
R = 4
LDS_LN = R*32768
N1, N2 = 32, 28
P1, P2 = F*2, S*2
GC0 = -2.0*math.sqrt(2.0/math.pi)*math.log2(math.e); GC1 = GC0*0.044715
GS = (-GC1) ** (1.0/3.0); GK = -GC0/GS
OOB = 0x7fffffff

def f32(x): return "0x%08x" % struct.unpack("<I", struct.pack("<f", x))[0]
class Asm:
    def __init__(self): self.L = []
    def __call__(self, s):
        for l in s.split("\n"):
            l = l.strip()
            if l: self.L.append(l if (l.endswith(":") or l.startswith(".") or l.startswith(";")) else "    " + l)
    def c(self, s): self.L.append("    ; " + s)
    def text(self): return "\n".join(self.L) + "\n"

sX, sW1, sB1, sW2, sB2, sOUT, sDBG, sWS = 4, 6, 8, 10, 12, 14, 16, 18
sTAG, sXCD, sN, sFT, sDT1, sST, sDT2, sHK = 20, 21, 22, 23, 24, 25, 26, 27
rW, rH, rF, rM, rS = 28, 32, 36, 40, 44
sPH, sN7 = 68, 69
ACC, WB, HB = 32, 96, (128, 160)
VWA, VHA = 8, 16

def srd(A, r, base, off, nbytes):
    if off: A(f"s_add_u32 s{r}, s{base}, {off}\ns_addc_u32 s{r+1}, s{base+1}, 0")
    else: A(f"s_mov_b32 s{r}, s{base}\ns_mov_b32 s{r+1}, s{base+1}")
    A(f"s_mov_b32 s{r+2}, {nbytes}\ns_mov_b32 s{r+3}, 0x20000")
def stamp(A, o, i, cyc=None):
    if o.get("stamp"):
        A(f"s_memrealtime s[{70+2*i}:{71+2*i}]")
        if cyc is not None: A(f"s_memtime s[{94+2*cyc}:{95+2*cyc}]")
def stamp_flush(A, o, lst, slot=0):
    A("s_waitcnt lgkmcnt(0)")
    A(f"s_add_u32 s92, s{sWS}, {WS_STAMP + slot*16384}\ns_addc_u32 s93, s{sWS+1}, 0\nv_mov_b32 v28, s2\nv_lshlrev_b32 v28, 6, v28\ns_mov_b64 exec, 1")
    for i in lst: A(f"v_mov_b32 v1, s{70+2*i}\nglobal_store_dword v28, v1, s[92:93] offset:{4*i}")

def poll(A, label, load, regs, mask=None, pre=None):
    A("s_mov_b32 s59, 0x200000")
    if mask is not None: A(f"s_mov_b64 exec, {mask}")
    if pre is not None: A(f"s_waitcnt vmcnt({pre})\ns_branch {label}_c")
    A(f"{label}:\n{load}\ns_sub_u32 s59, s59, 1\ns_cbranch_scc1 {label}_x\ns_waitcnt vmcnt(0)\n{label}_c:")
    A(f"v_cmp_ne_u32 vcc, s{sTAG}, v{regs[0]}")
    for r_ in regs[1:]: A(f"v_cmp_ne_u32 s[60:61], s{sTAG}, v{r_}\ns_or_b64 vcc, vcc, s[60:61]")
    A(f"s_cmp_lg_u64 vcc, 0\ns_cbranch_scc1 {label}\n{label}_x:")
    if mask is not None: A("s_mov_b64 exec, -1")

def common_setup(A):
    A.c("hand-off area, generation word, tile coordinates (id%8 groups share a die under round-robin placement: speed only)")
    A(f"s_add_u32 s{rF}, s{sWS}, {WS_FLG}\ns_addc_u32 s{rF+1}, s{sWS+1}, 0\ns_mov_b32 s{rF+2}, {FLG_BYTES}\ns_mov_b32 s{rF+3}, 0x20000")
    A(f"s_load_dword s{sTAG}, s[{rF}:{rF+1}], {GEN_OFF}")
    A(f"s_and_b32 s{sXCD}, s2, 7\ns_lshr_b32 s{sN}, s2, 3")
    A(f"s_mul_i32 s66, s{sN}, 37\ns_lshr_b32 s66, s66, 8\ns_mul_i32 s67, s66, 7\ns_sub_u32 s{sN7}, s{sN}, s67")
    A(f"s_and_b32 s67, s{sXCD}, 3\ns_mul_i32 s{sFT}, s67, 7\ns_add_u32 s{sFT}, s{sFT}, s{sN7}")
    A(f"s_and_b32 s{sDT2}, s{sXCD}, 4\ns_add_u32 s{sDT1}, s{sDT2}, s66")
    A(f"s_and_b32 s{sHK}, s{sN}, 1\ns_lshl_b32 s{sST}, s67, 2\ns_bfe_u32 s66, s{sN}, 0x20001\ns_add_u32 s{sST}, s{sST}, s66")
    A(f"s_lshr_b32 s66, s{sN}, 3\ns_add_u32 s{sDT2}, s{sDT2}, s66")
def make_tag(A):
    A.c("tag of this launch's hand-off words = next value after the generation word found on entry")
    A(f"s_mul_i32 s{sTAG}, s{sTAG}, 0x9e3779b1\ns_add_u32 s{sTAG}, s{sTAG}, 0x7f4a7c15")

def gen_ln(A, o):
    A.c("==== LayerNorm of 8 rows: s = 32*kb + 16*(j/4) + 4*g + j%4, thread = 4 channels")
    A("s_lshr_b32 s48, s2, 2\ns_and_b32 s49, s2, 3")
    A("s_lshl_b32 s50, s48, 5\ns_lshl_b32 s51, s49, 2\ns_add_u32 s50, s50, s51\ns_lshl_b32 s50, s50, 11")
    A("v_lshlrev_b32 v1, 3, v0")
    rowoff = [(16*(j//4) + j % 4) * 2048 for j in range(8)]
    for j in range(8): A(f"s_add_u32 s{52+j}, s50, {rowoff[j]}")
    A("s_waitcnt lgkmcnt(0)")
    srd(A, rM, sX, 0, S*D*2)
    for j in range(8): A(f"buffer_load_dwordx2 v[{2+2*j}:{3+2*j}], v1, s[{rM}:{rM+3}], s{52+j} offen")
    A("s_barrier"); A.c("(b0) the x loads are queued ahead of any weight traffic of this CU")
    A(f"s_add_u32 s50, s{sX}, s50\ns_addc_u32 s51, s{sX+1}, 0")
    A.c("pivot of each row (its first element): sums are taken on x - pivot")
    for j in range(8): A(f"s_load_dword s{52+j}, s[50:51], {rowoff[j]}")
    common_setup(A)
    A.c("both biases (4 values per lane and 16-column block)")
    srd(A, rM, sB2, 0, S*2)
    A("s_lshr_b32 s63, s3, 1\ns_lshl_b32 s63, s63, 7\nv_bfe_u32 v19, v0, 4, 2\nv_lshlrev_b32 v19, 3, v19")
    A(f"s_lshl_b32 s61, s{sST}, 8\ns_add_u32 s61, s61, s63\ns_lshl_b32 s62, s{sHK}, 6\ns_add_u32 s61, s61, s62")
    for fb in range(2): A(f"buffer_load_dwordx2 v[{192+2*fb}:{193+2*fb}], v19, s[{rM}:{rM+3}], s61 offen offset:{fb*32}")
    srd(A, rM, sB1, 0, F*2)
    A(f"s_lshl_b32 s61, s{sFT}, 8\ns_add_u32 s61, s61, s63")
    bl = o.get("biaslate", 1)
    if bl: A("s_mov_b32 s68, s61")
    else:
        for fb in range(4): A(f"buffer_load_dwordx2 v[{104+2*fb}:{105+2*fb}], v19, s[{rM}:{rM+3}], s61 offen offset:{fb*32}")
    srd(A, rS, sWS, WS_H, H_BYTES)
    A(f"v_lshrrev_b32 v62, 5, v0\nv_mul_u32_u24 v62, {HSTR}, v62")
    A("v_bfe_u32 v63, v0, 4, 1\nv_lshlrev_b32 v63, 12, v63\nv_add_u32 v62, v62, v63")
    A("v_and_b32 v63, 15, v0\nv_lshlrev_b32 v63, 4, v63\nv_add_u32 v62, v62, v63")
    A("s_lshl_b32 s48, s48, 13\ns_lshl_b32 s49, s49, 8\ns_add_u32 s48, s48, s49")
    A(f"v_lshrrev_b32 v64, 4, v0\nv_lshlrev_b32 v64, 4, v64\nv_add_u32 v64, {LDS_LN}, v64")
    A(f"v_and_b32 v65, 3, v0\nv_lshlrev_b32 v65, 4, v65\nv_bfe_u32 v66, v0, 2, 1\nv_lshlrev_b32 v66, 2, v66\nv_add_u32 v65, v65, v66\nv_add_u32 v65, {LDS_LN}, v65")
    A("s_waitcnt lgkmcnt(0)")
    make_tag(A)
    for j in range(8): A(f"s_lshl_b32 s{52+j}, s{52+j}, 16")
    for j in range(8):
        A(f"s_waitcnt vmcnt({(9 if bl else 13)-j})")
        for c in range(4):
            src = 2 + 2*j + c//2; d = 70 + 4*j + c
            A(f"v_lshlrev_b32 v{d}, 16, v{src}" if c % 2 == 0 else f"v_and_b32 v{d}, 0xffff0000, v{src}")
        for c in range(4): A(f"v_subrev_f32 v{70+4*j+c}, s{52+j}, v{70+4*j+c}")
        b = 70 + 4*j
        A(f"v_add_f32 v{20+j}, v{b}, v{b+1}\nv_mul_f32 v{28+j}, v{b}, v{b}")
        A(f"v_add_f32 v{20+j}, v{20+j}, v{b+2}\nv_fmac_f32 v{28+j}, v{b+1}, v{b+1}")
        A(f"v_add_f32 v{20+j}, v{20+j}, v{b+3}\nv_fmac_f32 v{28+j}, v{b+2}, v{b+2}\nv_fmac_f32 v{28+j}, v{b+3}, v{b+3}")
    stamp(A, o, 1)
    A.c("16 partial sums -> wave totals (half/row swaps, then rotations inside 16 lanes)")
    A("s_nop 1")
    for p in range(8): A(f"v_permlane32_swap_b32 v{20+2*p}, v{21+2*p}")
    for p in range(8): A(f"v_add_f32 v{20+2*p}, v{20+2*p}, v{21+2*p}")
    A("s_nop 1")
    for q in range(4): A(f"v_permlane16_swap_b32 v{20+4*q}, v{22+4*q}")
    for q in range(4): A(f"v_add_f32 v{40+q}, v{20+4*q}, v{22+4*q}")
    for sh in (8, 4, 2, 1):
        A("s_nop 1")
        for q in range(4): A(f"v_add_f32_dpp v{40+q}, v{40+q}, v{40+q} row_ror:{sh} row_mask:0xf bank_mask:0xf")
    A("ds_write_b128 v64, v[40:43]")
    A("s_waitcnt lgkmcnt(0)\ns_barrier"); A.c("(b1)")
    for w in range(4): A(f"ds_read2_b32 v[{44+2*w}:{45+2*w}], v65 offset0:{16*w} offset1:{16*w+2}")
    A("s_waitcnt lgkmcnt(0)")
    A("v_add_f32 v44, v44, v46\nv_add_f32 v45, v45, v47\nv_add_f32 v48, v48, v50\nv_add_f32 v49, v49, v51\nv_add_f32 v44, v44, v48\nv_add_f32 v45, v45, v49")
    A(f"v_mul_f32 v44, {f32(1.0/D)}, v44\nv_mul_f32 v45, {f32(1.0/D)}, v45")
    A("v_fma_f32 v45, -v44, v44, v45\nv_max_f32 v45, 0, v45")
    A.c("a = gs / sqrt(var + eps), b = -mean * a  (gs: constant folded out again in the GELU)")
    A(f"v_add_f32 v45, {f32(1e-5)}, v45\nv_rsq_f32 v45, v45\ns_nop 0\nv_mul_f32 v45, {f32(GS)}, v45\nv_mul_f32 v44, v44, v45\nv_sub_f32 v44, 0, v44")
    A("s_nop 1")
    gmap = [0, 2, 1, 3]
    for e in range(8):
        j = gmap[e % 4] + 4*(e // 4)
        A(f"v_readlane_b32 s{52+j}, v45, {e}\nv_readlane_b32 s{60+j}, v44, {e}")
    A("s_nop 1")
    for j in range(8): A(f"v_mov_b32 v{20+j}, s{60+j}")
    A.c("h leaves in MFMA operand order: [d-tile][kb][16-channel block][lane][8 tokens], written through")
    for t in range(4):
        for j in range(8): A(f"v_fma_f32 v{70+4*j+t}, v{70+4*j+t}, s{52+j}, v{20+j}")
        for jj in range(4): A(f"v_cvt_pk_bf16_f32 v{44+4*t+jj}, v{70+4*(2*jj)+t}, v{70+4*(2*jj+1)+t}")
        A(f"buffer_store_dwordx4 v[{44+4*t}:{47+4*t}], v62, s[{rS}:{rS+3}], s48 offen offset:{t*1024} sc1")
    A.c("hand-off 1: wave w wrote d-tiles 2w, 2w+1 -> word (wg) of sets (w, replica 0/1)")
    A(f"s_lshr_b32 s48, s2, 3\ns_lshl_b32 s48, s48, 7\ns_and_b32 s49, s2, 7\ns_lshl_b32 s49, s49, 2\ns_add_u32 s48, s48, s49\ns_lshl_b32 s49, s3, 13\ns_add_u32 s48, s48, s49\ns_add_u32 s48, s48, {S1_OFF}")
    A(f"v_and_b32 v2, 63, v0\nv_lshlrev_b32 v3, 12, v2\nv_mov_b32 v4, s{sTAG}")
    A("s_waitcnt vmcnt(0)")
    A(f"s_mov_b64 exec, 3\nbuffer_store_dword v4, v3, s[{rF}:{rF+3}], s48 offen sc1\ns_mov_b64 exec, -1")
    stamp(A, o, 2)
    A.c("the die this wave runs on (the split-K partner, id ^ 8, picks its store flavour from it)")
    A("s_and_b32 s62, s3, 1\ns_lshr_b32 s63, s3, 1")
    A(f"s_lshl_b32 s54, s2, 10\ns_lshl_b32 s55, s3, 8\ns_add_u32 s54, s54, s55\ns_add_u32 s54, s54, {S3_OFF}\ns_xor_b32 s55, s54, 0x2000")
    A(f"s_getreg_b32 s64, hwreg(HW_REG_XCC_ID, 0, 4)\ns_add_u32 s64, s64, 1\ns_add_u32 s64, s64, s{sTAG}\nv_mov_b32 v6, s64\nv_mov_b32 v7, 128")
    A(f"s_mov_b64 exec, 1\nbuffer_store_dword v6, v7, s[{rF}:{rF+3}], s54 offen sc1\ns_mov_b64 exec, -1")
    A("s_barrier"); A.c("(b2)")

def rd_w(slot, fb):
    hi = slot >= 2; base = (slot % 2) * 32768
    return [f"ds_read_b64_tr_b16 v[{WB+8*fb+4*ks+2*r_}:{WB+8*fb+4*ks+2*r_+1}], v{VWA+4*hi+fb} offset:{base + ks*8192 + r_*4096}" for ks in range(2) for r_ in range(2)]
def rd_h(slot, hb):
    hi = slot >= 2; base = (slot % 2) * 32768
    return [f"ds_read_b128 v[{hb+16*ks+4*t}:{hb+16*ks+4*t+3}], v{VHA+hi} offset:{base + 16384 + ks*8192 + t*1024}" for t in range(4) for ks in range(2)]
def step(A, slot):
    hb, hn = HB[slot % 2], HB[1 - slot % 2]
    nx = (slot + 1) % R
    first = rd_w(slot, 1) + rd_w(slot, 2) + rd_w(slot, 3)
    second = rd_w(nx, 0) + rd_h(nx, hn)
    m = 0; flip = 0
    for fb in range(4):
        if fb == 0: A("s_waitcnt lgkmcnt(0)")
        if fb == 1: A("s_waitcnt lgkmcnt(4)")
        if fb == 2: A("s_waitcnt lgkmcnt(0)\ns_barrier")
        for t in (range(4) if fb % 2 == 0 else range(3, -1, -1)):
            a = ACC + 16*fb + 4*t
            for ks in ((1, 0) if flip else (0, 1)):
                w = WB + 8*fb + 4*ks; h = hb + 16*ks + 4*t
                A(f"v_mfma_f32_16x16x32_bf16 v[{a}:{a+3}], v[{w}:{w+3}], v[{h}:{h+3}], v[{a}:{a+3}]")
                if m < 12: A(first[m])
                elif 16 <= m < 28: A(second[m-16])
                m += 1
            flip ^= 1

def cons_prologue(A, o, g1):
    half = o.get("half", 1)
    A.c(f"==== GEMM{1 if g1 else 2} set-up: wave = 64 weight columns x 64 channels, accumulators start from the bias")
    A("v_lshrrev_b32 v3, 4, v2\nv_and_b32 v4, 15, v2")
    nb = 4 if g1 else 2
    if g1 and o.get("biaslate", 1):
        A("v_lshlrev_b32 v5, 3, v3")
        for fb in range(4): A(f"buffer_load_dwordx2 v[{104+2*fb}:{105+2*fb}], v5, s[{rM}:{rM+3}], s68 offen offset:{fb*32}")
    A.c("LDS read addresses (32-byte column blocks are XOR-swizzled with row%8)")
    A("v_lshrrev_b32 v6, 2, v4\nv_lshl_add_u32 v7, v3, 2, v6")
    A("v_and_b32 v18, 7, v7\nv_lshlrev_b32 v7, 8, v7\nv_and_b32 v19, 3, v4\nv_lshl_add_u32 v7, v19, 3, v7")
    A("s_lshl_b32 s50, s63, 2")
    if not g1: A(f"s_lshl_b32 s51, s{sHK}, 1\ns_xor_b32 s50, s50, s51\ns_xor_b32 s50, s50, 2")
    for fb in range(4):
        A(f"s_xor_b32 s51, s50, {fb}\nv_xor_b32 v19, s51, v18\nv_lshl_add_u32 v{VWA+fb}, v19, 5, v7\nv_add_u32 v{VWA+4+fb}, 0x10000, v{VWA+fb}")
    A(f"s_lshl_b32 s50, s62, 12\nv_lshl_add_u32 v{VHA}, v2, 4, s50\nv_add_u32 v{VHA+1}, 0x10000, v{VHA}")
    if g1 and o.get("biaslate", 1): A("s_waitcnt vmcnt(0)")
    for fb in range(4):
        for r_ in range(4):
            a = ACC + 16*fb + r_
            if fb >= 4 - nb:
                src = (104 if g1 else 192) + 2*(fb - (4 - nb)) + r_//2
                A(f"v_lshlrev_b32 v{a}, 16, v{src}" if r_ % 2 == 0 else f"v_and_b32 v{a}, 0xffff0000, v{src}")
                if g1: A(f"v_mul_f32 v{a}, {f32(GS)}, v{a}")
            else: A(f"v_mov_b32 v{a}, 0")
            for t in range(1, 4): A(f"v_mov_b32 v{a+4*t}, v{a}")
    if g1:
        A.c("u address, GELU constants, hand-off 2 words")
        srd(A, rS, sWS, WS_U, U_BYTES)
        A(f"s_cmp_ge_u32 s{sFT}, 14\ns_cselect_b32 s52, 1, 0\ns_cselect_b32 s53, 14, 0\ns_sub_u32 s53, s{sFT}, s53")
        if half: A(f"s_mul_i32 s48, s52, 56\ns_lshl_b32 s49, s53, 1\ns_add_u32 s48, s48, s49\ns_add_u32 s48, s48, s63")
        else: A(f"s_lshl_b32 s48, s{sFT}, 2\ns_lshl_b32 s49, s63, 1\ns_add_u32 s48, s48, s49")
        A(f"s_lshl_b32 s48, s48, 13\ns_mul_i32 s49, s{sDT1}, {USTR}\ns_add_u32 s48, s48, s49")
        A(f"s_lshl_b32 s49, s62, 12\ns_add_u32 s48, s48, s49\ns_add_u32 s49, s48, {(28 if half else 1)*8192}\nv_lshlrev_b32 v4, 4, v2")
        A(f"v_mov_b32 v22, {f32(GK)}\nv_mov_b32 v23, v22\nv_mov_b32 v24, {f32(GS)}\nv_mov_b32 v25, v24")
        if o.get("wl"): A(f"s_lshl_b32 s53, s53, 9\ns_lshl_b32 s50, s{sDT1}, 1\ns_add_u32 s52, s52, s50\ns_lshl_b32 s52, s52, 14\ns_add_u32 s52, s52, s53\ns_lshl_b32 s53, s3, 7\ns_add_u32 s52, s52, s53\ns_add_u32 s52, s52, {S2_OFF}\ns_add_u32 s53, s52, 8192")
        else: A(f"s_lshl_b32 s53, s53, 7\ns_lshl_b32 s50, s{sDT1}, 1\ns_add_u32 s52, s52, s50\ns_lshl_b32 s52, s52, 12\ns_add_u32 s52, s52, s53\ns_lshl_b32 s53, s3, 2\ns_add_u32 s52, s52, s53\ns_add_u32 s52, s52, {S2_OFF}\ns_add_u32 s53, s52, 2048")
        A(f"v_mov_b32 v20, 0\nv_mov_b32 v21, s{sTAG}")
    else:
        A.c("output rows kept here (s56/s57) and rows finished by the partner (s52/s53)")
        srd(A, rS, sOUT, 0, S*D*2)
        A("v_lshlrev_b32 v3, 13, v3\nv_lshl_add_u32 v20, v4, 3, v3\nv_add_u32 v21, 4096, v20")
        A(f"s_lshl_b32 s56, s{sST}, 7\ns_lshl_b32 s57, s63, 6\ns_add_u32 s56, s56, s57\ns_lshl_b32 s57, s{sHK}, 5\ns_add_u32 s56, s56, s57\ns_lshl_b32 s56, s56, 11")
        A(f"s_lshl_b32 s57, s{sDT2}, 8\ns_add_u32 s56, s56, s57\ns_lshl_b32 s57, s62, 7\ns_add_u32 s56, s56, s57")
        A("s_xor_b32 s52, s56, 0x10000\ns_add_u32 s53, s52, 32768\ns_add_u32 s57, s56, 32768")
        A(f"v_mov_b32 v22, 0\nv_mov_b32 v23, s{sTAG}")
    A(f"s_mov_b32 s{sPH}, {1 if g1 else 2}\ns_mov_b32 s65, {(N1 if g1 else N2)//R}")

def cons_loop(A, o):
    A("s_barrier"); A.c("(b3) the polling wave has seen hand-off 1")
    A("L_c_main:")
    A("s_barrier"); A.c("stage 0 is in LDS")
    A(f"v_mov_b32 v5, 128\ns_cmp_eq_u32 s{sPH}, 1\ns_cbranch_scc1 L_c_noid")
    A(f"buffer_load_dword v30, v5, s[{rF}:{rF+3}], s55 offen sc1")
    stamp(A, o, 7, 2)
    A("s_branch L_c_go\nL_c_noid:")
    stamp(A, o, 3, 0)
    A("L_c_go:")
    for x in rd_w(0, 0) + rd_h(0, HB[0]): A(x)
    A.c("==== main loop (both GEMMs): 4 steps of K=64; the barrier inside a step frees its slot and publishes the next stage")
    A(".p2align 6\nL_c_loop:")
    for r_ in range(R): step(A, r_)
    A("s_sub_u32 s65, s65, 1\ns_cmp_lg_u32 s65, 0\ns_cbranch_scc1 L_c_loop")
    A(f"s_waitcnt lgkmcnt(0)\ns_cmp_eq_u32 s{sPH}, 2\ns_cbranch_scc1 L_c_epi2")

def cons_epi1(A, o):
    half = o.get("half", 1)
    A.c("==== GELU(tanh): y = gs*x is in the accumulators; gelu(x) = y / (gs + gs*2^(-y*(y*y + k)))")
    stamp(A, o, 4, 1)
    A("s_nop 1")
    pr = lambda r_: f"v[{r_}:{r_+1}]"
    flag = lambda off: A(f"s_mov_b64 exec, 1\nbuffer_store_dword v21, v20, s[{rF}:{rF+3}], s{53 if off else 52} offen sc1\ns_mov_b64 exec, -1")
    hq = o.get("hq", 6)
    for kbl in range(2):
        for t in range(4):
            regs = [ACC + 16*(2*kbl + h) + 4*t + r_ for h in range(2) for r_ in range(4)]
            q = 4*kbl + t; tb = WB + (q % 2) * 16; d = 128 + 4*q
            for e in range(0, 8, 2): A(f"v_pk_fma_f32 {pr(tb+e)}, {pr(regs[e])}, {pr(regs[e])}, v[22:23]")
            for e in range(0, 8, 2): A(f"v_pk_mul_f32 {pr(tb+e)}, {pr(tb+e)}, {pr(regs[e])} neg_lo:[1,0] neg_hi:[1,0]")
            for e in range(8): A(f"v_exp_f32 v{tb+e}, v{tb+e}")
            for e in range(0, 8, 2): A(f"v_pk_fma_f32 {pr(tb+e)}, {pr(tb+e)}, v[24:25], v[24:25]")
            for e in range(8): A(f"v_rcp_f32 v{tb+e}, v{tb+e}")
            for e in range(0, 8, 2): A(f"v_pk_mul_f32 {pr(tb+e)}, {pr(tb+e)}, {pr(regs[e])}")
            for e in range(4): A(f"v_cvt_pk_bf16_f32 v{d+e}, v{tb+2*e}, v{tb+2*e+1}")
            A(f"buffer_store_dwordx4 v[{d}:{d+3}], v4, s[{rS}:{rS+3}], s{48+kbl} offen offset:{t*1024} sc1")
            if half and q == hq:
                A.c("hand-off 2a: the first four fragments (first pass of GEMM2's K order) have landed")
                A(f"s_waitcnt vmcnt({hq-3})"); flag(0)
                stamp(A, o, 6)
    stamp(A, o, 5)
    gate = o.get("gate", 1)
    if half:
        if gate == 0: A("s_barrier")
        if gate == 2: A("s_waitcnt vmcnt(1)\ns_barrier")
        A("s_waitcnt vmcnt(0)"); flag(2048)
        if gate == 1: A("s_barrier")
        A.c("(b4) the polling wave may start")
    else:
        A("s_waitcnt vmcnt(0)"); flag(0)
        stamp(A, o, 6)
        A("s_barrier"); A.c("(b4)")

def cons_epi2(A, o):
    A("L_c_epi2:")
    A.c("==== split-K pair: the half the partner finishes goes, rounded, into the partner's own output rows")
    stamp(A, o, 8, 3)
    T, U_ = 96, 128
    def oaddr(sb, r_, base): return f"v{20 + r_//2}, s[{rS}:{rS+3}], s{base + sb} offen offset:{(r_%2)*2048}"
    A("s_waitcnt vmcnt(0)\nv_readfirstlane_b32 s61, v30")
    for sb in range(2):
        for r_ in range(4):
            a = ACC + 16*sb + r_; d = U_ + 8*sb + 2*r_
            A(f"v_cvt_pk_bf16_f32 v{d}, v{a}, v{a+4}\nv_cvt_pk_bf16_f32 v{d+1}, v{a+8}, v{a+12}")
    def send(flag):
        for sb in range(2):
            for r_ in range(4):
                d = U_ + 8*sb + 2*r_
                A(f"buffer_store_dwordx2 v[{d}:{d+1}], {oaddr(sb, r_, 52)} {flag}")
        A("s_waitcnt vmcnt(0)")
        A(f"s_mov_b64 exec, 1\nbuffer_store_dword v23, v22, s[{rF}:{rF+3}], s54 offen {flag}")
    A.c("partner reported the same die: the shared L2 carries it; otherwise (or not yet known) write through")
    A("s_cmp_eq_u32 s61, s64\ns_cbranch_scc0 L_c_far")
    send("")
    A("s_branch L_c_sent\nL_c_far:")
    send("sc1")
    A("L_c_sent:")
    poll(A, "L_c_p3", f"buffer_load_dword v18, v22, s[{rF}:{rF+3}], s55 offen sc1", [18], mask=1)
    stamp(A, o, 9)
    for sb in range(2):
        for r_ in range(4):
            d = T + 8*sb + 2*r_
            A(f"buffer_load_dwordx2 v[{d}:{d+1}], {oaddr(sb, r_, 56)} sc1")
    for sb in range(2):
        for r_ in range(4):
            q = 4*sb + r_
            A("s_waitcnt vmcnt(7)")
            a = ACC + 32 + 16*sb + r_; d = T + 8*sb + 2*r_; t_ = T + 16 + 4*(q % 2)
            A(f"v_lshlrev_b32 v{t_}, 16, v{d}\nv_and_b32 v{t_+1}, 0xffff0000, v{d}\nv_lshlrev_b32 v{t_+2}, 16, v{d+1}\nv_and_b32 v{t_+3}, 0xffff0000, v{d+1}")
            for t in range(4): A(f"v_add_f32 v{a+4*t}, v{a+4*t}, v{t_+t}")
            A(f"v_cvt_pk_bf16_f32 v{d}, v{a}, v{a+4}\nv_cvt_pk_bf16_f32 v{d+1}, v{a+8}, v{a+12}")
            A(f"buffer_store_dwordx2 v[{d}:{d+1}], {oaddr(sb, r_, 56)}")
    if o.get("stamp"):
        A("s_cmp_lg_u32 s3, 0\ns_cbranch_scc1 L_end\ns_waitcnt vmcnt(0)")
        stamp(A, o, 10)
        stamp_flush(A, o, range(11))
        A("s_sub_u32 s94, s96, s94\nv_mov_b32 v1, s94\nglobal_store_dword v28, v1, s[92:93] offset:56")
        A("s_sub_u32 s98, s100, s98\nv_mov_b32 v1, s98\nglobal_store_dword v28, v1, s[92:93] offset:60")
    A("s_endpgm")

def ld_waddr(A, o, g1):
    half = o.get("half", 1) and not g1
    pitch = P1 if g1 else P2
    A.c("per-lane source offsets of this wave's four 1 KB weight pieces (4 rows x 256 B, swizzled), stream base s[64:65]")
    srd(A, rW, sW1 if g1 else sW2, 0, S*F*2)
    A(f"s_mov_b32 s48, {pitch}\ns_lshl_b32 s49, s62, 4\ns_lshl_b32 s50, s{sFT if g1 else sST}, 8")
    if half: A("s_and_b32 s51, s49, 32\ns_add_u32 s49, s49, s51")
    for j in range(4):
        A(f"v_add_u32 v6, {4*(j%2)}, v3\nv_xor_b32 v6, v6, v5\nv_lshl_add_u32 v6, v6, 5, v4")
        A(f"s_add_u32 s51, s49, {4*j}\nv_add_u32 v7, s51, v3\nv_mul_lo_u32 v7, v7, s48\nv_add3_u32 v{8+j}, v7, v6, s50")
        if j: A(f"v_subrev_u32 v{8+j}, {j*1024}, v{8+j}")
    if g1: A(f"s_mov_b32 s64, s{sW1}\ns_mov_b32 s65, s{sW1+1}")
    else: A(f"s_mul_i32 s50, s{sHK}, {1792*P2}\ns_add_u32 s64, s{sW2}, s50\ns_addc_u32 s65, s{sW2+1}, 0")
def ld_haddr(A, g1):
    A(f"s_mul_i32 s48, s{sDT1 if g1 else sDT2}, {HSTR if g1 else USTR}\ns_add_u32 s48, s48, s52\nv_lshl_add_u32 v12, v2, 4, s48")
    if g1: A(f"s_add_u32 s66, s{sWS}, {WS_H}\ns_addc_u32 s67, s{sWS+1}, 0")
    else: A(f"s_mul_i32 s51, s{sHK}, {N2*16384}\ns_add_u32 s51, s51, {WS_U}\ns_add_u32 s66, s{sWS}, s51\ns_addc_u32 s67, s{sWS+1}, 0")
def issue_w(A, o, g1, m0):
    A(m0 + "\ns_nop 0")
    for j in range(4): A(f"global_load_lds_dwordx4 v{8+j}, s[64:65] offset:{j*1024}")
    A(f"s_add_u32 s64, s64, {64*P1 if g1 else (128 if o.get('half', 1) else 64)*P2}\ns_addc_u32 s65, s65, 0")
def issue_h(A, m0):
    A(m0 + "\ns_nop 0")
    for j in range(4): A(f"global_load_lds_dwordx4 v12, s[66:67] offset:{j*1024} sc1")
    A("s_add_u32 s66, s66, 16384\ns_addc_u32 s67, s67, 0")
def ld_main(A, o, g1, pre_bar, post_bar, after_issue):
    N = N1 if g1 else N2; P = "1" if g1 else "2"
    for z in range(R): issue_h(A, f"s_add_u32 m0, s52, {z*32768 + 16384}")
    A("s_waitcnt vmcnt(12)")
    stamp(A, o, 3 if g1 else 6)
    A("s_barrier")
    for n, c in ((0, 8), (1, 12)):
        A(f"s_waitcnt vmcnt({c})\ns_barrier")
        issue_w(A, o, g1, f"s_add_u32 m0, s52, {n*32768}"); issue_h(A, "s_add_u32 m0, m0, 16384")
    A(f"s_mov_b32 s53, 2\n.p2align 6\nL_l_loop{P}:")
    A(f"s_and_b32 s54, s53, {R-1}\ns_lshl_b32 s54, s54, 15\ns_waitcnt vmcnt(16)")
    if pre_bar: pre_bar()
    A("s_barrier")
    if post_bar: post_bar()
    issue_w(A, o, g1, "s_add_u32 m0, s52, s54"); issue_h(A, "s_add_u32 m0, m0, 16384")
    if after_issue: after_issue()
    m = N - R if g1 else o.get("m2", 20)
    A(f"s_add_u32 s53, s53, 1\ns_cmp_lt_u32 s53, {m}\ns_cbranch_scc1 L_l_loop{P}")
    if g1: return
    A.c("from here on run three stages ahead instead of four")
    A(f"s_waitcnt vmcnt(16)\ns_barrier\n.p2align 6\nL_l_loopb:")
    A(f"s_and_b32 s54, s53, {R-1}\ns_lshl_b32 s54, s54, 15\ns_waitcnt vmcnt(8)\ns_barrier")
    issue_w(A, o, g1, "s_add_u32 m0, s52, s54"); issue_h(A, "s_add_u32 m0, m0, 16384")
    A(f"s_add_u32 s53, s53, 1\ns_cmp_lt_u32 s53, {N-R}\ns_cbranch_scc1 L_l_loopb")

def w2unit(A, dst, sbase, r0, cnt, skip):
    A(f"s_lshr_b32 s58, s{sXCD}, 2\ns_add_u32 s58, s58, {r0}\ns_and_b32 s59, s{sXCD}, 3\ns_lshl_b32 s59, s59, 10")
    A(f"v_and_b32 v{dst}, 7, v2\nv_lshl_add_u32 v{dst}, v{dst}, 7, s59\nv_lshrrev_b32 v6, 3, v2\nv_cmp_gt_u32 vcc, {cnt}, v6\nv_add_u32 v6, s{sbase}, v6")
    A(f"v_and_b32 v7, 1, v6\nv_mul_u32_u24 v7, 1792, v7\nv_and_b32 v6, -2, v6\nv_add3_u32 v7, v7, v6, s58")
    if skip: A("v_and_b32 v6, 0xffffffe0, v6\nv_add_u32 v7, v7, v6")
    A(f"v_lshl_add_u32 v{dst}, v7, 12, v{dst}\nv_mov_b32 v6, {OOB}\nv_cndmask_b32 v{dst}, v6, v{dst}, vcc")
def s2set(A, dst):
    A(f"s_lshl_b32 s{dst}, s{sDT2}, 1\ns_add_u32 s{dst}, s{dst}, s{sHK}\ns_lshl_b32 s{dst}, s{dst}, {14 if WL else 12}\ns_add_u32 s{dst}, s{dst}, {S2_OFF}")
def touch_flags(A, worker):
    lab = "L_l_nt" + ("w" if worker else "s")
    A.c("bring the hand-off lines towards the caches early (values unused)")
    A(f"s_cmp_lg_u32 s3, 7\ns_cbranch_scc1 {lab}")
    if worker: A(f"buffer_load_dword v31, v13, s[{rF}:{rF+3}], s56 offen sc1")
    s2set(A, 58)
    A("v_lshl_add_u32 v21, v2, 7, s58")
    if WL: A(f"buffer_load_dword v31, v21, s[{rF}:{rF+3}], 0 offen sc1\nv_add_u32 v21, 8192, v21\nbuffer_load_dword v31, v21, s[{rF}:{rF+3}], 0 offen sc1")
    A(f"s_lshl_b32 s58, s2, 10\ns_add_u32 s58, s58, {S3_OFF - 32*128}\nv_lshl_add_u32 v22, v2, 7, s58\nv_cmp_gt_u32 vcc, 32, v2\ns_nop 1\nv_cndmask_b32 v21, v22, v21, vcc")
    A(f"s_mov_b32 exec_hi, 0xff\nbuffer_load_dword v31, v21, s[{rF}:{rF+3}], 0 offen sc1\ns_mov_b64 exec, -1\n{lab}:")

def gen_loader(A, o):
    half = o.get("half", 1); nr = o.get("lnrows", 2); upw = o.get("upw", 7); prog = o.get("prog", 8)
    A("L_loader:")
    A.c("==== loader waves 4..7: all global->LDS traffic, hand-off polling, cache warming")
    A("s_sub_u32 s62, s3, 4\ns_lshl_b32 s52, s62, 12\nv_and_b32 v2, 63, v0")
    A("v_lshrrev_b32 v3, 4, v2\nv_and_b32 v4, 15, v2\nv_lshrrev_b32 v5, 1, v4\nv_and_b32 v4, 1, v4\nv_lshlrev_b32 v4, 4, v4")
    A("s_waitcnt lgkmcnt(0)")
    common_setup(A)
    A.c("w1 warm-up pattern (v25): 3 row pairs per instruction; this die's 14 lines of the row of its parity, plus the")
    A.c("other row's lines for the tiles whose addresses get fewer L1 miss slots")
    A(f"v_mul_u32_u24 v13, 3641, v2\nv_lshrrev_b32 v13, 16, v13\nv_mul_u32_u24 v14, 18, v13\nv_sub_u32 v14, v2, v14")
    A(f"s_and_b32 s48, s{sXCD}, 3\ns_lshr_b32 s49, s{sXCD}, 2\ns_mul_i32 s58, s48, 14\ns_add_u32 s59, s48, 1\ns_and_b32 s59, s59, 3\ns_lshl_b32 s59, s59, 1")
    A("v_cmp_gt_u32 vcc, 14, v14\nv_add_u32 v16, s58, v14\nv_subrev_u32 v17, 14, v14\nv_lshrrev_b32 v18, 1, v17\nv_lshlrev_b32 v18, 3, v18\nv_and_b32 v17, 1, v17\nv_add3_u32 v17, v17, v18, s59")
    A("v_cmp_gt_u32 s[60:61], 14, v17\nv_add_u32 v17, s58, v17\nv_cndmask_b32 v16, v17, v16, vcc\ns_or_b64 s[60:61], s[60:61], vcc")
    A("s_xor_b32 s58, s49, 1\nv_mov_b32 v17, s58\nv_mov_b32 v18, s49\nv_cndmask_b32 v17, v17, v18, vcc\nv_lshl_add_u32 v17, v13, 1, v17")
    A(f"v_cmp_gt_u32 vcc, 3, v13\ns_and_b64 vcc, vcc, s[60:61]\nv_mul_u32_u24 v17, {P1}, v17\nv_lshl_add_u32 v25, v16, 7, v17\nv_mov_b32 v17, {OOB}\nv_cndmask_b32 v25, v17, v25, vcc")
    A(f"s_mul_i32 s48, s{sN}, {nr}\ns_add_u32 s48, s48, s62\ns_mul_i32 s55, s48, {6*P1}")
    srd(A, rH, sW1, 0, S*F*2)
    A("s_barrier"); A.c("(b0)")
    A(f"s_cmp_ge_u32 s62, {nr}\ns_cbranch_scc1 L_l_nopf\nbuffer_load_dword v31, v25, s[{rH}:{rH+3}], s55 offen\nL_l_nopf:")
    A("s_cmp_ge_u32 s2, 224\ns_cbranch_scc1 L_l_spare")
    ld_waddr(A, o, True)
    ld_haddr(A, True)
    A(f"s_and_b32 s56, s{sDT1}, 6\ns_and_b32 s59, s{sXCD}, 1\ns_add_u32 s56, s56, s59\ns_lshl_b32 s56, s56, 12\ns_add_u32 s56, s56, {S1_OFF}")
    A("v_lshrrev_b32 v13, 1, v2\nv_lshlrev_b32 v13, 7, v13\nv_and_b32 v14, 1, v2\nv_lshl_add_u32 v13, v14, 4, v13")
    touch_flags(A, True)
    g1k = o.get("g1pf", 0); G0 = 342 - 28*g1k
    if g1k:
        A.c("late w1 rows: one touch per wave, spread over the steps")
        A(f"s_mul_i32 s51, s{sN}, {g1k}\ns_add_u32 s51, s51, s62\ns_add_u32 s51, s51, {G0}\ns_mul_i32 s51, s51, {6*P1}")
        A(f"s_lshr_b32 s55, s{sN}, 1\ns_add_u32 s55, s55, {o.get('g1in', 3)}\ns_cmp_ge_u32 s62, {g1k}\ns_cselect_b32 s55, 0xff, s55")
    A("s_waitcnt lgkmcnt(0)")
    make_tag(A)
    A("s_barrier\ns_barrier"); A.c("(b1, b2)")
    for z in range(R): issue_w(A, o, True, f"s_add_u32 m0, s52, {z*32768}")
    pl = f"buffer_load_dwordx4 v[16:19], v13, s[{rF}:{rF+3}], s56 offen sc1"
    stamp(A, o, 1)
    A.c(f"hand-off 1: the producers of the first {prog} stages now, the others before their stages are requested")
    A("s_mov_b32 s57, 0xff\ns_mov_b32 s63, 0xff\ns_cmp_lg_u32 s3, 4\ns_cbranch_scc1 L_l_s1seen")
    poll(A, "L_l_p1", pl, [16, 17, 18, 19], mask=(1 << (2*prog)) - 1)
    stamp(A, o, 2)
    if o.get("stamp"): A("s_sub_u32 s84, 0x200000, s59")
    A(f"s_mov_b32 s57, {prog-4}\ns_mov_b32 s63, {prog-6}")
    A("L_l_s1seen:\ns_barrier"); A.c("(b3)")
    def chk1():
        A("s_cmp_lg_u32 s53, s57\ns_cbranch_scc1 L_l_nochk1")
        poll(A, "L_l_p1b", pl, [16, 17, 18, 19], pre=16)
        A.c("every workgroup has read the generation word by now: advance it")
        A("s_cmp_lg_u32 s2, 0\ns_cbranch_scc1 L_l_nochk1")
        A(f"v_mov_b32 v16, s{sTAG}\nv_mov_b32 v17, 0\ns_mov_b64 exec, 1\nbuffer_store_dword v16, v17, s[{rF}:{rF+3}], 0 offen offset:{GEN_OFF} sc1\ns_mov_b64 exec, -1")
        A("L_l_nochk1:")
    def iss1(): A(f"s_cmp_lg_u32 s53, s63\ns_cbranch_scc1 L_l_noiss1\n{pl}\nL_l_noiss1:")
    def aft1(): A(f"s_cmp_lg_u32 s53, s55\ns_cbranch_scc1 L_l_nolate1\nbuffer_load_dword v31, v25, s[{rH}:{rH+3}], s51 offen\nL_l_nolate1:")
    ld_main(A, o, True, chk1, iss1, aft1 if g1k else None)
    A.c("tail of GEMM1: the freed slots take the first weight stages of GEMM2")
    ld_waddr(A, o, False)
    for z, c in enumerate((16, 12, 8, None)):
        if c is not None: A(f"s_waitcnt vmcnt({c})")
        A("s_barrier")
        issue_w(A, o, False, f"s_add_u32 m0, s52, {z*32768}")
    if o.get("b4early"): A("s_barrier")
    A("L_l_g2:")
    ld_haddr(A, False)
    A.c("lines of the final hand-over (own output rows, ready word) and this wave's share of the late w2 rows")
    srd(A, rS, sOUT, 0, S*D*2)
    A(f"s_lshl_b32 s58, s{sST}, 7\ns_lshr_b32 s59, s62, 1\ns_lshl_b32 s59, s59, 6\ns_add_u32 s58, s58, s59\ns_lshl_b32 s59, s{sHK}, 5\ns_add_u32 s58, s58, s59\ns_lshl_b32 s58, s58, 11")
    A(f"s_lshl_b32 s59, s{sDT2}, 8\ns_add_u32 s58, s58, s59\ns_and_b32 s59, s62, 1\ns_lshl_b32 s59, s59, 7\ns_add_u32 s58, s58, s59\nv_lshl_add_u32 v23, v2, 11, s58")
    A(f"s_lshl_b32 s58, s2, 10\ns_lshl_b32 s59, s62, 8\ns_add_u32 s58, s58, s59\ns_add_u32 s58, s58, {S3_OFF}\nv_mov_b32 v24, s58")
    if o.get("fastpf", 0):
        assert upw == 6 and half
        A.c("(the 8 workgroups per die whose weight lines get fewer L1 miss slots carry none of it)")
        A(f"s_and_b32 s48, s{sN}, 7\ns_cmp_gt_u32 s48, 3\ns_cselect_b32 s49, 2, 0\ns_sub_u32 s48, s48, s49\ns_lshr_b32 s49, s{sN}, 3\ns_mul_i32 s49, s49, 6\ns_add_u32 s48, s48, s49")
        A(f"s_mul_i32 s55, s48, 11\ns_lshr_b32 s55, s55, 4\ns_add_u32 s55, s55, {o.get('in0', 2)}\ns_and_b32 s49, s{sST}, 3\ns_cmp_eq_u32 s49, 1\ns_cselect_b32 s55, 0xff, s55")
        A("s_lshl_b32 s48, s48, 5\ns_lshl_b32 s49, s62, 3\ns_add_u32 s49, s49, s48")
        w2unit(A, 29, 49, 64*(28 - 4*upw) + 32, 8, True)
    else:
        A(f"s_mul_i32 s48, s{sN}, {4*upw}\ns_mul_i32 s49, s62, {upw}\ns_add_u32 s49, s49, s48")
        if half: w2unit(A, 29, 49, 64*(28 - 4*upw) + 32, upw, True)
        else: w2unit(A, 29, 49, 1792 - 128*upw, upw, False)
        A(f"s_lshr_b32 s55, s{sN}, 1\ns_add_u32 s55, s55, {o.get('in0', 2)}")
    s2set(A, 56)
    A("v_lshlrev_b32 v13, 7, v2")
    if not o.get("b4early"): A("s_cmp_ge_u32 s2, 224\ns_cbranch_scc1 L_l_nob4\ns_barrier"); A.c("(b4)")
    A("L_l_nob4:")
    stamp(A, o, 4)
    A("s_mov_b32 s57, 0xff\ns_mov_b32 s63, 0xff\ns_cmp_lg_u32 s3, 4\ns_cbranch_scc1 L_l_s2seen")
    p2 = f"buffer_load_dword v16, v13, s[{rF}:{rF+3}], s56 offen sc1" if WL else pl
    r2 = [16] if WL else [16, 17, 18, 19]; m2 = "s[50:51]" if WL else (1 << 14) - 1
    if WL: A("s_mov_b32 s50, -1\ns_mov_b32 s51, 0xffffff")
    poll(A, "L_l_p2", p2, r2, mask=m2)
    stamp(A, o, 5)
    if o.get("stamp"): A("s_sub_u32 s86, 0x200000, s59")
    if half: A("s_mov_b32 s57, 10\ns_mov_b32 s63, 8\ns_add_u32 s56, s56, " + str(8192 if WL else 2048))
    A("L_l_s2seen:\ns_barrier"); A.c("(b5)")
    def chk2():
        A("s_cmp_lg_u32 s53, s57\ns_cbranch_scc1 L_l_nochk2")
        poll(A, "L_l_p2b", p2, r2, pre=16, mask=m2)
        A("L_l_nochk2:")
    def iss2(): A(f"s_cmp_lg_u32 s53, s63\ns_cbranch_scc1 L_l_noiss2\ns_mov_b64 exec, {m2}\n{p2}\ns_mov_b64 exec, -1\nL_l_noiss2:")
    def aft2():
        if half: A(f"s_cmp_eq_u32 s53, 9\ns_cselect_b32 s58, {(14*128 - 32)*P2}, 0\ns_sub_u32 s64, s64, s58\ns_subb_u32 s65, s65, 0")
        A(f"s_cmp_lg_u32 s53, s55\ns_cbranch_scc1 L_l_nolate\nbuffer_load_dword v31, v29, s[{rW}:{rW+3}], 0 offen\nL_l_nolate:")
    ld_main(A, o, False, chk2 if half else None, iss2 if half else None, aft2)
    A(f"s_mov_b32 exec_hi, 0\nbuffer_load_dword v31, v23, s[{rS}:{rS+3}], 0 offen sc1\ns_mov_b64 exec, 1\nbuffer_load_dword v31, v24, s[{rF}:{rF+3}], 0 offen sc1\ns_mov_b64 exec, -1")
    A("s_waitcnt vmcnt(10)\ns_barrier\ns_waitcnt vmcnt(2)\ns_barrier\ns_barrier")
    if o.get("stamp"):
        A("s_cmp_lg_u32 s3, 4\ns_cbranch_scc1 L_end")
        stamp_flush(A, o, range(1, 9), 2)
    A("s_endpgm")
    A("L_l_spare:")
    A.c("==== the 32 workgroups without a GEMM1 tile pull the weights from HBM ahead of their use")
    touch_flags(A, False)
    ld_waddr(A, o, False)
    A("s_waitcnt lgkmcnt(0)")
    make_tag(A)
    A("s_barrier\ns_barrier"); A.c("(b1, b2)")
    A("s_cmp_lg_u32 s3, 4\ns_cbranch_scc1 L_l_spw")
    A("s_sub_u32 s48, s2, 224\nv_and_b32 v14, 31, v2\nv_lshlrev_b32 v14, 7, v14\nv_lshrrev_b32 v7, 5, v2\nv_mul_u32_u24 v7, 1792, v7\nv_add_u32 v7, s48, v7\nv_lshl_add_u32 v14, v7, 12, v14")
    def sp_w2(lab, r0_, r1_, st):
        if r0_ < r1_: A(f"s_mov_b32 s48, {r0_*P2}\n{lab}:\nbuffer_load_dword v31, v14, s[{rW}:{rW+3}], s48 offen\ns_add_u32 s48, s48, {st*P2}\ns_cmp_lt_u32 s48, {r1_*P2}\ns_cbranch_scc1 {lab}")
    if half: sp_w2("L_l_sp0", 0, 512, 64)
    else: sp_w2("L_l_sp0", 0, 256, 32)
    A(f"s_add_u32 s48, s{sN}, {32*nr - 28}\ns_mul_i32 s48, s48, {6*P1}\nL_l_sp1:\nbuffer_load_dword v31, v25, s[{rH}:{rH+3}], s48 offen\ns_add_u32 s48, s48, {24*P1}\ns_cmp_lt_u32 s48, {min(S, 6*G0)*P1}\ns_cbranch_scc1 L_l_sp1")
    for z in range(R): issue_w(A, o, False, f"s_add_u32 m0, s52, {z*32768}")
    A(f"s_sub_u32 s48, s{sN}, 28\ns_lshl_b32 s48, s48, 3")
    w2unit(A, 14, 48, 0, 8, False)
    if half:
        sp_w2("L_l_sp2", 512, 1792, 64); sp_w2("L_l_sp3", 32, 64*(28 - 4*upw) + 32, 64)
    else: sp_w2("L_l_sp2", 256, 1792 - 128*upw, 32)
    if o.get("stamp"):
        A("s_waitcnt vmcnt(0)"); stamp(A, o, 0); stamp_flush(A, o, [0], 1); A("s_mov_b64 exec, -1")
    A("s_branch L_l_g2")
    A("L_l_spw:")
    for z in range(R): issue_w(A, o, False, f"s_add_u32 m0, s52, {z*32768}")
    A("s_branch L_l_g2")

HEAD = open(__file__.replace("gen3.py", "head.txt")).read()
DOC = """; One launch, 256 workgroups (one per CU) of 8 waves: waves 0-3 do LayerNorm / MFMA / epilogues, waves 4-7 load.
; Hand-offs between workgroups use write-through stores and words tagged per launch (generation word in d_ws)."""
def build(o):
    global WL
    WL = o.get('wl', 0)
    A = Asm()
    A.L.append(HEAD.rstrip("\n")); A.L.append(DOC)
    if o.get("tail_e"):
        A(f"; @launch kernel={NAME} grid=(256,1,1) block=(512,1,1) lds={LDS_LN + 256}")
        A("; @launch kernel=empty_kernel grid=(256,1,1) block=(64,1,1) lds=0")
    else: A(f"; @launch grid=(256,1,1) block=(512,1,1) lds={LDS_LN + 256}")
    A('.amdgcn_target "amdgcn-amd-amdhsa--gfx950"\n.text')
    A(f".globl {NAME}\n.p2align 8\n.type {NAME},@function\n{NAME}:")
    A("s_cmp_ge_u32 s2, 256\ns_cbranch_scc1 L_end")
    stamp(A, o, 0)
    A("s_load_dwordx16 s[4:19], s[0:1], 0")
    A("v_readfirstlane_b32 s3, v0\ns_nop 0\ns_lshr_b32 s3, s3, 6\ns_cmp_ge_u32 s3, 4\ns_cbranch_scc1 L_loader")
    gen_ln(A, o)
    A("s_cmp_ge_u32 s2, 224\ns_cbranch_scc1 L_c_g2")
    cons_prologue(A, o, True)
    cons_loop(A, o)
    cons_epi1(A, o)
    A("L_c_g2:\ns_barrier"); A.c("(b5)")
    A("L_c_g2p:")
    cons_prologue(A, o, False)
    A("s_branch L_c_main")
    cons_epi2(A, o)
    gen_loader(A, o)
    A("L_end:\ns_endpgm")
    def desc(name, v):
        A(f".p2align 6\n.amdhsa_kernel {name}\n  .amdhsa_next_free_vgpr {v}\n  .amdhsa_next_free_sgpr 102\n  .amdhsa_accum_offset {v}\n"
          "  .amdhsa_group_segment_fixed_size 0\n  .amdhsa_kernarg_size 64\n  .amdhsa_user_sgpr_count 2\n"
          "  .amdhsa_user_sgpr_kernarg_segment_ptr 1\n  .amdhsa_system_sgpr_workgroup_id_x 1\n.end_amdhsa_kernel")
    if o.get("tail_e"):
        A(".globl empty_kernel\n.p2align 8\n.type empty_kernel,@function\nempty_kernel:")
        A("s_cmp_ge_u32 s2, 256\ns_cbranch_scc1 L_em_end\ns_memrealtime s[70:71]\ns_load_dwordx2 s[18:19], s[0:1], 56")
        stamp_flush(A, o, [0], 3)
        A("L_em_end:\ns_endpgm")
    A('.section .rodata,"a"')
    desc(NAME, 196)
    if o.get("tail_e"): desc("empty_kernel", 32)
    return A.text()

if __name__ == "__main__":
    o = {}
    for kv in sys.argv[2:]:
        k, v = kv.split("=", 1)
        o[k] = int(v) if v.lstrip("-").isdigit() else v
    open(sys.argv[1], "w").write(build(o))
```

```python
import sys, struct, math
S, D, F = 2048, 1024, 3584
NAME = "standalone__mixer_token_mlp__prompt_kernel"
WS_H, WS_U, WS_FLG, WS_STAMP = 0, 6 << 20, 20 << 20, 24 << 20
HSTR, USTR = 64*8192 + 8192, 112*8192 + 8192
H_BYTES, U_BYTES = 8*HSTR, 8*USTR
GEN_OFF, S1_OFF, S2_OFF, S3_OFF = 0, 65536, 131072, 393216
FLG_BYTES = S3_OFF + 256*1024
R = 4
LDS_LN = R*32768
N1, N2 = 32, 28
P1, P2 = F*2, S*2
GC0 = -2.0*math.sqrt(2.0/math.pi)*math.log2(math.e); GC1 = GC0*0.044715
GS = (-GC1) ** (1.0/3.0); GK = -GC0/GS
OOB = 0x7fffffff

def f32(x): return "0x%08x" % struct.unpack("<I", struct.pack("<f", x))[0]
class Asm:
    def __init__(self): self.L = []
    def __call__(self, s):
        for l in s.split("\n"):
            l = l.strip()
            if l: self.L.append(l if (l.endswith(":") or l.startswith(".") or l.startswith(";")) else "    " + l)
    def c(self, s): self.L.append("    ; " + s)
    def text(self): return "\n".join(self.L) + "\n"

sX, sW1, sB1, sW2, sB2, sOUT, sDBG, sWS = 4, 6, 8, 10, 12, 14, 16, 18
sTAG, sXCD, sN, sFT, sDT1, sST, sDT2, sHK = 20, 21, 22, 23, 24, 25, 26, 27
rW, rH, rF, rM, rS = 28, 32, 36, 40, 44
sPH, sN7 = 68, 69
ACC, WB, HB = 32, 96, (128, 160)
VWA, VHA = 8, 16

def srd(A, r, base, off, nbytes):
    if off: A(f"s_add_u32 s{r}, s{base}, {off}\ns_addc_u32 s{r+1}, s{base+1}, 0")
    else: A(f"s_mov_b32 s{r}, s{base}\ns_mov_b32 s{r+1}, s{base+1}")
    A(f"s_mov_b32 s{r+2}, {nbytes}\ns_mov_b32 s{r+3}, 0x20000")
def stamp(A, o, i, cyc=None):
    if o.get("stamp"):
        A(f"s_memrealtime s[{70+2*i}:{71+2*i}]")
        if cyc is not None: A(f"s_memtime s[{94+2*cyc}:{95+2*cyc}]")
def stamp_flush(A, o, lst, slot=0):
    A("s_waitcnt lgkmcnt(0)")
    A(f"s_add_u32 s92, s{sWS}, {WS_STAMP + slot*16384}\ns_addc_u32 s93, s{sWS+1}, 0\nv_mov_b32 v28, s2\nv_lshlrev_b32 v28, 6, v28\ns_mov_b64 exec, 1")
    for i in lst: A(f"v_mov_b32 v1, s{70+2*i}\nglobal_store_dword v28, v1, s[92:93] offset:{4*i}")

def poll(A, label, load, regs, mask=None, pre=None):
    A("s_mov_b32 s59, 0x200000")
    if mask is not None: A(f"s_mov_b64 exec, {mask}")
    if pre is not None: A(f"s_waitcnt vmcnt({pre})\ns_branch {label}_c")
    A(f"{label}:\n{load}\ns_sub_u32 s59, s59, 1\ns_cbranch_scc1 {label}_x\ns_waitcnt vmcnt(0)\n{label}_c:")
    A(f"v_cmp_ne_u32 vcc, s{sTAG}, v{regs[0]}")
    for r_ in regs[1:]: A(f"v_cmp_ne_u32 s[60:61], s{sTAG}, v{r_}\ns_or_b64 vcc, vcc, s[60:61]")
    A(f"s_cmp_lg_u64 vcc, 0\ns_cbranch_scc1 {label}\n{label}_x:")
    if mask is not None: A("s_mov_b64 exec, -1")

def common_setup(A):
    A.c("hand-off area, generation word, tile coordinates (id%8 groups share a die under round-robin placement: speed only)")
    A(f"s_add_u32 s{rF}, s{sWS}, {WS_FLG}\ns_addc_u32 s{rF+1}, s{sWS+1}, 0\ns_mov_b32 s{rF+2}, {FLG_BYTES}\ns_mov_b32 s{rF+3}, 0x20000")
    A(f"s_load_dword s{sTAG}, s[{rF}:{rF+1}], {GEN_OFF}")
    A(f"s_and_b32 s{sXCD}, s2, 7\ns_lshr_b32 s{sN}, s2, 3")
    A(f"s_mul_i32 s66, s{sN}, 37\ns_lshr_b32 s66, s66, 8\ns_mul_i32 s67, s66, 7\ns_sub_u32 s{sN7}, s{sN}, s67")
    A(f"s_and_b32 s67, s{sXCD}, 3\ns_mul_i32 s{sFT}, s67, 7\ns_add_u32 s{sFT}, s{sFT}, s{sN7}")
    A(f"s_and_b32 s{sDT2}, s{sXCD}, 4\ns_add_u32 s{sDT1}, s{sDT2}, s66")
    A(f"s_and_b32 s{sHK}, s{sN}, 1\ns_lshl_b32 s{sST}, s67, 2\ns_bfe_u32 s66, s{sN}, 0x20001\ns_add_u32 s{sST}, s{sST}, s66")
    A(f"s_lshr_b32 s66, s{sN}, 3\ns_add_u32 s{sDT2}, s{sDT2}, s66")
def make_tag(A):
    A.c("tag of this launch's hand-off words = next value after the generation word found on entry")
    A(f"s_mul_i32 s{sTAG}, s{sTAG}, 0x9e3779b1\ns_add_u32 s{sTAG}, s{sTAG}, 0x7f4a7c15")

ROWOFF = [(16*(j//4) + j % 4) * 2048 for j in range(8)]
def ln_rowbase(A):
    A("s_lshr_b32 s48, s2, 2\ns_and_b32 s49, s2, 3")
    A("s_lshl_b32 s50, s48, 5\ns_lshl_b32 s51, s49, 2\ns_add_u32 s50, s50, s51\ns_lshl_b32 s50, s50, 11")
def gen_ln2(A, o):
    A.c("==== LayerNorm of 8 rows: s = 32*kb + 16*(j/4) + 4*g + j%4; here thread = 4 channels, the row statistics come from waves 4..7")
    ln_rowbase(A)
    via = o.get("ln2", 2) == 2
    A("v_lshlrev_b32 v1, 3, v0")
    if not via:
        for j in range(8): A(f"s_add_u32 s{52+j}, s50, {ROWOFF[j]}")
    A("s_waitcnt lgkmcnt(0)")
    if o.get("early"): stamp(A, o, 5)
    if not via:
        srd(A, rM, sX, 0, S*D*2)
        for j in range(8): A(f"buffer_load_dwordx2 v[{2+2*j}:{3+2*j}], v1, s[{rM}:{rM+3}], s{52+j} offen")
    common_setup(A)
    bm = o.get("bm", 3 if o.get("stamp") else 4)
    A.c("bias addresses (4 values per lane and 16-column block)")
    if bm < 4:
        srd(A, rM, sB2, 0, S*2)
        srd(A, rW, sB1, 0, F*2)
    A("s_lshr_b32 s63, s3, 1\ns_lshl_b32 s63, s63, 7\nv_bfe_u32 v19, v0, 4, 2\nv_lshlrev_b32 v19, 3, v19")
    A(f"s_lshl_b32 s61, s{sST}, 8\ns_add_u32 s61, s61, s63\ns_lshl_b32 s62, s{sHK}, 6\ns_add_u32 s61, s61, s62")
    A(f"s_lshl_b32 s68, s{sFT}, 8\ns_add_u32 s68, s68, s63")
    def bias2():
        for fb in range(2): A(f"buffer_load_dwordx2 v[{192+2*fb}:{193+2*fb}], v19, s[{rM}:{rM+3}], s61 offen offset:{fb*32}")
    def bias1():
        for fb in range(4): A(f"buffer_load_dwordx2 v[{104+2*fb}:{105+2*fb}], v19, s[{rW}:{rW+3}], s68 offen offset:{fb*32}")
    if bm < 2: bias2()
    if bm == 0: bias1()
    if bm == 4:
        assert not o.get("stamp")
        A.c("biases through the scalar path; lane group g picks its two dwords of every 16-column block")
        A(f"s_min_u32 s68, s68, {F*2 - 128}\ns_add_u32 s50, s{sB1}, s68\ns_addc_u32 s51, s{sB1+1}, 0\ns_add_u32 s60, s{sB2}, s61\ns_addc_u32 s61, s{sB2+1}, 0")
        A("s_load_dwordx16 s[72:87], s[50:51], 0\ns_load_dwordx8 s[88:95], s[50:51], 64\ns_load_dwordx8 s[28:35], s[50:51], 96")
        A("s_load_dwordx8 s[52:59], s[60:61], 0\ns_load_dwordx4 s[96:99], s[60:61], 32\ns_load_dwordx4 s[40:43], s[60:61], 48")
    srd(A, rS, sWS, WS_H, H_BYTES)
    A(f"v_lshrrev_b32 v62, 5, v0\nv_mul_u32_u24 v62, {HSTR}, v62")
    A("v_bfe_u32 v63, v0, 4, 1\nv_lshlrev_b32 v63, 12, v63\nv_add_u32 v62, v62, v63")
    A("v_and_b32 v63, 15, v0\nv_lshlrev_b32 v63, 4, v63\nv_add_u32 v62, v62, v63")
    A("s_lshl_b32 s48, s48, 13\ns_lshl_b32 s49, s49, 8\ns_add_u32 s48, s48, s49")
    A(f"v_mov_b32 v64, {LDS_LN}")
    A("s_waitcnt lgkmcnt(0)")
    make_tag(A)
    if bm == 4:
        src = list(range(72, 96)) + list(range(28, 36)) + list(range(52, 60)) + list(range(96, 100)) + list(range(40, 44))
        for g in range(4):
            if g: A(f"s_mov_b32 exec_lo, {0xffff0000 if g == 1 else 0}\ns_mov_b32 exec_hi, {-1 if g < 3 else 0xffff0000}")
            for blk in range(6):
                for h in range(2): A(f"v_mov_b32 v{(104 + 2*blk if blk < 4 else 192 + 2*(blk-4)) + h}, s{src[8*blk + 2*g + h]}")
        A("s_mov_b64 exec, -1")
    if o.get("early"): stamp(A, o, 6)
    def unpack(j):
        for c in range(4):
            src = 2 + 2*j + c//2; d = 70 + 4*j + c
            A(f"v_lshlrev_b32 v{d}, 16, v{src}" if c % 2 == 0 else f"v_and_b32 v{d}, 0xffff0000, v{src}")
    if not via:
        for j in range(8):
            A(f"s_waitcnt vmcnt({9-j})")
            if o.get("early") and j == 0: stamp(A, o, 9)
            unpack(j)
    stamp(A, o, 1)
    if o.get("early"): stamp(A, o, 7)
    A("s_barrier"); A.c("(b1) scale / shift of the 8 rows are in LDS")
    if o.get("early"): stamp(A, o, 8)
    if via:
        for j in range(8): A(f"ds_read_b64 v[{2+2*j}:{3+2*j}], v1 offset:{16384 + 2048*j}")
    for q in range(4): A(f"ds_read_b128 v[{20+4*q}:{23+4*q}], v64 offset:{16*q}")
    if via:
        for j in range(8):
            A(f"s_waitcnt lgkmcnt({11-j})"); unpack(j)
    A.c("h leaves in MFMA operand order: [d-tile][kb][16-channel block][lane][8 tokens], written through")
    for tp in range(2):
        for j in range(8):
            if tp == 0 and j % 2 == 0: A(f"s_waitcnt lgkmcnt({3 - j//2})")
            d = 70 + 4*j + 2*tp
            A(f"v_pk_fma_f32 v[{d}:{d+1}], v[{d}:{d+1}], v[{20+2*j}:{21+2*j}], v[{20+2*j}:{21+2*j}] op_sel:[0,0,1] op_sel_hi:[1,0,1]")
        for t in (2*tp, 2*tp + 1):
            for jj in range(4): A(f"v_cvt_pk_bf16_f32 v{44+4*t+jj}, v{70+4*(2*jj)+t}, v{70+4*(2*jj+1)+t}")
            A(f"buffer_store_dwordx4 v[{44+4*t}:{47+4*t}], v62, s[{rS}:{rS+3}], s48 offen offset:{t*1024} sc1")
    if o.get("early"): stamp(A, o, 4)
    if bm == 2: bias1(); bias2()
    gen_ln_tail(A, o, 6 if bm == 2 else 0)
    if bm == 3: bias1(); bias2()
    if bm == 1: bias1()
def ln_stat_loads(A):
    A.c("row-wise copy of this wave's two LayerNorm rows")
    ln_rowbase(A)
    A("s_lshr_b32 s48, s62, 1\ns_lshl_b32 s48, s48, 15\ns_and_b32 s49, s62, 1\ns_lshl_b32 s49, s49, 12\ns_add_u32 s50, s50, s48\ns_add_u32 s50, s50, s49\nv_lshlrev_b32 v1, 4, v2")
    A("s_waitcnt lgkmcnt(0)")
    srd(A, rM, sX, 0, S*D*2)
    for q in range(4): A(f"buffer_load_dwordx4 v[{32+4*q}:{35+4*q}], v1, s[{rM}:{rM+3}], s50 offen offset:{1024*q}")
    A("v_add_u32 v76, s52, v1")
def ln_stats(A, younger, via=False):
    A.c("mean / variance of two rows (sums taken on x - first element of the row)")
    pr = lambda r_: f"v[{r_}:{r_+1}]"
    for r_ in range(2):
        A(f"s_waitcnt vmcnt({younger + 2*(1 - r_)})")
        b = 32 + 8*r_; s1 = 64 + 4*r_; s2 = 66 + 4*r_; pv = 72 + 2*r_
        if via: A(f"ds_write_b128 v76, v[{b}:{b+3}] offset:{16384 + 2048*r_}\nds_write_b128 v76, v[{b+4}:{b+7}] offset:{16384 + 2048*r_ + 1024}")
        A(f"v_readfirstlane_b32 s{58+r_}, v{b}\ns_nop 0\ns_lshl_b32 s{58+r_}, s{58+r_}, 16\nv_mov_b32 v{pv}, s{58+r_}\nv_mov_b32 v{pv+1}, s{58+r_}")
        for q in range(8):
            A(f"v_lshlrev_b32 v{48+2*q}, 16, v{b+q}\nv_and_b32 v{49+2*q}, 0xffff0000, v{b+q}")
        for q in range(8): A(f"v_pk_add_f32 {pr(48+2*q)}, {pr(48+2*q)}, {pr(pv)} neg_lo:[0,1] neg_hi:[0,1]")
        A(f"v_pk_add_f32 {pr(s1)}, {pr(48)}, {pr(50)}\nv_pk_mul_f32 {pr(s2)}, {pr(48)}, {pr(48)}\nv_pk_fma_f32 {pr(s2)}, {pr(50)}, {pr(50)}, {pr(s2)}")
        for q in range(2, 8): A(f"v_pk_add_f32 {pr(s1)}, {pr(s1)}, {pr(48+2*q)}\nv_pk_fma_f32 {pr(s2)}, {pr(48+2*q)}, {pr(48+2*q)}, {pr(s2)}")
        A(f"v_add_f32 v{s1}, v{s1}, v{s1+1}\nv_add_f32 v{s2}, v{s2}, v{s2+1}")
    A("v_cmp_gt_u32 vcc, 32, v2\ns_nop 0")
    A("v_permlane32_swap_b32 v64, v68\nv_permlane32_swap_b32 v66, v70\nv_cndmask_b32 v72, v74, v72, vcc")
    A("v_add_f32 v64, v64, v68\nv_add_f32 v66, v66, v70\nv_mov_b32 v65, v64\nv_mov_b32 v67, v66\ns_nop 1")
    A("v_permlane16_swap_b32 v64, v65\nv_permlane16_swap_b32 v66, v67\nv_add_f32 v64, v64, v65\nv_add_f32 v66, v66, v67")
    for sh in (8, 4, 2, 1):
        A("s_nop 0" if sh != 8 else "s_nop 0")
        A(f"v_add_f32_dpp v64, v64, v64 row_ror:{sh} row_mask:0xf bank_mask:0xf\nv_add_f32_dpp v66, v66, v66 row_ror:{sh} row_mask:0xf bank_mask:0xf")
    A.c("a = gs / sqrt(var + eps), b = -mean * a  (gs: constant folded out again in the GELU)")
    A(f"v_mul_f32 v64, {f32(1.0/D)}, v64\nv_mul_f32 v66, {f32(1.0/D)}, v66\nv_fma_f32 v66, -v64, v64, v66\nv_max_f32 v66, 0, v66\nv_add_f32 v66, {f32(1e-5)}, v66")
    A(f"v_rsq_f32 v66, v66\nv_add_f32 v64, v64, v72\nv_mul_f32 v66, {f32(GS)}, v66\nv_mul_f32 v67, v64, v66\nv_sub_f32 v67, 0, v67")
    A(f"v_lshrrev_b32 v65, 5, v2\nv_lshlrev_b32 v65, 3, v65\ns_lshl_b32 s58, s62, 4\ns_add_u32 s58, s58, {LDS_LN}\nv_add_u32 v65, s58, v65")
    A("ds_write_b64 v65, v[66:67]\ns_waitcnt lgkmcnt(0)")
def gen_ln(A, o):
    A.c("==== LayerNorm of 8 rows: s = 32*kb + 16*(j/4) + 4*g + j%4, thread = 4 channels")
    A("s_lshr_b32 s48, s2, 2\ns_and_b32 s49, s2, 3")
    A("s_lshl_b32 s50, s48, 5\ns_lshl_b32 s51, s49, 2\ns_add_u32 s50, s50, s51\ns_lshl_b32 s50, s50, 11")
    A("v_lshlrev_b32 v1, 3, v0")
    rowoff = [(16*(j//4) + j % 4) * 2048 for j in range(8)]
    for j in range(8): A(f"s_add_u32 s{52+j}, s50, {rowoff[j]}")
    A("s_waitcnt lgkmcnt(0)")
    if o.get("early"): stamp(A, o, 5)
    srd(A, rM, sX, 0, S*D*2)
    for j in range(8): A(f"buffer_load_dwordx2 v[{2+2*j}:{3+2*j}], v1, s[{rM}:{rM+3}], s{52+j} offen")
    if not o.get("pivearly", 1): A("s_barrier")
    A(f"s_add_u32 s50, s{sX}, s50\ns_addc_u32 s51, s{sX+1}, 0")
    A.c("pivot of each row (its first element): sums are taken on x - pivot")
    for j in range(8): A(f"s_load_dword s{52+j}, s[50:51], {rowoff[j]}")
    common_setup(A)
    if o.get("pivearly", 1): A("s_barrier"); A.c("(b0) the x loads are queued ahead of any weight traffic of this CU")
    A.c("both biases (4 values per lane and 16-column block)")
    srd(A, rM, sB2, 0, S*2)
    A("s_lshr_b32 s63, s3, 1\ns_lshl_b32 s63, s63, 7\nv_bfe_u32 v19, v0, 4, 2\nv_lshlrev_b32 v19, 3, v19")
    A(f"s_lshl_b32 s61, s{sST}, 8\ns_add_u32 s61, s61, s63\ns_lshl_b32 s62, s{sHK}, 6\ns_add_u32 s61, s61, s62")
    for fb in range(2): A(f"buffer_load_dwordx2 v[{192+2*fb}:{193+2*fb}], v19, s[{rM}:{rM+3}], s61 offen offset:{fb*32}")
    srd(A, rM, sB1, 0, F*2)
    A(f"s_lshl_b32 s61, s{sFT}, 8\ns_add_u32 s61, s61, s63")
    bl = o.get("biaslate", 0)
    if bl: A("s_mov_b32 s68, s61")
    else:
        for fb in range(4): A(f"buffer_load_dwordx2 v[{104+2*fb}:{105+2*fb}], v19, s[{rM}:{rM+3}], s61 offen offset:{fb*32}")
    srd(A, rS, sWS, WS_H, H_BYTES)
    A(f"v_lshrrev_b32 v62, 5, v0\nv_mul_u32_u24 v62, {HSTR}, v62")
    A("v_bfe_u32 v63, v0, 4, 1\nv_lshlrev_b32 v63, 12, v63\nv_add_u32 v62, v62, v63")
    A("v_and_b32 v63, 15, v0\nv_lshlrev_b32 v63, 4, v63\nv_add_u32 v62, v62, v63")
    A("s_lshl_b32 s48, s48, 13\ns_lshl_b32 s49, s49, 8\ns_add_u32 s48, s48, s49")
    A(f"v_lshrrev_b32 v64, 4, v0\nv_lshlrev_b32 v64, 4, v64\nv_add_u32 v64, {LDS_LN}, v64")
    A(f"v_and_b32 v65, 3, v0\nv_lshlrev_b32 v65, 4, v65\nv_bfe_u32 v66, v0, 2, 1\nv_lshlrev_b32 v66, 2, v66\nv_add_u32 v65, v65, v66\nv_add_u32 v65, {LDS_LN}, v65")
    A("s_waitcnt lgkmcnt(0)")
    make_tag(A)
    if o.get("early"): stamp(A, o, 6)
    for j in range(8): A(f"s_lshl_b32 s{52+j}, s{52+j}, 16")
    for j in range(8):
        A(f"s_waitcnt vmcnt({(9 if bl else 13)-j})")
        if o.get("early") and j == 0: stamp(A, o, 9)
        for c in range(4):
            src = 2 + 2*j + c//2; d = 70 + 4*j + c
            A(f"v_lshlrev_b32 v{d}, 16, v{src}" if c % 2 == 0 else f"v_and_b32 v{d}, 0xffff0000, v{src}")
        for c in range(4): A(f"v_subrev_f32 v{70+4*j+c}, s{52+j}, v{70+4*j+c}")
        b = 70 + 4*j
        A(f"v_add_f32 v{20+j}, v{b}, v{b+1}\nv_mul_f32 v{28+j}, v{b}, v{b}")
        A(f"v_add_f32 v{20+j}, v{20+j}, v{b+2}\nv_fmac_f32 v{28+j}, v{b+1}, v{b+1}")
        A(f"v_add_f32 v{20+j}, v{20+j}, v{b+3}\nv_fmac_f32 v{28+j}, v{b+2}, v{b+2}\nv_fmac_f32 v{28+j}, v{b+3}, v{b+3}")
    stamp(A, o, 1)
    A.c("16 partial sums -> wave totals (half/row swaps, then rotations inside 16 lanes)")
    A("s_nop 1")
    for p in range(8): A(f"v_permlane32_swap_b32 v{20+2*p}, v{21+2*p}")
    for p in range(8): A(f"v_add_f32 v{20+2*p}, v{20+2*p}, v{21+2*p}")
    A("s_nop 1")
    for q in range(4): A(f"v_permlane16_swap_b32 v{20+4*q}, v{22+4*q}")
    for q in range(4): A(f"v_add_f32 v{40+q}, v{20+4*q}, v{22+4*q}")
    for sh in (8, 4, 2, 1):
        A("s_nop 1")
        for q in range(4): A(f"v_add_f32_dpp v{40+q}, v{40+q}, v{40+q} row_ror:{sh} row_mask:0xf bank_mask:0xf")
    A("ds_write_b128 v64, v[40:43]")
    A("s_waitcnt lgkmcnt(0)")
    if o.get("early"): stamp(A, o, 7)
    A("s_barrier"); A.c("(b1)")
    if o.get("early"): stamp(A, o, 8)
    for w in range(4): A(f"ds_read2_b32 v[{44+2*w}:{45+2*w}], v65 offset0:{16*w} offset1:{16*w+2}")
    A("s_waitcnt lgkmcnt(0)")
    A("v_add_f32 v44, v44, v46\nv_add_f32 v45, v45, v47\nv_add_f32 v48, v48, v50\nv_add_f32 v49, v49, v51\nv_add_f32 v44, v44, v48\nv_add_f32 v45, v45, v49")
    A(f"v_mul_f32 v44, {f32(1.0/D)}, v44\nv_mul_f32 v45, {f32(1.0/D)}, v45")
    A("v_fma_f32 v45, -v44, v44, v45\nv_max_f32 v45, 0, v45")
    A.c("a = gs / sqrt(var + eps), b = -mean * a  (gs: constant folded out again in the GELU)")
    A(f"v_add_f32 v45, {f32(1e-5)}, v45\nv_rsq_f32 v45, v45\ns_nop 0\nv_mul_f32 v45, {f32(GS)}, v45\nv_mul_f32 v44, v44, v45\nv_sub_f32 v44, 0, v44")
    A("s_nop 1")
    gmap = [0, 2, 1, 3]
    for e in range(8):
        j = gmap[e % 4] + 4*(e // 4)
        A(f"v_readlane_b32 s{52+j}, v45, {e}\nv_readlane_b32 s{60+j}, v44, {e}")
    A("s_nop 1")
    for j in range(8): A(f"v_mov_b32 v{20+j}, s{60+j}")
    A.c("h leaves in MFMA operand order: [d-tile][kb][16-channel block][lane][8 tokens], written through")
    for t in range(4):
        for j in range(8): A(f"v_fma_f32 v{70+4*j+t}, v{70+4*j+t}, s{52+j}, v{20+j}")
        for jj in range(4): A(f"v_cvt_pk_bf16_f32 v{44+4*t+jj}, v{70+4*(2*jj)+t}, v{70+4*(2*jj+1)+t}")
        A(f"buffer_store_dwordx4 v[{44+4*t}:{47+4*t}], v62, s[{rS}:{rS+3}], s48 offen offset:{t*1024} sc1")
    if o.get("early"): stamp(A, o, 4)
    gen_ln_tail(A, o)
def gen_ln_tail(A, o, younger=0):
    A.c("hand-off 1: wave w wrote d-tiles 2w, 2w+1 -> word (wg) of sets (w, replica 0/1)")
    A(f"s_lshr_b32 s48, s2, 3\ns_lshl_b32 s48, s48, 7\ns_and_b32 s49, s2, 7\ns_lshl_b32 s49, s49, 2\ns_add_u32 s48, s48, s49\ns_lshl_b32 s49, s3, 13\ns_add_u32 s48, s48, s49\ns_add_u32 s48, s48, {S1_OFF}")
    A(f"v_and_b32 v2, 63, v0\nv_lshlrev_b32 v3, 12, v2\nv_mov_b32 v4, s{sTAG}")
    A(f"s_waitcnt vmcnt({younger})")
    A(f"s_mov_b64 exec, 3\nbuffer_store_dword v4, v3, s[{rF}:{rF+3}], s48 offen sc1\ns_mov_b64 exec, -1")
    stamp(A, o, 2)
    A.c("the die this wave runs on (the split-K partner, id ^ 8, picks its store flavour from it)")
    A("s_and_b32 s62, s3, 1\ns_lshr_b32 s63, s3, 1")
    A(f"s_lshl_b32 s54, s2, 10\ns_lshl_b32 s55, s3, 8\ns_add_u32 s54, s54, s55\ns_add_u32 s54, s54, {S3_OFF}\ns_xor_b32 s55, s54, 0x2000")
    A(f"s_getreg_b32 s64, hwreg(HW_REG_XCC_ID, 0, 4)\ns_add_u32 s64, s64, 1\ns_add_u32 s64, s64, s{sTAG}\nv_mov_b32 v6, s64\nv_mov_b32 v7, 128")
    A(f"s_mov_b64 exec, 1\nbuffer_store_dword v6, v7, s[{rF}:{rF+3}], s54 offen sc1\ns_mov_b64 exec, -1")
    A("s_barrier"); A.c("(b2)")

def rd_w(slot, fb):
    hi = slot >= 2; base = (slot % 2) * 32768
    return [f"ds_read_b64_tr_b16 v[{WB+8*fb+4*ks+2*r_}:{WB+8*fb+4*ks+2*r_+1}], v{VWA+4*hi+fb} offset:{base + ks*8192 + r_*4096}" for ks in range(2) for r_ in range(2)]
def rd_h(slot, hb):
    hi = slot >= 2; base = (slot % 2) * 32768
    return [f"ds_read_b128 v[{hb+16*ks+4*t}:{hb+16*ks+4*t+3}], v{VHA+hi} offset:{base + 16384 + ks*8192 + t*1024}" for t in range(4) for ks in range(2)]
def step(A, slot, o={}):
    hb, hn = HB[slot % 2], HB[1 - slot % 2]
    nx = (slot + 1) % R
    first = rd_w(slot, 1) + rd_w(slot, 2) + rd_w(slot, 3)
    second = rd_w(nx, 0) + rd_h(nx, hn)
    m = 0; flip = 0
    for fb in range(4):
        if fb == 0: A("s_waitcnt lgkmcnt(0)")
        if fb == 1: A(f"s_waitcnt lgkmcnt({8 if o.get('rd2') else 4})")
        if fb == 2: A("s_waitcnt lgkmcnt(0)\ns_barrier")
        for t in (range(4) if fb % 2 == 0 else range(3, -1, -1)):
            a = ACC + 16*fb + 4*t
            for ks in ((1, 0) if flip else (0, 1)):
                w = WB + 8*fb + 4*ks; h = hb + 16*ks + 4*t
                A(f"v_mfma_f32_16x16x32_bf16 v[{a}:{a+3}], v[{w}:{w+3}], v[{h}:{h+3}], v[{a}:{a+3}]")
                if o.get("rd2"):
                    if m < 6: A(first[2*m]); A(first[2*m+1])
                    elif 16 <= m < 22: A(second[2*(m-16)]); A(second[2*(m-16)+1])
                elif m < 12: A(first[m])
                elif 16 <= m < 28: A(second[m-16])
                m += 1
            flip ^= 1

def cons_prologue(A, o, g1):
    half = o.get("half", 1)
    A.c(f"==== GEMM{1 if g1 else 2} set-up: wave = 64 weight columns x 64 channels, accumulators start from the bias")
    A("v_lshrrev_b32 v3, 4, v2\nv_and_b32 v4, 15, v2")
    nb = 4 if g1 else 2
    A.c("LDS read addresses (32-byte column blocks are XOR-swizzled with row%8)")
    A("v_lshrrev_b32 v6, 2, v4\nv_lshl_add_u32 v7, v3, 2, v6")
    A("v_and_b32 v18, 7, v7\nv_lshlrev_b32 v7, 8, v7\nv_and_b32 v19, 3, v4\nv_lshl_add_u32 v7, v19, 3, v7")
    A("s_lshl_b32 s50, s63, 2")
    if not g1: A(f"s_lshl_b32 s51, s{sHK}, 1\ns_xor_b32 s50, s50, s51\ns_xor_b32 s50, s50, 2")
    for fb in range(4):
        A(f"s_xor_b32 s51, s50, {fb}\nv_xor_b32 v19, s51, v18\nv_lshl_add_u32 v{VWA+fb}, v19, 5, v7\nv_add_u32 v{VWA+4+fb}, 0x10000, v{VWA+fb}")
    A(f"s_lshl_b32 s50, s62, 12\nv_lshl_add_u32 v{VHA}, v2, 4, s50\nv_add_u32 v{VHA+1}, 0x10000, v{VHA}")
    if g1: A("s_waitcnt vmcnt(0)")
    for fb in range(4):
        for r_ in range(4):
            a = ACC + 16*fb + r_
            if fb >= 4 - nb:
                src = (104 if g1 else 192) + 2*(fb - (4 - nb)) + r_//2
                A(f"v_lshlrev_b32 v{a}, 16, v{src}" if r_ % 2 == 0 else f"v_and_b32 v{a}, 0xffff0000, v{src}")
                if g1: A(f"v_mul_f32 v{a}, {f32(GS)}, v{a}")
            else: A(f"v_mov_b32 v{a}, 0")
            for t in range(1, 4): A(f"v_mov_b32 v{a+4*t}, v{a}")
    if g1:
        A.c("u address, GELU constants, hand-off 2 words")
        srd(A, rS, sWS, WS_U, U_BYTES)
        A(f"s_cmp_ge_u32 s{sFT}, 14\ns_cselect_b32 s52, 1, 0\ns_cselect_b32 s53, 14, 0\ns_sub_u32 s53, s{sFT}, s53")
        if half: A(f"s_mul_i32 s48, s52, 56\ns_lshl_b32 s49, s53, 1\ns_add_u32 s48, s48, s49\ns_add_u32 s48, s48, s63")
        else: A(f"s_lshl_b32 s48, s{sFT}, 2\ns_lshl_b32 s49, s63, 1\ns_add_u32 s48, s48, s49")
        A(f"s_lshl_b32 s48, s48, 13\ns_mul_i32 s49, s{sDT1}, {USTR}\ns_add_u32 s48, s48, s49")
        A(f"s_lshl_b32 s49, s62, 12\ns_add_u32 s48, s48, s49\ns_add_u32 s49, s48, {(28 if half else 1)*8192}\nv_lshlrev_b32 v4, 4, v2")
        A(f"v_mov_b32 v22, {f32(GK)}\nv_mov_b32 v23, v22\nv_mov_b32 v24, {f32(GS)}\nv_mov_b32 v25, v24")
        if o.get("wl"): A(f"s_lshl_b32 s53, s53, 9\ns_lshl_b32 s50, s{sDT1}, 1\ns_add_u32 s52, s52, s50\ns_lshl_b32 s52, s52, 14\ns_add_u32 s52, s52, s53\ns_lshl_b32 s53, s3, 7\ns_add_u32 s52, s52, s53\ns_add_u32 s52, s52, {S2_OFF}\ns_add_u32 s53, s52, 8192")
        else: A(f"s_lshl_b32 s53, s53, 7\ns_lshl_b32 s50, s{sDT1}, 1\ns_add_u32 s52, s52, s50\ns_lshl_b32 s52, s52, 12\ns_add_u32 s52, s52, s53\ns_lshl_b32 s53, s3, 2\ns_add_u32 s52, s52, s53\ns_add_u32 s52, s52, {S2_OFF}\ns_add_u32 s53, s52, 2048")
        A(f"v_mov_b32 v20, 0\nv_mov_b32 v21, s{sTAG}")
    else:
        A.c("output rows kept here (s56/s57) and rows finished by the partner (s52/s53)")
        srd(A, rS, sOUT, 0, S*D*2)
        A("v_lshlrev_b32 v3, 13, v3\nv_lshl_add_u32 v20, v4, 3, v3\nv_add_u32 v21, 4096, v20")
        A(f"s_lshl_b32 s56, s{sST}, 7\ns_lshl_b32 s57, s63, 6\ns_add_u32 s56, s56, s57\ns_lshl_b32 s57, s{sHK}, 5\ns_add_u32 s56, s56, s57\ns_lshl_b32 s56, s56, 11")
        A(f"s_lshl_b32 s57, s{sDT2}, 8\ns_add_u32 s56, s56, s57\ns_lshl_b32 s57, s62, 7\ns_add_u32 s56, s56, s57")
        A("s_xor_b32 s52, s56, 0x10000\ns_add_u32 s53, s52, 32768\ns_add_u32 s57, s56, 32768")
        A(f"v_mov_b32 v22, 0\nv_mov_b32 v23, s{sTAG}")
    A(f"s_mov_b32 s{sPH}, {1 if g1 else 2}\ns_mov_b32 s65, {(N1 if g1 else N2)//R}")

def cons_loop(A, o):
    A("s_barrier"); A.c("(b3) the polling wave has seen hand-off 1")
    A("L_c_main:")
    A("s_barrier"); A.c("stage 0 is in LDS")
    A(f"v_mov_b32 v5, 128\ns_cmp_eq_u32 s{sPH}, 1\ns_cbranch_scc1 L_c_noid")
    A(f"buffer_load_dword v30, v5, s[{rF}:{rF+3}], s55 offen sc1")
    if not o.get('early'): stamp(A, o, 7, 2)
    A("s_branch L_c_go\nL_c_noid:")
    stamp(A, o, 3, 0)
    A("L_c_go:")
    for x in rd_w(0, 0) + rd_h(0, HB[0]): A(x)
    A.c("==== main loop (both GEMMs): 4 steps of K=64; the barrier inside a step frees its slot and publishes the next stage")
    A(f".p2align {o.get('calign', 6)}")
    for _ in range(o.get("cpad", 0)): A("s_nop 0")
    A("L_c_loop:")
    for r_ in range(R): step(A, r_, o)
    A("s_sub_u32 s65, s65, 1\ns_cmp_lg_u32 s65, 0\ns_cbranch_scc1 L_c_loop")
    A(f"s_waitcnt lgkmcnt(0)\ns_cmp_eq_u32 s{sPH}, 2\ns_cbranch_scc1 L_c_epi2")

def cons_epi1(A, o):
    half = o.get("half", 1)
    A.c("==== GELU(tanh): y = gs*x is in the accumulators; gelu(x) = y / (gs + gs*2^(-y*(y*y + k)))")
    if not o.get('early'): stamp(A, o, 4, 1)
    A("s_nop 1")
    pr = lambda r_: f"v[{r_}:{r_+1}]"
    flag = lambda off: A(f"s_mov_b64 exec, 1\nbuffer_store_dword v21, v20, s[{rF}:{rF+3}], s{53 if off else 52} offen sc1\ns_mov_b64 exec, -1")
    hq = o.get("hq", 6)
    for kbl in range(2):
        for t in range(4):
            regs = [ACC + 16*(2*kbl + h) + 4*t + r_ for h in range(2) for r_ in range(4)]
            q = 4*kbl + t; tb = WB + (q % 2) * 16; d = 128 + 4*q
            for e in range(0, 8, 2): A(f"v_pk_fma_f32 {pr(tb+e)}, {pr(regs[e])}, {pr(regs[e])}, v[22:23]")
            for e in range(0, 8, 2): A(f"v_pk_mul_f32 {pr(tb+e)}, {pr(tb+e)}, {pr(regs[e])} neg_lo:[1,0] neg_hi:[1,0]")
            for e in range(8): A(f"v_exp_f32 v{tb+e}, v{tb+e}")
            for e in range(0, 8, 2): A(f"v_pk_fma_f32 {pr(tb+e)}, {pr(tb+e)}, v[24:25], v[24:25]")
            for e in range(8): A(f"v_rcp_f32 v{tb+e}, v{tb+e}")
            for e in range(0, 8, 2): A(f"v_pk_mul_f32 {pr(tb+e)}, {pr(tb+e)}, {pr(regs[e])}")
            for e in range(4): A(f"v_cvt_pk_bf16_f32 v{d+e}, v{tb+2*e}, v{tb+2*e+1}")
            A(f"buffer_store_dwordx4 v[{d}:{d+3}], v4, s[{rS}:{rS+3}], s{48+kbl} offen offset:{t*1024} sc1")
            if half and q == hq:
                A.c("hand-off 2a: the first four fragments (first pass of GEMM2's K order) have landed")
                A(f"s_waitcnt vmcnt({hq-3})"); flag(0)
                if not o.get('early'): stamp(A, o, 6)
    if not o.get('early'): stamp(A, o, 5)
    gate = o.get("gate", 1)
    if half:
        if gate == 0: A("s_barrier")
        if gate == 2: A("s_waitcnt vmcnt(1)\ns_barrier")
        A("s_waitcnt vmcnt(0)"); flag(2048)
        if gate == 1: A("s_barrier")
        A.c("(b4) the polling wave may start")
    else:
        A("s_waitcnt vmcnt(0)"); flag(0)
        stamp(A, o, 6)
        A("s_barrier"); A.c("(b4)")

def cons_epi2(A, o):
    A("L_c_epi2:")
    A.c("==== split-K pair: the half the partner finishes goes, rounded, into the partner's own output rows")
    if not o.get('early'): stamp(A, o, 8, 3)
    T, U_ = 96, 128
    def oaddr(sb, r_, base): return f"v{20 + r_//2}, s[{rS}:{rS+3}], s{base + sb} offen offset:{(r_%2)*2048}"
    A("s_waitcnt vmcnt(0)\nv_readfirstlane_b32 s61, v30")
    for sb in range(2):
        for r_ in range(4):
            a = ACC + 16*sb + r_; d = U_ + 8*sb + 2*r_
            A(f"v_cvt_pk_bf16_f32 v{d}, v{a}, v{a+4}\nv_cvt_pk_bf16_f32 v{d+1}, v{a+8}, v{a+12}")
    def send(flag):
        for sb in range(2):
            for r_ in range(4):
                d = U_ + 8*sb + 2*r_
                A(f"buffer_store_dwordx2 v[{d}:{d+1}], {oaddr(sb, r_, 52)} {flag}")
        A("s_waitcnt vmcnt(0)")
        A(f"s_mov_b64 exec, 1\nbuffer_store_dword v23, v22, s[{rF}:{rF+3}], s54 offen {flag}")
    A.c("partner reported the same die: the shared L2 carries it; otherwise (or not yet known) write through")
    A("s_cmp_eq_u32 s61, s64\ns_cbranch_scc0 L_c_far")
    send("")
    A("s_branch L_c_sent\nL_c_far:")
    send("sc1")
    A("L_c_sent:")
    poll(A, "L_c_p3", f"buffer_load_dword v18, v22, s[{rF}:{rF+3}], s55 offen sc1", [18], mask=1)
    if not o.get('early'): stamp(A, o, 9)
    for sb in range(2):
        for r_ in range(4):
            d = T + 8*sb + 2*r_
            A(f"buffer_load_dwordx2 v[{d}:{d+1}], {oaddr(sb, r_, 56)} sc1")
    for sb in range(2):
        for r_ in range(4):
            q = 4*sb + r_
            A("s_waitcnt vmcnt(7)")
            a = ACC + 32 + 16*sb + r_; d = T + 8*sb + 2*r_; t_ = T + 16 + 4*(q % 2)
            A(f"v_lshlrev_b32 v{t_}, 16, v{d}\nv_and_b32 v{t_+1}, 0xffff0000, v{d}\nv_lshlrev_b32 v{t_+2}, 16, v{d+1}\nv_and_b32 v{t_+3}, 0xffff0000, v{d+1}")
            for t in range(4): A(f"v_add_f32 v{a+4*t}, v{a+4*t}, v{t_+t}")
            A(f"v_cvt_pk_bf16_f32 v{d}, v{a}, v{a+4}\nv_cvt_pk_bf16_f32 v{d+1}, v{a+8}, v{a+12}")
            A(f"buffer_store_dwordx2 v[{d}:{d+1}], {oaddr(sb, r_, 56)}")
    if o.get("stamp"):
        A("s_cmp_lg_u32 s3, 0\ns_cbranch_scc1 L_end\ns_waitcnt vmcnt(0)")
        stamp(A, o, 10)
        stamp_flush(A, o, range(11))
        A("s_sub_u32 s94, s96, s94\nv_mov_b32 v1, s94\nglobal_store_dword v28, v1, s[92:93] offset:56")
        A("s_sub_u32 s98, s100, s98\nv_mov_b32 v1, s98\nglobal_store_dword v28, v1, s[92:93] offset:60")
    A("s_endpgm")

def ld_waddr(A, o, g1):
    half = o.get("half", 1) and not g1
    pitch = P1 if g1 else P2
    A.c("per-lane source offsets of this wave's four 1 KB weight pieces (4 rows x 256 B, swizzled), stream base s[64:65]")
    srd(A, rW, sW1 if g1 else sW2, 0, S*F*2)
    A(f"s_mov_b32 s48, {pitch}\ns_lshl_b32 s49, s62, 4\ns_lshl_b32 s50, s{sFT if g1 else sST}, 8")
    if half: A("s_and_b32 s51, s49, 32\ns_add_u32 s49, s49, s51")
    for j in range(4):
        A(f"v_add_u32 v6, {4*(j%2)}, v3\nv_xor_b32 v6, v6, v5\nv_lshl_add_u32 v6, v6, 5, v4")
        A(f"s_add_u32 s51, s49, {4*j}\nv_add_u32 v7, s51, v3\nv_mul_lo_u32 v7, v7, s48\nv_add3_u32 v{8+j}, v7, v6, s50")
        if j: A(f"v_subrev_u32 v{8+j}, {j*1024}, v{8+j}")
    if g1: A(f"s_mov_b32 s64, s{sW1}\ns_mov_b32 s65, s{sW1+1}")
    else: A(f"s_mul_i32 s50, s{sHK}, {1792*P2}\ns_add_u32 s64, s{sW2}, s50\ns_addc_u32 s65, s{sW2+1}, 0")
def ld_haddr(A, g1):
    A(f"s_mul_i32 s48, s{sDT1 if g1 else sDT2}, {HSTR if g1 else USTR}\ns_add_u32 s48, s48, s52\nv_lshl_add_u32 v12, v2, 4, s48")
    if g1: A(f"s_add_u32 s66, s{sWS}, {WS_H}\ns_addc_u32 s67, s{sWS+1}, 0")
    else: A(f"s_mul_i32 s51, s{sHK}, {N2*16384}\ns_add_u32 s51, s51, {WS_U}\ns_add_u32 s66, s{sWS}, s51\ns_addc_u32 s67, s{sWS+1}, 0")
def issue_w(A, o, g1, m0):
    A(m0 + "\ns_nop 0")
    for j in range(4): A(f"global_load_lds_dwordx4 v{8+j}, s[64:65] offset:{j*1024}")
    A(f"s_add_u32 s64, s64, {64*P1 if g1 else (128 if o.get('half', 1) else 64)*P2}\ns_addc_u32 s65, s65, 0")
def issue_h(A, m0):
    A(m0 + "\ns_nop 0")
    for j in range(4): A(f"global_load_lds_dwordx4 v12, s[66:67] offset:{j*1024} {HF}")
    A("s_add_u32 s66, s66, 16384\ns_addc_u32 s67, s67, 0")
def ld_main(A, o, g1, pre_bar, post_bar, after_issue):
    N = N1 if g1 else N2; P = "1" if g1 else "2"
    for z in range(R): issue_h(A, f"s_add_u32 m0, s52, {z*32768 + 16384}")
    A("s_waitcnt vmcnt(12)")
    if g1 or not o.get('early'): stamp(A, o, 3 if g1 else 6)
    A("s_barrier")
    for n, c in ((0, 8), (1, 12)):
        A(f"s_waitcnt vmcnt({c})\ns_barrier")
        issue_w(A, o, g1, f"s_add_u32 m0, s52, {n*32768}"); issue_h(A, "s_add_u32 m0, m0, 16384")
    A(f"s_mov_b32 s53, 2\n.p2align 6\nL_l_loop{P}:")
    A(f"s_and_b32 s54, s53, {R-1}\ns_lshl_b32 s54, s54, 15\ns_waitcnt vmcnt(16)")
    if pre_bar: pre_bar()
    A("s_barrier")
    if post_bar: post_bar()
    issue_w(A, o, g1, "s_add_u32 m0, s52, s54"); issue_h(A, "s_add_u32 m0, m0, 16384")
    if after_issue: after_issue()
    m = N - R if g1 else o.get("m2", 20)
    A(f"s_add_u32 s53, s53, 1\ns_cmp_lt_u32 s53, {m}\ns_cbranch_scc1 L_l_loop{P}")
    if g1: return
    A.c("from here on run three stages ahead instead of four")
    A(f"s_waitcnt vmcnt(16)\ns_barrier\n.p2align 6\nL_l_loopb:")
    A(f"s_and_b32 s54, s53, {R-1}\ns_lshl_b32 s54, s54, 15\ns_waitcnt vmcnt(8)\ns_barrier")
    issue_w(A, o, g1, "s_add_u32 m0, s52, s54"); issue_h(A, "s_add_u32 m0, m0, 16384")
    A(f"s_add_u32 s53, s53, 1\ns_cmp_lt_u32 s53, {N-R}\ns_cbranch_scc1 L_l_loopb")

def w2unit(A, dst, sbase, r0, cnt, skip):
    A(f"s_lshr_b32 s58, s{sXCD}, 2\ns_add_u32 s58, s58, {r0}\ns_and_b32 s59, s{sXCD}, 3\ns_lshl_b32 s59, s59, 10")
    A(f"v_and_b32 v{dst}, 7, v2\nv_lshl_add_u32 v{dst}, v{dst}, 7, s59\nv_lshrrev_b32 v6, 3, v2\nv_cmp_gt_u32 vcc, {cnt}, v6\nv_add_u32 v6, s{sbase}, v6")
    A(f"v_and_b32 v7, 1, v6\nv_mul_u32_u24 v7, 1792, v7\nv_and_b32 v6, -2, v6\nv_add3_u32 v7, v7, v6, s58")
    if skip: A("v_and_b32 v6, 0xffffffe0, v6\nv_add_u32 v7, v7, v6")
    A(f"v_lshl_add_u32 v{dst}, v7, 12, v{dst}\nv_mov_b32 v6, {OOB}\nv_cndmask_b32 v{dst}, v6, v{dst}, vcc")
def s2set(A, dst):
    A(f"s_lshl_b32 s{dst}, s{sDT2}, 1\ns_add_u32 s{dst}, s{dst}, s{sHK}\ns_lshl_b32 s{dst}, s{dst}, {14 if WL else 12}\ns_add_u32 s{dst}, s{dst}, {S2_OFF}")
def touch_flags(A, worker):
    if worker == "once":
        A.c("bring the hand-off lines into the memory-side cache early, each line once (wave 7; values unused)")
        A(f"s_lshl_b32 s48, s2, 7\ns_add_u32 s48, s48, {S1_OFF}\ns_lshl_b32 s49, s2, 8\ns_add_u32 s49, s49, {S2_OFF - 128}\ns_lshl_b32 s58, s2, 10\ns_add_u32 s58, s58, {S3_OFF - 3*128}")
        A("v_lshl_add_u32 v21, v2, 7, s58\nv_lshl_add_u32 v22, v2, 7, s49\nv_cmp_gt_u32 vcc, 3, v2\nv_mov_b32 v23, s48\ns_nop 0\nv_cndmask_b32 v21, v21, v22, vcc\nv_cmp_eq_u32 vcc, 0, v2\ns_nop 1\nv_cndmask_b32 v21, v21, v23, vcc")
        A(f"s_cmp_eq_u32 s3, 7\ns_cselect_b32 s48, 0, 0x7ff00000\ns_mov_b64 exec, 0x7ff\nbuffer_load_dword v31, v21, s[{rF}:{rF+3}], s48 offen sc1\ns_mov_b64 exec, -1")
        return
    if worker is None:
        A.c("bring the hand-off lines towards the caches early (wave 7; values unused)")
        A(f"s_cmp_eq_u32 s3, 7\ns_cselect_b32 s48, 0, 0x7ff00000\ns_add_u32 s49, s48, s56\nbuffer_load_dword v31, v13, s[{rF}:{rF+3}], s49 offen sc1")
        s2set(A, 58)
        A("v_lshl_add_u32 v21, v2, 7, s58")
        A(f"s_lshl_b32 s58, s2, 10\ns_add_u32 s58, s58, {S3_OFF - 32*128}\nv_lshl_add_u32 v22, v2, 7, s58\nv_cmp_gt_u32 vcc, 32, v2\ns_nop 1\nv_cndmask_b32 v21, v22, v21, vcc")
        A(f"s_mov_b32 exec_hi, 0xff\nbuffer_load_dword v31, v21, s[{rF}:{rF+3}], s48 offen sc1\ns_mov_b64 exec, -1")
        return
    lab = "L_l_nt" + ("w" if worker else "s")
    A.c("bring the hand-off lines towards the caches early (values unused)")
    A(f"s_cmp_lg_u32 s3, 7\ns_cbranch_scc1 {lab}")
    if worker: A(f"buffer_load_dword v31, v13, s[{rF}:{rF+3}], s56 offen sc1")
    s2set(A, 58)
    A("v_lshl_add_u32 v21, v2, 7, s58")
    if WL: A(f"buffer_load_dword v31, v21, s[{rF}:{rF+3}], 0 offen sc1\nv_add_u32 v21, 8192, v21\nbuffer_load_dword v31, v21, s[{rF}:{rF+3}], 0 offen sc1")
    A(f"s_lshl_b32 s58, s2, 10\ns_add_u32 s58, s58, {S3_OFF - 32*128}\nv_lshl_add_u32 v22, v2, 7, s58\nv_cmp_gt_u32 vcc, 32, v2\ns_nop 1\nv_cndmask_b32 v21, v22, v21, vcc")
    A(f"s_mov_b32 exec_hi, 0xff\nbuffer_load_dword v31, v21, s[{rF}:{rF+3}], 0 offen sc1\ns_mov_b64 exec, -1\n{lab}:")

def gen_loader(A, o):
    half = o.get("half", 1); nr = o.get("lnrows", 2); upw = o.get("upw", 7); prog = o.get("prog", 8)
    A("L_loader:")
    A.c("==== loader waves 4..7: all global->LDS traffic, hand-off polling, cache warming")
    A("s_sub_u32 s62, s3, 4\ns_lshl_b32 s52, s62, 12\nv_and_b32 v2, 63, v0")
    cw = o.get("cw", 2)
    if cw:
        A.c("pull this kernel's own text into L2 (read only)")
        A(f"s_cmp_ge_u32 s2, {8*cw}\ns_cbranch_scc1 L_l_ncw\ns_cmp_ge_u32 s62, 2\ns_cbranch_scc1 L_l_ncw\ns_getpc_b64 s[58:59]\nL_l_pc:")
        A(f"s_sub_u32 s58, s58, L_l_pc-{NAME}\ns_subb_u32 s59, s59, 0\ns_lshl_b32 s60, s62, 13\nv_lshl_add_u32 v21, v2, 7, s60")
        A(f"v_min_u32 v21, L_end-{NAME}, v21\nglobal_load_dword v31, v21, s[58:59]\nL_l_ncw:")
    A("v_lshrrev_b32 v3, 4, v2\nv_and_b32 v4, 15, v2\nv_lshrrev_b32 v5, 1, v4\nv_and_b32 v4, 1, v4\nv_lshlrev_b32 v4, 4, v4")
    ln2 = o.get("ln2", 2)
    if ln2: ln_stat_loads(A)
    else: A("s_waitcnt lgkmcnt(0)")
    common_setup(A)
    A.c("w1 warm-up pattern (v25): 3 row pairs per instruction; this die's 14 lines of the row of its parity, plus the")
    A.c("other row's lines for the tiles whose addresses get fewer L1 miss slots")
    A(f"v_mul_u32_u24 v13, 3641, v2\nv_lshrrev_b32 v13, 16, v13\nv_mul_u32_u24 v14, 18, v13\nv_sub_u32 v14, v2, v14")
    A(f"s_and_b32 s48, s{sXCD}, 3\ns_lshr_b32 s49, s{sXCD}, 2\ns_mul_i32 s58, s48, 14\ns_add_u32 s59, s48, 1\ns_and_b32 s59, s59, 3\ns_lshl_b32 s59, s59, 1")
    A("v_cmp_gt_u32 vcc, 14, v14\nv_add_u32 v16, s58, v14\nv_subrev_u32 v17, 14, v14\nv_lshrrev_b32 v18, 1, v17\nv_lshlrev_b32 v18, 3, v18\nv_and_b32 v17, 1, v17\nv_add3_u32 v17, v17, v18, s59")
    if o.get("dwrap", 1): A("v_subrev_u32 v18, 14, v17\nv_min_u32 v17, v17, v18")
    A("v_cmp_gt_u32 s[60:61], 14, v17\nv_add_u32 v17, s58, v17\nv_cndmask_b32 v16, v17, v16, vcc\ns_or_b64 s[60:61], s[60:61], vcc")
    A("s_xor_b32 s58, s49, 1\nv_mov_b32 v17, s58\nv_mov_b32 v18, s49\nv_cndmask_b32 v17, v17, v18, vcc\nv_lshl_add_u32 v17, v13, 1, v17")
    A(f"v_cmp_gt_u32 vcc, 3, v13\ns_and_b64 vcc, vcc, s[60:61]\nv_mul_u32_u24 v17, {P1}, v17\nv_lshl_add_u32 v25, v16, 7, v17\nv_mov_b32 v17, {OOB}\nv_cndmask_b32 v25, v17, v25, vcc")
    A(f"s_mul_i32 s48, s{sN}, {nr}\ns_add_u32 s48, s48, s62\ns_mul_i32 s55, s48, {6*P1}")
    srd(A, rH, sW1, 0, S*F*2)
    if ln2:
        pa = o.get("pfafter", 1)
        A(f"s_cmp_ge_u32 s62, {nr}\ns_cselect_b32 s55, 0x7ff00000, s55")
        if not pa: A(f"buffer_load_dword v31, v25, s[{rH}:{rH+3}], s55 offen")
        A(f"s_and_b32 s56, s{sDT1}, 6\ns_and_b32 s59, s{sXCD}, 1\ns_add_u32 s56, s56, s59\ns_lshl_b32 s56, s56, 12\ns_add_u32 s56, s56, {S1_OFF}")
        A("v_lshrrev_b32 v13, 1, v2\nv_lshlrev_b32 v13, 7, v13\nv_and_b32 v14, 1, v2\nv_lshl_add_u32 v13, v14, 4, v13")
        if o.get("early"): stamp(A, o, 4)
        tn = 1 if o.get("tonce", 1) else 2
        touch_flags(A, "once" if tn == 1 else None)
        if o.get("early"):
            stamp(A, o, 5); A("s_waitcnt vmcnt(3)"); stamp(A, o, 6)
        if pa: A(f"s_waitcnt vmcnt({tn + 2 if pa == 1 else tn})\nbuffer_load_dword v31, v25, s[{rH}:{rH+3}], s55 offen")
        ln_stats(A, tn + 1, ln2 == 2)
        if o.get("early"): stamp(A, o, 1)
        make_tag(A)
        A("s_barrier"); A.c("(b1)")
    else:
        A("s_barrier"); A.c("(b0)")
        A(f"s_cmp_ge_u32 s62, {nr}\ns_cbranch_scc1 L_l_nopf\nbuffer_load_dword v31, v25, s[{rH}:{rH+3}], s55 offen\nL_l_nopf:")
    if o.get("tlb"):
        A.c("first touch of the workspace pages (padding words, values unused)")
        A("s_cmp_lg_u32 s3, 6\ns_cbranch_scc1 L_l_notlb")
        srd(A, rM, sWS, 0, 16 << 20)
        A(f"v_lshlrev_b32 v21, {o['tlb']}, v2\nv_add_u32 v21, {64*8192 if o['tlb'] > 19 else 0}, v21\nbuffer_load_dword v31, v21, s[{rM}:{rM+3}], 0 offen sc1\nL_l_notlb:")
    A("s_cmp_ge_u32 s2, 224\ns_cbranch_scc1 L_l_spare")
    lb = o.get("lb1", 0)
    if lb: A("s_waitcnt lgkmcnt(0)\ns_barrier")
    ld_waddr(A, o, True)
    ld_haddr(A, True)
    if not ln2:
        A(f"s_and_b32 s56, s{sDT1}, 6\ns_and_b32 s59, s{sXCD}, 1\ns_add_u32 s56, s56, s59\ns_lshl_b32 s56, s56, 12\ns_add_u32 s56, s56, {S1_OFF}")
        A("v_lshrrev_b32 v13, 1, v2\nv_lshlrev_b32 v13, 7, v13\nv_and_b32 v14, 1, v2\nv_lshl_add_u32 v13, v14, 4, v13")
        touch_flags(A, True)
    g1k = o.get("g1pf", 0); G0 = 342 - 28*g1k
    if g1k:
        A.c("late w1 rows: one touch per wave, spread over the steps")
        A(f"s_mul_i32 s51, s{sN}, {g1k}\ns_add_u32 s51, s51, s62\ns_add_u32 s51, s51, {G0}\ns_mul_i32 s51, s51, {6*P1}")
        A(f"s_lshr_b32 s55, s{sN}, 1\ns_add_u32 s55, s55, {o.get('g1in', 3)}\ns_cmp_ge_u32 s62, {g1k}\ns_cselect_b32 s55, 0xff, s55")
    if not ln2:
        A("s_waitcnt lgkmcnt(0)")
        make_tag(A)
    A("s_barrier" if lb or ln2 else "s_barrier\ns_barrier"); A.c("(b2)")
    for z in range(R): issue_w(A, o, True, f"s_add_u32 m0, s52, {z*32768}")
    pl = f"buffer_load_dwordx4 v[16:19], v13, s[{rF}:{rF+3}], s56 offen sc1"
    if not o.get("early"): stamp(A, o, 1)
    A.c(f"hand-off 1: the producers of the first {prog} stages now, the others before their stages are requested")
    A("s_mov_b32 s57, 0xff\ns_mov_b32 s63, 0xff\ns_cmp_lg_u32 s3, 4\ns_cbranch_scc1 L_l_s1seen")
    poll(A, "L_l_p1", pl, [16, 17, 18, 19], mask=(1 << (2*prog)) - 1)
    stamp(A, o, 2)
    if o.get("stamp"): A("s_sub_u32 s84, 0x200000, s59")
    A(f"s_mov_b32 s57, {prog-4}\ns_mov_b32 s63, {prog-6}")
    A("L_l_s1seen:\ns_barrier"); A.c("(b3)")
    def chk1():
        A("s_cmp_lg_u32 s53, s57\ns_cbranch_scc1 L_l_nochk1")
        poll(A, "L_l_p1b", pl, [16, 17, 18, 19], pre=16)
        A.c("every workgroup has read the generation word by now: advance it")
        A("s_cmp_lg_u32 s2, 0\ns_cbranch_scc1 L_l_nochk1")
        A(f"v_mov_b32 v16, s{sTAG}\nv_mov_b32 v17, 0\ns_mov_b64 exec, 1\nbuffer_store_dword v16, v17, s[{rF}:{rF+3}], 0 offen offset:{GEN_OFF} sc1\ns_mov_b64 exec, -1")
        A("L_l_nochk1:")
    def iss1(): A(f"s_cmp_lg_u32 s53, s63\ns_cbranch_scc1 L_l_noiss1\n{pl}\nL_l_noiss1:")
    def aft1(): A(f"s_cmp_lg_u32 s53, s55\ns_cbranch_scc1 L_l_nolate1\nbuffer_load_dword v31, v25, s[{rH}:{rH+3}], s51 offen\nL_l_nolate1:")
    ld_main(A, o, True, chk1, iss1, aft1 if g1k else None)
    A.c("tail of GEMM1: the freed slots take the first weight stages of GEMM2")
    ld_waddr(A, o, False)
    for z, c in enumerate((16, 12, 8, None)):
        if c is not None: A(f"s_waitcnt vmcnt({c})")
        A("s_barrier")
        issue_w(A, o, False, f"s_add_u32 m0, s52, {z*32768}")
    if o.get("b4early"): A("s_barrier")
    A("L_l_g2:")
    ld_haddr(A, False)
    A.c("lines of the final hand-over (own output rows, ready word) and this wave's share of the late w2 rows")
    srd(A, rS, sOUT, 0, S*D*2)
    A(f"s_lshl_b32 s58, s{sST}, 7\ns_lshr_b32 s59, s62, 1\ns_lshl_b32 s59, s59, 6\ns_add_u32 s58, s58, s59\ns_lshl_b32 s59, s{sHK}, 5\ns_add_u32 s58, s58, s59\ns_lshl_b32 s58, s58, 11")
    A(f"s_lshl_b32 s59, s{sDT2}, 8\ns_add_u32 s58, s58, s59\ns_and_b32 s59, s62, 1\ns_lshl_b32 s59, s59, 7\ns_add_u32 s58, s58, s59\nv_lshl_add_u32 v23, v2, 11, s58")
    A(f"s_lshl_b32 s58, s2, 10\ns_lshl_b32 s59, s62, 8\ns_add_u32 s58, s58, s59\ns_add_u32 s58, s58, {S3_OFF}\nv_mov_b32 v24, s58")
    if o.get("fastpf", 0):
        assert upw == 6 and half
        A.c("(the 8 workgroups per die whose weight lines get fewer L1 miss slots carry none of it)")
        A(f"s_and_b32 s48, s{sN}, 7\ns_cmp_gt_u32 s48, 3\ns_cselect_b32 s49, 2, 0\ns_sub_u32 s48, s48, s49\ns_lshr_b32 s49, s{sN}, 3\ns_mul_i32 s49, s49, 6\ns_add_u32 s48, s48, s49")
        A(f"s_mul_i32 s55, s48, 11\ns_lshr_b32 s55, s55, 4\ns_add_u32 s55, s55, {o.get('in0', 2)}\ns_and_b32 s49, s{sST}, 3\ns_cmp_eq_u32 s49, 1\ns_cselect_b32 s55, 0xff, s55")
        A("s_lshl_b32 s48, s48, 5\ns_lshl_b32 s49, s62, 3\ns_add_u32 s49, s49, s48")
        w2unit(A, 29, 49, 64*(28 - 4*upw) + 32, 8, True)
    else:
        A(f"s_mul_i32 s48, s{sN}, {4*upw}\ns_mul_i32 s49, s62, {upw}\ns_add_u32 s49, s49, s48")
        if half: w2unit(A, 29, 49, 64*(28 - 4*upw) + 32, upw, True)
        else: w2unit(A, 29, 49, 1792 - 128*upw, upw, False)
        A(f"s_lshr_b32 s55, s{sN}, 1\ns_add_u32 s55, s55, {o.get('in0', 2)}")
    s2set(A, 56)
    A("v_lshlrev_b32 v13, 7, v2")
    if not o.get("b4early"): A("s_cmp_ge_u32 s2, 224\ns_cbranch_scc1 L_l_nob4\ns_barrier"); A.c("(b4)")
    A("L_l_nob4:")
    if not o.get("early"): stamp(A, o, 4)
    A("s_mov_b32 s57, 0xff\ns_mov_b32 s63, 0xff\ns_cmp_lg_u32 s3, 4\ns_cbranch_scc1 L_l_s2seen")
    p2 = f"buffer_load_dword v16, v13, s[{rF}:{rF+3}], s56 offen sc1" if WL else pl
    r2 = [16] if WL else [16, 17, 18, 19]; m2 = "s[50:51]" if WL else (1 << 14) - 1
    if WL: A("s_mov_b32 s50, -1\ns_mov_b32 s51, 0xffffff")
    poll(A, "L_l_p2", p2, r2, mask=m2)
    if not o.get("early"): stamp(A, o, 5)
    if o.get("stamp"): A("s_sub_u32 s86, 0x200000, s59")
    if half: A("s_mov_b32 s57, 10\ns_mov_b32 s63, 8\ns_add_u32 s56, s56, " + str(8192 if WL else 2048))
    A("L_l_s2seen:\ns_barrier"); A.c("(b5)")
    def chk2():
        A("s_cmp_lg_u32 s53, s57\ns_cbranch_scc1 L_l_nochk2")
        poll(A, "L_l_p2b", p2, r2, pre=16, mask=m2)
        A("L_l_nochk2:")
    def iss2(): A(f"s_cmp_lg_u32 s53, s63\ns_cbranch_scc1 L_l_noiss2\ns_mov_b64 exec, {m2}\n{p2}\ns_mov_b64 exec, -1\nL_l_noiss2:")
    def aft2():
        if half: A(f"s_cmp_eq_u32 s53, 9\ns_cselect_b32 s58, {(14*128 - 32)*P2}, 0\ns_sub_u32 s64, s64, s58\ns_subb_u32 s65, s65, 0")
        A(f"s_cmp_lg_u32 s53, s55\ns_cbranch_scc1 L_l_nolate\nbuffer_load_dword v31, v29, s[{rW}:{rW+3}], 0 offen\nL_l_nolate:")
    ld_main(A, o, False, chk2 if half else None, iss2 if half else None, aft2)
    A(f"s_mov_b32 exec_hi, 0\nbuffer_load_dword v31, v23, s[{rS}:{rS+3}], 0 offen sc1\ns_mov_b64 exec, 1\nbuffer_load_dword v31, v24, s[{rF}:{rF+3}], 0 offen sc1\ns_mov_b64 exec, -1")
    A("s_waitcnt vmcnt(10)\ns_barrier\ns_waitcnt vmcnt(2)\ns_barrier\ns_barrier")
    if o.get("stamp"):
        A(f"s_cmp_lg_u32 s3, {o.get('stw', 4)}\ns_cbranch_scc1 L_end")
        stamp_flush(A, o, range(1, 9), 2)
    A("s_endpgm")
    A("L_l_spare:")
    A.c("==== the 32 workgroups without a GEMM1 tile pull the weights from HBM ahead of their use")
    if lb: A("s_waitcnt lgkmcnt(0)\ns_barrier")
    if not ln2: touch_flags(A, False)
    ld_waddr(A, o, False)
    if not ln2:
        A("s_waitcnt lgkmcnt(0)")
        make_tag(A)
    A("s_barrier" if lb or ln2 else "s_barrier\ns_barrier"); A.c("(b2)")
    A("s_cmp_lg_u32 s3, 4\ns_cbranch_scc1 L_l_spw")
    A("s_sub_u32 s48, s2, 224\nv_and_b32 v14, 31, v2\nv_lshlrev_b32 v14, 7, v14\nv_lshrrev_b32 v7, 5, v2\nv_mul_u32_u24 v7, 1792, v7\nv_add_u32 v7, s48, v7\nv_lshl_add_u32 v14, v7, 12, v14")
    def sp_w2(lab, r0_, r1_, st):
        if r0_ < r1_: A(f"s_mov_b32 s48, {r0_*P2}\n{lab}:\nbuffer_load_dword v31, v14, s[{rW}:{rW+3}], s48 offen\ns_add_u32 s48, s48, {st*P2}\ns_cmp_lt_u32 s48, {r1_*P2}\ns_cbranch_scc1 {lab}")
    if half:
        if not o.get("sp0late", 0): sp_w2("L_l_sp0", 0, 512, 64)
    else: sp_w2("L_l_sp0", 0, 256, 32)
    X = o.get("dupx", S); late0 = o.get("sp0late", 0)
    if X < S: X = 192*nr + (X - 192*nr) // 24 * 24
    A(f"s_add_u32 s48, s{sN}, {32*nr - 28}\ns_mul_i32 s48, s48, {6*P1}\nL_l_sp1:\nbuffer_load_dword v31, v25, s[{rH}:{rH+3}], s48 offen\ns_add_u32 s48, s48, {24*P1}\ns_cmp_lt_u32 s48, {min(X, 6*G0)*P1}\ns_cbranch_scc1 L_l_sp1")
    if late0: sp_w2("L_l_sp0", 0, 512, 64)
    if X < S:
        A(f"v_mul_u32_u24 v13, 4682, v2\nv_lshrrev_b32 v13, 16, v13\nv_mul_u32_u24 v15, 14, v13\nv_sub_u32 v15, v2, v15\nv_cmp_gt_u32 vcc, 4, v13")
        A(f"s_and_b32 s58, s{sXCD}, 3\ns_mul_i32 s58, s58, 14\ns_lshr_b32 s59, s{sXCD}, 2\nv_add_u32 v15, s58, v15\nv_lshl_add_u32 v13, v13, 1, s59\nv_mul_u32_u24 v13, {P1}, v13\nv_lshl_add_u32 v13, v15, 7, v13\nv_mov_b32 v15, {OOB}\nv_cndmask_b32 v13, v15, v13, vcc")
        A(f"s_sub_u32 s48, s{sN}, 28\ns_lshl_b32 s48, s48, 3\ns_add_u32 s48, s48, {X}\ns_mul_i32 s48, s48, {P1}\nL_l_sp1b:\nbuffer_load_dword v31, v13, s[{rH}:{rH+3}], s48 offen\ns_add_u32 s48, s48, {32*P1}\ns_cmp_lt_u32 s48, {S*P1}\ns_cbranch_scc1 L_l_sp1b")
    for z in range(R): issue_w(A, o, False, f"s_add_u32 m0, s52, {z*32768}")
    A(f"s_sub_u32 s48, s{sN}, 28\ns_lshl_b32 s48, s48, 3")
    w2unit(A, 14, 48, 0, 8, False)
    if half:
        sp_w2("L_l_sp2", 512, 1792, 64); sp_w2("L_l_sp3", 32, 64*(28 - 4*upw) + 32, 64)
    else: sp_w2("L_l_sp2", 256, 1792 - 128*upw, 32)
    if o.get("stamp") and o.get("spst"):
        A("s_waitcnt vmcnt(0)"); stamp(A, o, 0); stamp_flush(A, o, [0], 1); A("s_mov_b64 exec, -1")
    A("s_branch L_l_g2")
    A("L_l_spw:")
    for z in range(R): issue_w(A, o, False, f"s_add_u32 m0, s52, {z*32768}")
    A("s_branch L_l_g2")

HEAD = open(__file__.replace("gen3.py", "head.txt")).read()
DOC = """; One launch, 256 workgroups (one per CU) of 8 waves: waves 0-3 do LayerNorm / MFMA / epilogues, waves 4-7 load.
; Hand-offs between workgroups use write-through stores and words tagged per launch (generation word in d_ws)."""
def build(o):
    global WL, HF
    HF = o.get('hf', 'sc1')
    WL = o.get('wl', 0)
    A = Asm()
    A.L.append(HEAD.rstrip("\n")); A.L.append(DOC)
    if o.get("tail_e"):
        A(f"; @launch kernel={NAME} grid=(256,1,1) block=(512,1,1) lds={LDS_LN + 256}")
        A("; @launch kernel=empty_kernel grid=(256,1,1) block=(64,1,1) lds=0")
    else: A(f"; @launch grid=(256,1,1) block=(512,1,1) lds={LDS_LN + 256}")
    A('.amdgcn_target "amdgcn-amd-amdhsa--gfx950"\n.text')
    A(f".globl {NAME}\n.p2align 8\n.type {NAME},@function\n{NAME}:")
    A("s_cmp_ge_u32 s2, 256\ns_cbranch_scc1 L_end")
    stamp(A, o, 0)
    A("s_load_dwordx16 s[4:19], s[0:1], 0")
    A("v_readfirstlane_b32 s3, v0\ns_nop 0\ns_lshr_b32 s3, s3, 6\ns_cmp_ge_u32 s3, 4\ns_cbranch_scc1 L_loader")
    (gen_ln2 if o.get('ln2', 2) else gen_ln)(A, o)
    A("s_cmp_ge_u32 s2, 224\ns_cbranch_scc1 L_c_g2")
    cons_prologue(A, o, True)
    cons_loop(A, o)
    cons_epi1(A, o)
    A("L_c_g2:\ns_waitcnt vmcnt(0)\ns_barrier"); A.c("(b5)")
    A("L_c_g2p:")
    cons_prologue(A, o, False)
    A("s_branch L_c_main")
    cons_epi2(A, o)
    gen_loader(A, o)
    A("L_end:\ns_endpgm")
    def desc(name, v):
        A(f".p2align 6\n.amdhsa_kernel {name}\n  .amdhsa_next_free_vgpr {v}\n  .amdhsa_next_free_sgpr 102\n  .amdhsa_accum_offset {v}\n"
          "  .amdhsa_group_segment_fixed_size 0\n  .amdhsa_kernarg_size 64\n  .amdhsa_user_sgpr_count 2\n"
          "  .amdhsa_user_sgpr_kernarg_segment_ptr 1\n  .amdhsa_system_sgpr_workgroup_id_x 1\n.end_amdhsa_kernel")
    if o.get("tail_e"):
        A(".globl empty_kernel\n.p2align 8\n.type empty_kernel,@function\nempty_kernel:")
        A("s_cmp_ge_u32 s2, 256\ns_cbranch_scc1 L_em_end\ns_memrealtime s[70:71]\ns_load_dwordx2 s[18:19], s[0:1], 56")
        stamp_flush(A, o, [0], 3)
        A("L_em_end:\ns_endpgm")
    A('.section .rodata,"a"')
    desc(NAME, 196)
    if o.get("tail_e"): desc("empty_kernel", 32)
    return A.text()

if __name__ == "__main__":
    o = {}
    for kv in sys.argv[2:]:
        k, v = kv.split("=", 1)
        o[k] = int(v) if v.lstrip("-").isdigit() else v
    open(sys.argv[1], "w").write(build(o))
```

```python
import sys, struct, math
S, D, F = 2048, 1024, 3584
NAME = "standalone__mixer_token_mlp__prompt_kernel"
WS_H, WS_U, WS_FLG, WS_STAMP = 0, 6 << 20, 20 << 20, 24 << 20
HSTR, USTR = 64*8192 + 8192, 112*8192 + 8192
H_BYTES, U_BYTES = 8*HSTR, 8*USTR
GEN_OFF, S1_OFF, S2_OFF, S3_OFF = 0, 65536, 131072, 393216
FLG_BYTES = S3_OFF + 256*1024
R = 4
LDS_LN = R*32768
N1, N2 = 32, 28
P1, P2 = F*2, S*2
GC0 = -2.0*math.sqrt(2.0/math.pi)*math.log2(math.e); GC1 = GC0*0.044715
GS = (-GC1) ** (1.0/3.0); GK = -GC0/GS
OOB = 0x7fffffff

def f32(x): return "0x%08x" % struct.unpack("<I", struct.pack("<f", x))[0]
class Asm:
    def __init__(self): self.L = []
    def __call__(self, s):
        for l in s.split("\n"):
            l = l.strip()
            if l: self.L.append(l if (l.endswith(":") or l.startswith(".") or l.startswith(";")) else "    " + l)
    def c(self, s): self.L.append("    ; " + s)
    def text(self): return "\n".join(self.L) + "\n"

sX, sW1, sB1, sW2, sB2, sOUT, sDBG, sWS = 4, 6, 8, 10, 12, 14, 16, 18
sTAG, sXCD, sN, sFT, sDT1, sST, sDT2, sHK = 20, 21, 22, 23, 24, 25, 26, 27
rW, rH, rF, rM, rS = 28, 32, 36, 40, 44
sPH, sN7 = 68, 69
ACC, WB, HB = 32, 96, (128, 160)
VWA, VHA = 8, 16

def srd(A, r, base, off, nbytes):
    if off: A(f"s_add_u32 s{r}, s{base}, {off}\ns_addc_u32 s{r+1}, s{base+1}, 0")
    else: A(f"s_mov_b32 s{r}, s{base}\ns_mov_b32 s{r+1}, s{base+1}")
    A(f"s_mov_b32 s{r+2}, {nbytes}\ns_mov_b32 s{r+3}, 0x20000")
def stamp(A, o, i, cyc=None):
    if o.get("stamp"):
        A(f"s_memrealtime s[{70+2*i}:{71+2*i}]")
        if cyc is not None: A(f"s_memtime s[{94+2*cyc}:{95+2*cyc}]")
def stamp_flush(A, o, lst, slot=0):
    A("s_waitcnt lgkmcnt(0)")
    A(f"s_add_u32 s92, s{sWS}, {WS_STAMP + slot*16384}\ns_addc_u32 s93, s{sWS+1}, 0\nv_mov_b32 v28, s2\nv_lshlrev_b32 v28, 6, v28\ns_mov_b64 exec, 1")
    for i in lst: A(f"v_mov_b32 v1, s{70+2*i}\nglobal_store_dword v28, v1, s[92:93] offset:{4*i}")

def poll(A, label, load, regs, mask=None, pre=None):
    A("s_mov_b32 s59, 0x200000")
    if mask is not None: A(f"s_mov_b64 exec, {mask}")
    if pre is not None: A(f"s_waitcnt vmcnt({pre})\ns_branch {label}_c")
    A(f"{label}:\n{load}\ns_sub_u32 s59, s59, 1\ns_cbranch_scc1 {label}_x\ns_waitcnt vmcnt(0)\n{label}_c:")
    A(f"v_cmp_ne_u32 vcc, s{sTAG}, v{regs[0]}")
    for r_ in regs[1:]: A(f"v_cmp_ne_u32 s[60:61], s{sTAG}, v{r_}\ns_or_b64 vcc, vcc, s[60:61]")
    A(f"s_cmp_lg_u64 vcc, 0\ns_cbranch_scc1 {label}\n{label}_x:")
    if mask is not None: A("s_mov_b64 exec, -1")

def common_setup(A):
    A.c("hand-off area, generation word, tile coordinates (id%8 groups share a die under round-robin placement: speed only)")
    A(f"s_add_u32 s{rF}, s{sWS}, {WS_FLG}\ns_addc_u32 s{rF+1}, s{sWS+1}, 0\ns_mov_b32 s{rF+2}, {FLG_BYTES}\ns_mov_b32 s{rF+3}, 0x20000")
    A(f"s_load_dword s{sTAG}, s[{rF}:{rF+1}], {GEN_OFF}")
    A(f"s_and_b32 s{sXCD}, s2, 7\ns_lshr_b32 s{sN}, s2, 3")
    A(f"s_mul_i32 s66, s{sN}, 37\ns_lshr_b32 s66, s66, 8\ns_mul_i32 s67, s66, 7\ns_sub_u32 s{sN7}, s{sN}, s67")
    A(f"s_and_b32 s67, s{sXCD}, 3\ns_mul_i32 s{sFT}, s67, 7\ns_add_u32 s{sFT}, s{sFT}, s{sN7}")
    A(f"s_and_b32 s{sDT2}, s{sXCD}, 4\ns_add_u32 s{sDT1}, s{sDT2}, s66")
    A(f"s_and_b32 s{sHK}, s{sN}, 1\ns_lshl_b32 s{sST}, s67, 2\ns_bfe_u32 s66, s{sN}, 0x20001\ns_add_u32 s{sST}, s{sST}, s66")
    A(f"s_lshr_b32 s66, s{sN}, 3\ns_add_u32 s{sDT2}, s{sDT2}, s66")
def make_tag(A):
    A.c("tag of this launch's hand-off words = next value after the generation word found on entry")
    A(f"s_mul_i32 s{sTAG}, s{sTAG}, 0x9e3779b1\ns_add_u32 s{sTAG}, s{sTAG}, 0x7f4a7c15")

ROWOFF = [(16*(j//4) + j % 4) * 2048 for j in range(8)]
def ln_rowbase(A):
    A("s_lshr_b32 s48, s2, 2\ns_and_b32 s49, s2, 3")
    A("s_lshl_b32 s50, s48, 5\ns_lshl_b32 s51, s49, 2\ns_add_u32 s50, s50, s51\ns_lshl_b32 s50, s50, 11")
def gen_ln2(A, o):
    A.c("==== LayerNorm of 8 rows: s = 32*kb + 16*(j/4) + 4*g + j%4; here thread = 4 channels, the row statistics come from waves 4..7")
    ln_rowbase(A)
    via = o.get("ln2", 2) == 2
    A("v_lshlrev_b32 v1, 3, v0")
    if not via:
        for j in range(8): A(f"s_add_u32 s{52+j}, s50, {ROWOFF[j]}")
    A("s_waitcnt lgkmcnt(0)")
    if o.get("early"): stamp(A, o, 5)
    if not via:
        srd(A, rM, sX, 0, S*D*2)
        for j in range(8): A(f"buffer_load_dwordx2 v[{2+2*j}:{3+2*j}], v1, s[{rM}:{rM+3}], s{52+j} offen")
    common_setup(A)
    bm = o.get("bm", 3 if o.get("stamp") else 4)
    A.c("bias addresses (4 values per lane and 16-column block)")
    if bm < 4:
        srd(A, rM, sB2, 0, S*2)
        srd(A, rW, sB1, 0, F*2)
    A("s_lshr_b32 s63, s3, 1\ns_lshl_b32 s63, s63, 7\nv_bfe_u32 v19, v0, 4, 2\nv_lshlrev_b32 v19, 3, v19")
    A(f"s_lshl_b32 s61, s{sST}, 8\ns_add_u32 s61, s61, s63\ns_lshl_b32 s62, s{sHK}, 6\ns_add_u32 s61, s61, s62")
    A(f"s_lshl_b32 s68, s{sFT}, 8\ns_add_u32 s68, s68, s63")
    def bias2():
        for fb in range(2): A(f"buffer_load_dwordx2 v[{192+2*fb}:{193+2*fb}], v19, s[{rM}:{rM+3}], s61 offen offset:{fb*32}")
    def bias1():
        for fb in range(4): A(f"buffer_load_dwordx2 v[{104+2*fb}:{105+2*fb}], v19, s[{rW}:{rW+3}], s68 offen offset:{fb*32}")
    if bm < 2: bias2()
    if bm == 0: bias1()
    if bm == 4:
        assert not o.get("stamp")
        A.c("biases through the scalar path; lane group g picks its two dwords of every 16-column block")
        A(f"s_min_u32 s68, s68, {F*2 - 128}\ns_add_u32 s50, s{sB1}, s68\ns_addc_u32 s51, s{sB1+1}, 0\ns_add_u32 s60, s{sB2}, s61\ns_addc_u32 s61, s{sB2+1}, 0")
        A("s_load_dwordx16 s[72:87], s[50:51], 0\ns_load_dwordx8 s[88:95], s[50:51], 64\ns_load_dwordx8 s[28:35], s[50:51], 96")
        A("s_load_dwordx8 s[52:59], s[60:61], 0\ns_load_dwordx4 s[96:99], s[60:61], 32\ns_load_dwordx4 s[40:43], s[60:61], 48")
    srd(A, rS, sWS, WS_H, H_BYTES)
    A(f"v_lshrrev_b32 v62, 5, v0\nv_mul_u32_u24 v62, {HSTR}, v62")
    A("v_bfe_u32 v63, v0, 4, 1\nv_lshlrev_b32 v63, 12, v63\nv_add_u32 v62, v62, v63")
    A("v_and_b32 v63, 15, v0\nv_lshlrev_b32 v63, 4, v63\nv_add_u32 v62, v62, v63")
    A("s_lshl_b32 s48, s48, 13\ns_lshl_b32 s49, s49, 8\ns_add_u32 s48, s48, s49")
    A(f"v_mov_b32 v64, {LDS_LN}")
    A("s_waitcnt lgkmcnt(0)")
    make_tag(A)
    if bm == 4:
        src = list(range(72, 96)) + list(range(28, 36)) + list(range(52, 60)) + list(range(96, 100)) + list(range(40, 44))
        for g in range(4):
            if g: A(f"s_mov_b32 exec_lo, {0xffff0000 if g == 1 else 0}\ns_mov_b32 exec_hi, {-1 if g < 3 else 0xffff0000}")
            for blk in range(6):
                for h in range(2): A(f"v_mov_b32 v{(104 + 2*blk if blk < 4 else 192 + 2*(blk-4)) + h}, s{src[8*blk + 2*g + h]}")
        A("s_mov_b64 exec, -1")
    if o.get("early"): stamp(A, o, 6)
    def unpack(j):
        for c in range(4):
            src = 2 + 2*j + c//2; d = 70 + 4*j + c
            A(f"v_lshlrev_b32 v{d}, 16, v{src}" if c % 2 == 0 else f"v_and_b32 v{d}, 0xffff0000, v{src}")
    if not via:
        for j in range(8):
            A(f"s_waitcnt vmcnt({9-j})")
            if o.get("early") and j == 0: stamp(A, o, 9)
            unpack(j)
    stamp(A, o, 1)
    if o.get("early"): stamp(A, o, 7)
    A("s_barrier"); A.c("(b1) scale / shift of the 8 rows are in LDS")
    if o.get("early"): stamp(A, o, 8)
    if via:
        for j in range(8): A(f"ds_read_b64 v[{2+2*j}:{3+2*j}], v1 offset:{16384 + 2048*j}")
    for q in range(4): A(f"ds_read_b128 v[{20+4*q}:{23+4*q}], v64 offset:{16*q}")
    if via:
        for j in range(8):
            A(f"s_waitcnt lgkmcnt({11-j})"); unpack(j)
    A.c("h leaves in MFMA operand order: [d-tile][kb][16-channel block][lane][8 tokens], written through")
    for tp in range(2):
        for j in range(8):
            if tp == 0 and j % 2 == 0: A(f"s_waitcnt lgkmcnt({3 - j//2})")
            d = 70 + 4*j + 2*tp
            A(f"v_pk_fma_f32 v[{d}:{d+1}], v[{d}:{d+1}], v[{20+2*j}:{21+2*j}], v[{20+2*j}:{21+2*j}] op_sel:[0,0,1] op_sel_hi:[1,0,1]")
        for t in (2*tp, 2*tp + 1):
            for jj in range(4): A(f"v_cvt_pk_bf16_f32 v{44+4*t+jj}, v{70+4*(2*jj)+t}, v{70+4*(2*jj+1)+t}")
            A(f"buffer_store_dwordx4 v[{44+4*t}:{47+4*t}], v62, s[{rS}:{rS+3}], s48 offen offset:{t*1024} sc1")
    if o.get("early"): stamp(A, o, 4)
    if bm == 2: bias1(); bias2()
    gen_ln_tail(A, o, 6 if bm == 2 else 0)
    if bm == 3: bias1(); bias2()
    if bm == 1: bias1()
def ln_stat_issue(A):
    for q in range(4): A(f"buffer_load_dwordx4 v[{32+4*q}:{35+4*q}], v1, s[{rM}:{rM+3}], s50 offen offset:{1024*q}")
def ln_stat_loads(A, issue=True):
    A.c("row-wise copy of this wave's two LayerNorm rows")
    ln_rowbase(A)
    A("s_lshr_b32 s48, s62, 1\ns_lshl_b32 s48, s48, 15\ns_and_b32 s49, s62, 1\ns_lshl_b32 s49, s49, 12\ns_add_u32 s50, s50, s48\ns_add_u32 s50, s50, s49\nv_lshlrev_b32 v1, 4, v2")
    A("s_waitcnt lgkmcnt(0)")
    srd(A, rM, sX, 0, S*D*2)
    if issue: ln_stat_issue(A)
    A("v_add_u32 v76, s52, v1")
def ln_stats(A, younger, via=False):
    A.c("mean / variance of two rows (sums taken on x - first element of the row)")
    pr = lambda r_: f"v[{r_}:{r_+1}]"
    for r_ in range(2):
        A(f"s_waitcnt vmcnt({younger + 2*(1 - r_)})")
        b = 32 + 8*r_; s1 = 64 + 4*r_; s2 = 66 + 4*r_; pv = 72 + 2*r_
        if via: A(f"ds_write_b128 v76, v[{b}:{b+3}] offset:{16384 + 2048*r_}\nds_write_b128 v76, v[{b+4}:{b+7}] offset:{16384 + 2048*r_ + 1024}")
        A(f"v_readfirstlane_b32 s{58+r_}, v{b}\ns_nop 0\ns_lshl_b32 s{58+r_}, s{58+r_}, 16\nv_mov_b32 v{pv}, s{58+r_}\nv_mov_b32 v{pv+1}, s{58+r_}")
        for q in range(8):
            A(f"v_lshlrev_b32 v{48+2*q}, 16, v{b+q}\nv_and_b32 v{49+2*q}, 0xffff0000, v{b+q}")
        for q in range(8): A(f"v_pk_add_f32 {pr(48+2*q)}, {pr(48+2*q)}, {pr(pv)} neg_lo:[0,1] neg_hi:[0,1]")
        A(f"v_pk_add_f32 {pr(s1)}, {pr(48)}, {pr(50)}\nv_pk_mul_f32 {pr(s2)}, {pr(48)}, {pr(48)}\nv_pk_fma_f32 {pr(s2)}, {pr(50)}, {pr(50)}, {pr(s2)}")
        for q in range(2, 8): A(f"v_pk_add_f32 {pr(s1)}, {pr(s1)}, {pr(48+2*q)}\nv_pk_fma_f32 {pr(s2)}, {pr(48+2*q)}, {pr(48+2*q)}, {pr(s2)}")
        A(f"v_add_f32 v{s1}, v{s1}, v{s1+1}\nv_add_f32 v{s2}, v{s2}, v{s2+1}")
    A("v_cmp_gt_u32 vcc, 32, v2\ns_nop 0")
    A("v_permlane32_swap_b32 v64, v68\nv_permlane32_swap_b32 v66, v70\nv_cndmask_b32 v72, v74, v72, vcc")
    A("v_add_f32 v64, v64, v68\nv_add_f32 v66, v66, v70\nv_mov_b32 v65, v64\nv_mov_b32 v67, v66\ns_nop 1")
    A("v_permlane16_swap_b32 v64, v65\nv_permlane16_swap_b32 v66, v67\nv_add_f32 v64, v64, v65\nv_add_f32 v66, v66, v67")
    for sh in (8, 4, 2, 1):
        A("s_nop 0" if sh != 8 else "s_nop 0")
        A(f"v_add_f32_dpp v64, v64, v64 row_ror:{sh} row_mask:0xf bank_mask:0xf\nv_add_f32_dpp v66, v66, v66 row_ror:{sh} row_mask:0xf bank_mask:0xf")
    A.c("a = gs / sqrt(var + eps), b = -mean * a  (gs: constant folded out again in the GELU)")
    A(f"v_mul_f32 v64, {f32(1.0/D)}, v64\nv_mul_f32 v66, {f32(1.0/D)}, v66\nv_fma_f32 v66, -v64, v64, v66\nv_max_f32 v66, 0, v66\nv_add_f32 v66, {f32(1e-5)}, v66")
    A(f"v_rsq_f32 v66, v66\nv_add_f32 v64, v64, v72\nv_mul_f32 v66, {f32(GS)}, v66\nv_mul_f32 v67, v64, v66\nv_sub_f32 v67, 0, v67")
    A(f"v_lshrrev_b32 v65, 5, v2\nv_lshlrev_b32 v65, 3, v65\ns_lshl_b32 s58, s62, 4\ns_add_u32 s58, s58, {LDS_LN}\nv_add_u32 v65, s58, v65")
    A("ds_write_b64 v65, v[66:67]\ns_waitcnt lgkmcnt(0)")
def gen_ln(A, o):
    A.c("==== LayerNorm of 8 rows: s = 32*kb + 16*(j/4) + 4*g + j%4, thread = 4 channels")
    A("s_lshr_b32 s48, s2, 2\ns_and_b32 s49, s2, 3")
    A("s_lshl_b32 s50, s48, 5\ns_lshl_b32 s51, s49, 2\ns_add_u32 s50, s50, s51\ns_lshl_b32 s50, s50, 11")
    A("v_lshlrev_b32 v1, 3, v0")
    rowoff = [(16*(j//4) + j % 4) * 2048 for j in range(8)]
    for j in range(8): A(f"s_add_u32 s{52+j}, s50, {rowoff[j]}")
    A("s_waitcnt lgkmcnt(0)")
    if o.get("early"): stamp(A, o, 5)
    srd(A, rM, sX, 0, S*D*2)
    for j in range(8): A(f"buffer_load_dwordx2 v[{2+2*j}:{3+2*j}], v1, s[{rM}:{rM+3}], s{52+j} offen")
    if not o.get("pivearly", 1): A("s_barrier")
    A(f"s_add_u32 s50, s{sX}, s50\ns_addc_u32 s51, s{sX+1}, 0")
    A.c("pivot of each row (its first element): sums are taken on x - pivot")
    for j in range(8): A(f"s_load_dword s{52+j}, s[50:51], {rowoff[j]}")
    common_setup(A)
    if o.get("pivearly", 1): A("s_barrier"); A.c("(b0) the x loads are queued ahead of any weight traffic of this CU")
    A.c("both biases (4 values per lane and 16-column block)")
    srd(A, rM, sB2, 0, S*2)
    A("s_lshr_b32 s63, s3, 1\ns_lshl_b32 s63, s63, 7\nv_bfe_u32 v19, v0, 4, 2\nv_lshlrev_b32 v19, 3, v19")
    A(f"s_lshl_b32 s61, s{sST}, 8\ns_add_u32 s61, s61, s63\ns_lshl_b32 s62, s{sHK}, 6\ns_add_u32 s61, s61, s62")
    for fb in range(2): A(f"buffer_load_dwordx2 v[{192+2*fb}:{193+2*fb}], v19, s[{rM}:{rM+3}], s61 offen offset:{fb*32}")
    srd(A, rM, sB1, 0, F*2)
    A(f"s_lshl_b32 s61, s{sFT}, 8\ns_add_u32 s61, s61, s63")
    bl = o.get("biaslate", 0)
    if bl: A("s_mov_b32 s68, s61")
    else:
        for fb in range(4): A(f"buffer_load_dwordx2 v[{104+2*fb}:{105+2*fb}], v19, s[{rM}:{rM+3}], s61 offen offset:{fb*32}")
    srd(A, rS, sWS, WS_H, H_BYTES)
    A(f"v_lshrrev_b32 v62, 5, v0\nv_mul_u32_u24 v62, {HSTR}, v62")
    A("v_bfe_u32 v63, v0, 4, 1\nv_lshlrev_b32 v63, 12, v63\nv_add_u32 v62, v62, v63")
    A("v_and_b32 v63, 15, v0\nv_lshlrev_b32 v63, 4, v63\nv_add_u32 v62, v62, v63")
    A("s_lshl_b32 s48, s48, 13\ns_lshl_b32 s49, s49, 8\ns_add_u32 s48, s48, s49")
    A(f"v_lshrrev_b32 v64, 4, v0\nv_lshlrev_b32 v64, 4, v64\nv_add_u32 v64, {LDS_LN}, v64")
    A(f"v_and_b32 v65, 3, v0\nv_lshlrev_b32 v65, 4, v65\nv_bfe_u32 v66, v0, 2, 1\nv_lshlrev_b32 v66, 2, v66\nv_add_u32 v65, v65, v66\nv_add_u32 v65, {LDS_LN}, v65")
    A("s_waitcnt lgkmcnt(0)")
    make_tag(A)
    if o.get("early"): stamp(A, o, 6)
    for j in range(8): A(f"s_lshl_b32 s{52+j}, s{52+j}, 16")
    for j in range(8):
        A(f"s_waitcnt vmcnt({(9 if bl else 13)-j})")
        if o.get("early") and j == 0: stamp(A, o, 9)
        for c in range(4):
            src = 2 + 2*j + c//2; d = 70 + 4*j + c
            A(f"v_lshlrev_b32 v{d}, 16, v{src}" if c % 2 == 0 else f"v_and_b32 v{d}, 0xffff0000, v{src}")
        for c in range(4): A(f"v_subrev_f32 v{70+4*j+c}, s{52+j}, v{70+4*j+c}")
        b = 70 + 4*j
        A(f"v_add_f32 v{20+j}, v{b}, v{b+1}\nv_mul_f32 v{28+j}, v{b}, v{b}")
        A(f"v_add_f32 v{20+j}, v{20+j}, v{b+2}\nv_fmac_f32 v{28+j}, v{b+1}, v{b+1}")
        A(f"v_add_f32 v{20+j}, v{20+j}, v{b+3}\nv_fmac_f32 v{28+j}, v{b+2}, v{b+2}\nv_fmac_f32 v{28+j}, v{b+3}, v{b+3}")
    stamp(A, o, 1)
    A.c("16 partial sums -> wave totals (half/row swaps, then rotations inside 16 lanes)")
    A("s_nop 1")
    for p in range(8): A(f"v_permlane32_swap_b32 v{20+2*p}, v{21+2*p}")
    for p in range(8): A(f"v_add_f32 v{20+2*p}, v{20+2*p}, v{21+2*p}")
    A("s_nop 1")
    for q in range(4): A(f"v_permlane16_swap_b32 v{20+4*q}, v{22+4*q}")
    for q in range(4): A(f"v_add_f32 v{40+q}, v{20+4*q}, v{22+4*q}")
    for sh in (8, 4, 2, 1):
        A("s_nop 1")
        for q in range(4): A(f"v_add_f32_dpp v{40+q}, v{40+q}, v{40+q} row_ror:{sh} row_mask:0xf bank_mask:0xf")
    A("ds_write_b128 v64, v[40:43]")
    A("s_waitcnt lgkmcnt(0)")
    if o.get("early"): stamp(A, o, 7)
    A("s_barrier"); A.c("(b1)")
    if o.get("early"): stamp(A, o, 8)
    for w in range(4): A(f"ds_read2_b32 v[{44+2*w}:{45+2*w}], v65 offset0:{16*w} offset1:{16*w+2}")
    A("s_waitcnt lgkmcnt(0)")
    A("v_add_f32 v44, v44, v46\nv_add_f32 v45, v45, v47\nv_add_f32 v48, v48, v50\nv_add_f32 v49, v49, v51\nv_add_f32 v44, v44, v48\nv_add_f32 v45, v45, v49")
    A(f"v_mul_f32 v44, {f32(1.0/D)}, v44\nv_mul_f32 v45, {f32(1.0/D)}, v45")
    A("v_fma_f32 v45, -v44, v44, v45\nv_max_f32 v45, 0, v45")
    A.c("a = gs / sqrt(var + eps), b = -mean * a  (gs: constant folded out again in the GELU)")
    A(f"v_add_f32 v45, {f32(1e-5)}, v45\nv_rsq_f32 v45, v45\ns_nop 0\nv_mul_f32 v45, {f32(GS)}, v45\nv_mul_f32 v44, v44, v45\nv_sub_f32 v44, 0, v44")
    A("s_nop 1")
    gmap = [0, 2, 1, 3]
    for e in range(8):
        j = gmap[e % 4] + 4*(e // 4)
        A(f"v_readlane_b32 s{52+j}, v45, {e}\nv_readlane_b32 s{60+j}, v44, {e}")
    A("s_nop 1")
    for j in range(8): A(f"v_mov_b32 v{20+j}, s{60+j}")
    A.c("h leaves in MFMA operand order: [d-tile][kb][16-channel block][lane][8 tokens], written through")
    for t in range(4):
        for j in range(8): A(f"v_fma_f32 v{70+4*j+t}, v{70+4*j+t}, s{52+j}, v{20+j}")
        for jj in range(4): A(f"v_cvt_pk_bf16_f32 v{44+4*t+jj}, v{70+4*(2*jj)+t}, v{70+4*(2*jj+1)+t}")
        A(f"buffer_store_dwordx4 v[{44+4*t}:{47+4*t}], v62, s[{rS}:{rS+3}], s48 offen offset:{t*1024} sc1")
    if o.get("early"): stamp(A, o, 4)
    gen_ln_tail(A, o)
def gen_ln_tail(A, o, younger=0):
    A.c("hand-off 1: wave w wrote d-tiles 2w, 2w+1 -> word (wg) of sets (w, replica 0/1)")
    A(f"s_lshr_b32 s48, s2, 3\ns_lshl_b32 s48, s48, 7\ns_and_b32 s49, s2, 7\ns_lshl_b32 s49, s49, 2\ns_add_u32 s48, s48, s49\ns_lshl_b32 s49, s3, 13\ns_add_u32 s48, s48, s49\ns_add_u32 s48, s48, {S1_OFF}")
    A(f"v_and_b32 v2, 63, v0\nv_lshlrev_b32 v3, 12, v2\nv_mov_b32 v4, s{sTAG}")
    if o.get("wsplit", 64): A("s_barrier")
    A(f"s_waitcnt vmcnt({younger})")
    A(f"s_mov_b64 exec, 3\nbuffer_store_dword v4, v3, s[{rF}:{rF+3}], s48 offen sc1\ns_mov_b64 exec, -1")
    stamp(A, o, 2)
    A("s_barrier"); A.c("(b2)")
    A.c("the die this wave runs on (the split-K partner, id ^ 8, picks its store flavour from it)")
    A("s_and_b32 s62, s3, 1\ns_lshr_b32 s63, s3, 1")
    A(f"s_lshl_b32 s54, s2, 10\ns_lshl_b32 s55, s3, 8\ns_add_u32 s54, s54, s55\ns_add_u32 s54, s54, {S3_OFF}\ns_xor_b32 s55, s54, 0x2000")
    A(f"s_getreg_b32 s64, hwreg(HW_REG_XCC_ID, 0, 4)\ns_add_u32 s64, s64, 1\ns_add_u32 s64, s64, s{sTAG}\nv_mov_b32 v6, s64\nv_mov_b32 v7, 128")
    A(f"s_mov_b64 exec, 1\nbuffer_store_dword v6, v7, s[{rF}:{rF+3}], s54 offen sc1\ns_mov_b64 exec, -1")

def rd_w(slot, fb):
    hi = slot >= 2; base = (slot % 2) * 32768
    return [f"ds_read_b64_tr_b16 v[{WB+8*fb+4*ks+2*r_}:{WB+8*fb+4*ks+2*r_+1}], v{VWA+4*hi+fb} offset:{base + ks*8192 + r_*4096}" for ks in range(2) for r_ in range(2)]
def rd_h(slot, hb):
    hi = slot >= 2; base = (slot % 2) * 32768
    return [f"ds_read_b128 v[{hb+16*ks+4*t}:{hb+16*ks+4*t+3}], v{VHA+hi} offset:{base + 16384 + ks*8192 + t*1024}" for t in range(4) for ks in range(2)]
def step(A, slot, o={}):
    hb, hn = HB[slot % 2], HB[1 - slot % 2]
    nx = (slot + 1) % R
    first = rd_w(slot, 1) + rd_w(slot, 2) + rd_w(slot, 3)
    second = rd_w(nx, 0) + rd_h(nx, hn)
    m = 0; flip = 0
    for fb in range(4):
        if fb == 0: A("s_waitcnt lgkmcnt(0)")
        if fb == 1: A(f"s_waitcnt lgkmcnt({8 if o.get('rd2') else 4})")
        if fb == 2: A("s_waitcnt lgkmcnt(0)\ns_barrier")
        for t in (range(4) if fb % 2 == 0 else range(3, -1, -1)):
            a = ACC + 16*fb + 4*t
            for ks in ((1, 0) if flip else (0, 1)):
                w = WB + 8*fb + 4*ks; h = hb + 16*ks + 4*t
                A(f"v_mfma_f32_16x16x32_bf16 v[{a}:{a+3}], v[{w}:{w+3}], v[{h}:{h+3}], v[{a}:{a+3}]")
                if o.get("rd2"):
                    if m < 6: A(first[2*m]); A(first[2*m+1])
                    elif 16 <= m < 22: A(second[2*(m-16)]); A(second[2*(m-16)+1])
                elif m < 12: A(first[m])
                elif 16 <= m < 28: A(second[m-16])
                m += 1
            flip ^= 1

def cons_prologue(A, o, g1):
    half = o.get("half", 1)
    A.c(f"==== GEMM{1 if g1 else 2} set-up: wave = 64 weight columns x 64 channels, accumulators start from the bias")
    A("v_lshrrev_b32 v3, 4, v2\nv_and_b32 v4, 15, v2")
    nb = 4 if g1 else 2
    A.c("LDS read addresses (32-byte column blocks are XOR-swizzled with row%8)")
    A("v_lshrrev_b32 v6, 2, v4\nv_lshl_add_u32 v7, v3, 2, v6")
    A("v_and_b32 v18, 7, v7\nv_lshlrev_b32 v7, 8, v7\nv_and_b32 v19, 3, v4\nv_lshl_add_u32 v7, v19, 3, v7")
    A("s_lshl_b32 s50, s63, 2")
    if not g1: A(f"s_lshl_b32 s51, s{sHK}, 1\ns_xor_b32 s50, s50, s51\ns_xor_b32 s50, s50, 2")
    for fb in range(4):
        A(f"s_xor_b32 s51, s50, {fb}\nv_xor_b32 v19, s51, v18\nv_lshl_add_u32 v{VWA+fb}, v19, 5, v7\nv_add_u32 v{VWA+4+fb}, 0x10000, v{VWA+fb}")
    A(f"s_lshl_b32 s50, s62, 12\nv_lshl_add_u32 v{VHA}, v2, 4, s50\nv_add_u32 v{VHA+1}, 0x10000, v{VHA}")
    if g1 and o.get("bm", 3 if o.get("stamp") else 4) < 4: A("s_waitcnt vmcnt(0)")
    for fb in range(4):
        for r_ in range(4):
            a = ACC + 16*fb + r_
            if fb >= 4 - nb:
                src = (104 if g1 else 192) + 2*(fb - (4 - nb)) + r_//2
                A(f"v_lshlrev_b32 v{a}, 16, v{src}" if r_ % 2 == 0 else f"v_and_b32 v{a}, 0xffff0000, v{src}")
                if g1: A(f"v_mul_f32 v{a}, {f32(GS)}, v{a}")
            else: A(f"v_mov_b32 v{a}, 0")
            for t in range(1, 4): A(f"v_mov_b32 v{a+4*t}, v{a}")
    if g1:
        A.c("u address, GELU constants, hand-off 2 words")
        srd(A, rS, sWS, WS_U, U_BYTES)
        A(f"s_cmp_ge_u32 s{sFT}, 14\ns_cselect_b32 s52, 1, 0\ns_cselect_b32 s53, 14, 0\ns_sub_u32 s53, s{sFT}, s53")
        if half: A(f"s_mul_i32 s48, s52, 56\ns_lshl_b32 s49, s53, 1\ns_add_u32 s48, s48, s49\ns_add_u32 s48, s48, s63")
        else: A(f"s_lshl_b32 s48, s{sFT}, 2\ns_lshl_b32 s49, s63, 1\ns_add_u32 s48, s48, s49")
        A(f"s_lshl_b32 s48, s48, 13\ns_mul_i32 s49, s{sDT1}, {USTR}\ns_add_u32 s48, s48, s49")
        A(f"s_lshl_b32 s49, s62, 12\ns_add_u32 s48, s48, s49\ns_add_u32 s49, s48, {(28 if half else 1)*8192}\nv_lshlrev_b32 v4, 4, v2")
        A(f"v_mov_b32 v22, {f32(GK)}\nv_mov_b32 v23, v22\nv_mov_b32 v24, {f32(GS)}\nv_mov_b32 v25, v24")
        if o.get("wl"): A(f"s_lshl_b32 s53, s53, 9\ns_lshl_b32 s50, s{sDT1}, 1\ns_add_u32 s52, s52, s50\ns_lshl_b32 s52, s52, 14\ns_add_u32 s52, s52, s53\ns_lshl_b32 s53, s3, 7\ns_add_u32 s52, s52, s53\ns_add_u32 s52, s52, {S2_OFF}\ns_add_u32 s53, s52, 8192")
        else: A(f"s_lshl_b32 s53, s53, 7\ns_lshl_b32 s50, s{sDT1}, 1\ns_add_u32 s52, s52, s50\ns_lshl_b32 s52, s52, 12\ns_add_u32 s52, s52, s53\ns_lshl_b32 s53, s3, 2\ns_add_u32 s52, s52, s53\ns_add_u32 s52, s52, {S2_OFF}\ns_add_u32 s53, s52, 2048")
        A(f"v_mov_b32 v20, 0\nv_mov_b32 v21, s{sTAG}")
    else:
        A.c("output rows kept here (s56/s57) and rows finished by the partner (s52/s53)")
        srd(A, rS, sOUT, 0, S*D*2)
        A("v_lshlrev_b32 v3, 13, v3\nv_lshl_add_u32 v20, v4, 3, v3\nv_add_u32 v21, 4096, v20")
        A(f"s_lshl_b32 s56, s{sST}, 7\ns_lshl_b32 s57, s63, 6\ns_add_u32 s56, s56, s57\ns_lshl_b32 s57, s{sHK}, 5\ns_add_u32 s56, s56, s57\ns_lshl_b32 s56, s56, 11")
        A(f"s_lshl_b32 s57, s{sDT2}, 8\ns_add_u32 s56, s56, s57\ns_lshl_b32 s57, s62, 7\ns_add_u32 s56, s56, s57")
        A("s_xor_b32 s52, s56, 0x10000\ns_add_u32 s53, s52, 32768\ns_add_u32 s57, s56, 32768")
        A(f"v_mov_b32 v22, 0\nv_mov_b32 v23, s{sTAG}")
    A(f"s_mov_b32 s{sPH}, {1 if g1 else 2}\ns_mov_b32 s65, {(N1 if g1 else N2)//R}")

def cons_loop(A, o):
    A("s_barrier"); A.c("(b3) the polling wave has seen hand-off 1")
    A("L_c_main:")
    A("s_barrier"); A.c("stage 0 is in LDS")
    A(f"v_mov_b32 v5, 128\ns_cmp_eq_u32 s{sPH}, 1\ns_cbranch_scc1 L_c_noid")
    A(f"buffer_load_dword v30, v5, s[{rF}:{rF+3}], s55 offen sc1")
    if not o.get('early'): stamp(A, o, 7, 2)
    A("s_branch L_c_go\nL_c_noid:")
    stamp(A, o, 3, 0)
    A("L_c_go:")
    for x in rd_w(0, 0) + rd_h(0, HB[0]): A(x)
    A.c("==== main loop (both GEMMs): 4 steps of K=64; the barrier inside a step frees its slot and publishes the next stage")
    A(f".p2align {o.get('calign', 6)}")
    for _ in range(o.get("cpad", 0)): A("s_nop 0")
    A("L_c_loop:")
    for r_ in range(R): step(A, r_, o)
    A("s_sub_u32 s65, s65, 1\ns_cmp_lg_u32 s65, 0\ns_cbranch_scc1 L_c_loop")
    A(f"s_waitcnt lgkmcnt(0)\ns_cmp_eq_u32 s{sPH}, 2\ns_cbranch_scc1 L_c_epi2")

def cons_epi1(A, o):
    half = o.get("half", 1)
    A.c("==== GELU(tanh): y = gs*x is in the accumulators; gelu(x) = y / (gs + gs*2^(-y*(y*y + k)))")
    if not o.get('early'): stamp(A, o, 4, 1)
    A("s_nop 1")
    pr = lambda r_: f"v[{r_}:{r_+1}]"
    flag = lambda off: A(f"s_mov_b64 exec, 1\nbuffer_store_dword v21, v20, s[{rF}:{rF+3}], s{53 if off else 52} offen sc1\ns_mov_b64 exec, -1")
    hq = o.get("hq", 6)
    for kbl in range(2):
        for t in range(4):
            regs = [ACC + 16*(2*kbl + h) + 4*t + r_ for h in range(2) for r_ in range(4)]
            q = 4*kbl + t; tb = WB + (q % 2) * 16; d = 128 + 4*q
            for e in range(0, 8, 2): A(f"v_pk_fma_f32 {pr(tb+e)}, {pr(regs[e])}, {pr(regs[e])}, v[22:23]")
            for e in range(0, 8, 2): A(f"v_pk_mul_f32 {pr(tb+e)}, {pr(tb+e)}, {pr(regs[e])} neg_lo:[1,0] neg_hi:[1,0]")
            for e in range(8): A(f"v_exp_f32 v{tb+e}, v{tb+e}")
            for e in range(0, 8, 2): A(f"v_pk_fma_f32 {pr(tb+e)}, {pr(tb+e)}, v[24:25], v[24:25]")
            for e in range(8): A(f"v_rcp_f32 v{tb+e}, v{tb+e}")
            for e in range(0, 8, 2): A(f"v_pk_mul_f32 {pr(tb+e)}, {pr(tb+e)}, {pr(regs[e])}")
            for e in range(4): A(f"v_cvt_pk_bf16_f32 v{d+e}, v{tb+2*e}, v{tb+2*e+1}")
            A(f"buffer_store_dwordx4 v[{d}:{d+3}], v4, s[{rS}:{rS+3}], s{48+kbl} offen offset:{t*1024} sc1")
            if half and q == hq:
                A.c("hand-off 2a: the first four fragments (first pass of GEMM2's K order) have landed")
                A(f"s_waitcnt vmcnt({hq-3})"); flag(0)
                if not o.get('early'): stamp(A, o, 6)
    if not o.get('early'): stamp(A, o, 5)
    gate = o.get("gate", 1)
    if half:
        if gate == 0: A("s_barrier")
        if gate == 2: A("s_waitcnt vmcnt(1)\ns_barrier")
        A("s_waitcnt vmcnt(0)"); flag(2048)
        if gate == 1: A("s_barrier")
        A.c("(b4) the polling wave may start")
    else:
        A("s_waitcnt vmcnt(0)"); flag(0)
        stamp(A, o, 6)
        A("s_barrier"); A.c("(b4)")

def cons_epi2(A, o):
    A("L_c_epi2:")
    A.c("==== split-K pair: the half the partner finishes goes, rounded, into the partner's own output rows")
    if not o.get('early'): stamp(A, o, 8, 3)
    T, U_ = 96, 128
    def oaddr(sb, r_, base): return f"v{20 + r_//2}, s[{rS}:{rS+3}], s{base + sb} offen offset:{(r_%2)*2048}"
    A("s_waitcnt vmcnt(0)\nv_readfirstlane_b32 s61, v30")
    for sb in range(2):
        for r_ in range(4):
            a = ACC + 16*sb + r_; d = U_ + 8*sb + 2*r_
            A(f"v_cvt_pk_bf16_f32 v{d}, v{a}, v{a+4}\nv_cvt_pk_bf16_f32 v{d+1}, v{a+8}, v{a+12}")
    def send(flag):
        for sb in range(2):
            for r_ in range(4):
                d = U_ + 8*sb + 2*r_
                A(f"buffer_store_dwordx2 v[{d}:{d+1}], {oaddr(sb, r_, 52)} {flag}")
        A("s_waitcnt vmcnt(0)")
        A(f"s_mov_b64 exec, 1\nbuffer_store_dword v23, v22, s[{rF}:{rF+3}], s54 offen {flag}")
    A.c("partner reported the same die: the shared L2 carries it; otherwise (or not yet known) write through")
    A("s_cmp_eq_u32 s61, s64\ns_cbranch_scc0 L_c_far")
    send("")
    A("s_branch L_c_sent\nL_c_far:")
    send("sc1")
    A("L_c_sent:")
    poll(A, "L_c_p3", f"buffer_load_dword v18, v22, s[{rF}:{rF+3}], s55 offen sc1", [18], mask=1)
    if not o.get('early'): stamp(A, o, 9)
    for sb in range(2):
        for r_ in range(4):
            d = T + 8*sb + 2*r_
            A(f"buffer_load_dwordx2 v[{d}:{d+1}], {oaddr(sb, r_, 56)} sc1")
    for sb in range(2):
        for r_ in range(4):
            q = 4*sb + r_
            A("s_waitcnt vmcnt(7)")
            a = ACC + 32 + 16*sb + r_; d = T + 8*sb + 2*r_; t_ = T + 16 + 4*(q % 2)
            A(f"v_lshlrev_b32 v{t_}, 16, v{d}\nv_and_b32 v{t_+1}, 0xffff0000, v{d}\nv_lshlrev_b32 v{t_+2}, 16, v{d+1}\nv_and_b32 v{t_+3}, 0xffff0000, v{d+1}")
            for t in range(4): A(f"v_add_f32 v{a+4*t}, v{a+4*t}, v{t_+t}")
            A(f"v_cvt_pk_bf16_f32 v{d}, v{a}, v{a+4}\nv_cvt_pk_bf16_f32 v{d+1}, v{a+8}, v{a+12}")
            A(f"buffer_store_dwordx2 v[{d}:{d+1}], {oaddr(sb, r_, 56)}")
    if o.get("stamp"):
        A("s_cmp_lg_u32 s3, 0\ns_cbranch_scc1 L_end\ns_waitcnt vmcnt(0)")
        stamp(A, o, 10)
        stamp_flush(A, o, range(11))
        A("s_sub_u32 s94, s96, s94\nv_mov_b32 v1, s94\nglobal_store_dword v28, v1, s[92:93] offset:56")
        A("s_sub_u32 s98, s100, s98\nv_mov_b32 v1, s98\nglobal_store_dword v28, v1, s[92:93] offset:60")
    A("s_endpgm")

def ld_waddr(A, o, g1):
    half = o.get("half", 1) and not g1
    pitch = P1 if g1 else P2
    A.c("per-lane source offsets of this wave's four 1 KB weight pieces (4 rows x 256 B, swizzled), stream base s[64:65]")
    srd(A, rW, sW1 if g1 else sW2, 0, S*F*2)
    A(f"s_mov_b32 s48, {pitch}\ns_lshl_b32 s49, s62, 4\ns_lshl_b32 s50, s{sFT if g1 else sST}, 8")
    if half: A("s_and_b32 s51, s49, 32\ns_add_u32 s49, s49, s51")
    for j in range(4):
        A(f"v_add_u32 v6, {4*(j%2)}, v3\nv_xor_b32 v6, v6, v5\nv_lshl_add_u32 v6, v6, 5, v4")
        A(f"s_add_u32 s51, s49, {4*j}\nv_add_u32 v7, s51, v3\nv_mul_lo_u32 v7, v7, s48\nv_add3_u32 v{8+j}, v7, v6, s50")
        if j: A(f"v_subrev_u32 v{8+j}, {j*1024}, v{8+j}")
    if g1: A(f"s_mov_b32 s64, s{sW1}\ns_mov_b32 s65, s{sW1+1}")
    else: A(f"s_mul_i32 s50, s{sHK}, {1792*P2}\ns_add_u32 s64, s{sW2}, s50\ns_addc_u32 s65, s{sW2+1}, 0")
def ld_haddr(A, g1):
    A(f"s_mul_i32 s48, s{sDT1 if g1 else sDT2}, {HSTR if g1 else USTR}\ns_add_u32 s48, s48, s52\nv_lshl_add_u32 v12, v2, 4, s48")
    if g1: A(f"s_add_u32 s66, s{sWS}, {WS_H}\ns_addc_u32 s67, s{sWS+1}, 0")
    else: A(f"s_mul_i32 s51, s{sHK}, {N2*16384}\ns_add_u32 s51, s51, {WS_U}\ns_add_u32 s66, s{sWS}, s51\ns_addc_u32 s67, s{sWS+1}, 0")
def issue_w(A, o, g1, m0):
    A(m0 + "\ns_nop 0")
    for j in range(4): A(f"global_load_lds_dwordx4 v{8+j}, s[64:65] offset:{j*1024}")
    A(f"s_add_u32 s64, s64, {64*P1 if g1 else (128 if o.get('half', 1) else 64)*P2}\ns_addc_u32 s65, s65, 0")
def issue_h(A, m0):
    A(m0 + "\ns_nop 0")
    for j in range(4): A(f"global_load_lds_dwordx4 v12, s[66:67] offset:{j*1024} {HF}")
    A("s_add_u32 s66, s66, 16384\ns_addc_u32 s67, s67, 0")
def ld_main(A, o, g1, pre_bar, post_bar, after_issue):
    N = N1 if g1 else N2; P = "1" if g1 else "2"
    for z in range(R): issue_h(A, f"s_add_u32 m0, s52, {z*32768 + 16384}")
    A("s_waitcnt vmcnt(12)")
    if g1 or not o.get('early'): stamp(A, o, 3 if g1 else 6)
    A("s_barrier")
    for n, c in ((0, 8), (1, 12)):
        A(f"s_waitcnt vmcnt({c})\ns_barrier")
        issue_w(A, o, g1, f"s_add_u32 m0, s52, {n*32768}"); issue_h(A, "s_add_u32 m0, m0, 16384")
    A(f"s_mov_b32 s53, 2\n.p2align 6\nL_l_loop{P}:")
    A(f"s_and_b32 s54, s53, {R-1}\ns_lshl_b32 s54, s54, 15\ns_waitcnt vmcnt(16)")
    if pre_bar: pre_bar()
    A("s_barrier")
    if post_bar: post_bar()
    issue_w(A, o, g1, "s_add_u32 m0, s52, s54"); issue_h(A, "s_add_u32 m0, m0, 16384")
    if after_issue: after_issue()
    m = N - R if g1 else o.get("m2", 20)
    A(f"s_add_u32 s53, s53, 1\ns_cmp_lt_u32 s53, {m}\ns_cbranch_scc1 L_l_loop{P}")
    if g1: return
    A.c("from here on run three stages ahead instead of four")
    A(f"s_waitcnt vmcnt(16)\ns_barrier\n.p2align 6\nL_l_loopb:")
    A(f"s_and_b32 s54, s53, {R-1}\ns_lshl_b32 s54, s54, 15\ns_waitcnt vmcnt(8)\ns_barrier")
    issue_w(A, o, g1, "s_add_u32 m0, s52, s54"); issue_h(A, "s_add_u32 m0, m0, 16384")
    A(f"s_add_u32 s53, s53, 1\ns_cmp_lt_u32 s53, {N-R}\ns_cbranch_scc1 L_l_loopb")

def w2unit(A, dst, sbase, r0, cnt, skip):
    A(f"s_lshr_b32 s58, s{sXCD}, 2\ns_add_u32 s58, s58, {r0}\ns_and_b32 s59, s{sXCD}, 3\ns_lshl_b32 s59, s59, 10")
    A(f"v_and_b32 v{dst}, 7, v2\nv_lshl_add_u32 v{dst}, v{dst}, 7, s59\nv_lshrrev_b32 v6, 3, v2\nv_cmp_gt_u32 vcc, {cnt}, v6\nv_add_u32 v6, s{sbase}, v6")
    A(f"v_and_b32 v7, 1, v6\nv_mul_u32_u24 v7, 1792, v7\nv_and_b32 v6, -2, v6\nv_add3_u32 v7, v7, v6, s58")
    if skip: A("v_and_b32 v6, 0xffffffe0, v6\nv_add_u32 v7, v7, v6")
    A(f"v_lshl_add_u32 v{dst}, v7, 12, v{dst}\nv_mov_b32 v6, {OOB}\nv_cndmask_b32 v{dst}, v6, v{dst}, vcc")
def s2set(A, dst):
    A(f"s_lshl_b32 s{dst}, s{sDT2}, 1\ns_add_u32 s{dst}, s{dst}, s{sHK}\ns_lshl_b32 s{dst}, s{dst}, {14 if WL else 12}\ns_add_u32 s{dst}, s{dst}, {S2_OFF}")
def touch_flags(A, worker):
    if worker == "once":
        A.c("bring the hand-off lines into the memory-side cache early, each line once (wave 7; values unused)")
        A(f"s_lshl_b32 s48, s2, 7\ns_add_u32 s48, s48, {S1_OFF}\ns_lshl_b32 s49, s2, 8\ns_add_u32 s49, s49, {S2_OFF - 128}\ns_lshl_b32 s58, s2, 10\ns_add_u32 s58, s58, {S3_OFF - 3*128}")
        A("v_lshl_add_u32 v21, v2, 7, s58\nv_lshl_add_u32 v22, v2, 7, s49\nv_cmp_gt_u32 vcc, 3, v2\nv_mov_b32 v23, s48\ns_nop 0\nv_cndmask_b32 v21, v21, v22, vcc\nv_cmp_eq_u32 vcc, 0, v2\ns_nop 1\nv_cndmask_b32 v21, v21, v23, vcc")
        A(f"s_cmp_eq_u32 s3, 7\ns_cselect_b32 s48, 0, 0x7ff00000\ns_mov_b64 exec, 0x7ff\nbuffer_load_dword v31, v21, s[{rF}:{rF+3}], s48 offen sc1\ns_mov_b64 exec, -1")
        return
    if worker is None:
        A.c("bring the hand-off lines towards the caches early (wave 7; values unused)")
        A(f"s_cmp_eq_u32 s3, 7\ns_cselect_b32 s48, 0, 0x7ff00000\ns_add_u32 s49, s48, s56\nbuffer_load_dword v31, v13, s[{rF}:{rF+3}], s49 offen sc1")
        s2set(A, 58)
        A("v_lshl_add_u32 v21, v2, 7, s58")
        A(f"s_lshl_b32 s58, s2, 10\ns_add_u32 s58, s58, {S3_OFF - 32*128}\nv_lshl_add_u32 v22, v2, 7, s58\nv_cmp_gt_u32 vcc, 32, v2\ns_nop 1\nv_cndmask_b32 v21, v22, v21, vcc")
        A(f"s_mov_b32 exec_hi, 0xff\nbuffer_load_dword v31, v21, s[{rF}:{rF+3}], s48 offen sc1\ns_mov_b64 exec, -1")
        return
    lab = "L_l_nt" + ("w" if worker else "s")
    A.c("bring the hand-off lines towards the caches early (values unused)")
    A(f"s_cmp_lg_u32 s3, 7\ns_cbranch_scc1 {lab}")
    if worker: A(f"buffer_load_dword v31, v13, s[{rF}:{rF+3}], s56 offen sc1")
    s2set(A, 58)
    A("v_lshl_add_u32 v21, v2, 7, s58")
    if WL: A(f"buffer_load_dword v31, v21, s[{rF}:{rF+3}], 0 offen sc1\nv_add_u32 v21, 8192, v21\nbuffer_load_dword v31, v21, s[{rF}:{rF+3}], 0 offen sc1")
    A(f"s_lshl_b32 s58, s2, 10\ns_add_u32 s58, s58, {S3_OFF - 32*128}\nv_lshl_add_u32 v22, v2, 7, s58\nv_cmp_gt_u32 vcc, 32, v2\ns_nop 1\nv_cndmask_b32 v21, v22, v21, vcc")
    A(f"s_mov_b32 exec_hi, 0xff\nbuffer_load_dword v31, v21, s[{rF}:{rF+3}], 0 offen sc1\ns_mov_b64 exec, -1\n{lab}:")

def gen_loader(A, o):
    half = o.get("half", 1); nr = o.get("lnrows", 2); upw = o.get("upw", 7); prog = o.get("prog", 8)
    A("L_loader:")
    A.c("==== loader waves 4..7: all global->LDS traffic, hand-off polling, cache warming")
    A("s_sub_u32 s62, s3, 4\ns_lshl_b32 s52, s62, 12\nv_and_b32 v2, 63, v0")
    cw = o.get("cw", 2)
    if cw:
        A.c("pull this kernel's own text into L2 (read only)")
        A(f"s_cmp_ge_u32 s2, {8*cw}\ns_cbranch_scc1 L_l_ncw\ns_cmp_ge_u32 s62, 2\ns_cbranch_scc1 L_l_ncw\ns_getpc_b64 s[58:59]\nL_l_pc:")
        A(f"s_sub_u32 s58, s58, L_l_pc-{NAME}\ns_subb_u32 s59, s59, 0\ns_lshl_b32 s60, s62, 13\nv_lshl_add_u32 v21, v2, 7, s60")
        A(f"v_min_u32 v21, L_end-{NAME}, v21\nglobal_load_dword v31, v21, s[58:59]\nL_l_ncw:")
    A("v_lshrrev_b32 v3, 4, v2\nv_and_b32 v4, 15, v2\nv_lshrrev_b32 v5, 1, v4\nv_and_b32 v4, 1, v4\nv_lshlrev_b32 v4, 4, v4")
    ln2 = o.get("ln2", 2)
    p64 = o.get("p64", 64)
    if ln2 and p64:
        ln_stat_loads(A, issue=False)
        A(f"s_cmp_ge_u32 s2, {p64}\ns_cbranch_scc1 L_l_xlate")
        ln_stat_issue(A)
        A("L_l_xlate:")
    elif ln2: ln_stat_loads(A)
    else: A("s_waitcnt lgkmcnt(0)")
    common_setup(A)
    A.c("w1 warm-up pattern (v25): 3 row pairs per instruction; this die's 14 lines of the row of its parity, plus the")
    A.c("other row's lines for the tiles whose addresses get fewer L1 miss slots")
    A(f"v_mul_u32_u24 v13, 3641, v2\nv_lshrrev_b32 v13, 16, v13\nv_mul_u32_u24 v14, 18, v13\nv_sub_u32 v14, v2, v14")
    A(f"s_and_b32 s48, s{sXCD}, 3\ns_lshr_b32 s49, s{sXCD}, 2\ns_mul_i32 s58, s48, 14\ns_add_u32 s59, s48, 1\ns_and_b32 s59, s59, 3\ns_lshl_b32 s59, s59, 1")
    A("v_cmp_gt_u32 vcc, 14, v14\nv_add_u32 v16, s58, v14\nv_subrev_u32 v17, 14, v14\nv_lshrrev_b32 v18, 1, v17\nv_lshlrev_b32 v18, 3, v18\nv_and_b32 v17, 1, v17\nv_add3_u32 v17, v17, v18, s59")
    if o.get("dwrap", 1): A("v_subrev_u32 v18, 14, v17\nv_min_u32 v17, v17, v18")
    A("v_cmp_gt_u32 s[60:61], 14, v17\nv_add_u32 v17, s58, v17\nv_cndmask_b32 v16, v17, v16, vcc\ns_or_b64 s[60:61], s[60:61], vcc")
    A("s_xor_b32 s58, s49, 1\nv_mov_b32 v17, s58\nv_mov_b32 v18, s49\nv_cndmask_b32 v17, v17, v18, vcc\nv_lshl_add_u32 v17, v13, 1, v17")
    A(f"v_cmp_gt_u32 vcc, 3, v13\ns_and_b64 vcc, vcc, s[60:61]\nv_mul_u32_u24 v17, {P1}, v17\nv_lshl_add_u32 v25, v16, 7, v17\nv_mov_b32 v17, {OOB}\nv_cndmask_b32 v25, v17, v25, vcc")
    A(f"s_sub_u32 s48, s{sN}, {o.get('gperm', 0)}\ns_and_b32 s48, s48, 31\ns_mul_i32 s48, s48, {nr}\ns_add_u32 s48, s48, s62\ns_mul_i32 s55, s48, {6*P1}")
    srd(A, rH, sW1, 0, S*F*2)
    if ln2:
        pa = o.get("pfafter", 1)
        A(f"s_cmp_ge_u32 s62, {nr}\ns_cselect_b32 s55, 0x7ff00000, s55")
        if p64:
            A(f"s_cmp_lt_u32 s2, {p64}\ns_cbranch_scc1 L_l_xdone")
            if pa == 3: A(f"buffer_load_dword v31, v25, s[{rH}:{rH+3}], s55 offen\ns_mov_b32 s55, 0x7ff00000")
            ln_stat_issue(A)
            A("L_l_xdone:")
        if not pa: A(f"buffer_load_dword v31, v25, s[{rH}:{rH+3}], s55 offen")
        A(f"s_and_b32 s56, s{sDT1}, 6\ns_and_b32 s59, s{sXCD}, 1\ns_add_u32 s56, s56, s59\ns_lshl_b32 s56, s56, 12\ns_add_u32 s56, s56, {S1_OFF}")
        A("v_lshrrev_b32 v13, 1, v2\nv_lshlrev_b32 v13, 7, v13\nv_and_b32 v14, 1, v2\nv_lshl_add_u32 v13, v14, 4, v13")
        if o.get("early"): stamp(A, o, 4)
        tn = 1 if o.get("tonce", 1) else 2
        touch_flags(A, "once" if tn == 1 else None)
        if o.get("early"):
            stamp(A, o, 5); A("s_waitcnt vmcnt(3)"); stamp(A, o, 6)
        if pa: A(f"s_waitcnt vmcnt({tn + 2 if pa in (1, 3) else tn})\nbuffer_load_dword v31, v25, s[{rH}:{rH+3}], s55 offen")
        ln_stats(A, tn + 1, ln2 == 2)
        if o.get("early"): stamp(A, o, 1)
        make_tag(A)
        A("s_barrier"); A.c("(b1)")
    else:
        A("s_barrier"); A.c("(b0)")
        A(f"s_cmp_ge_u32 s62, {nr}\ns_cbranch_scc1 L_l_nopf\nbuffer_load_dword v31, v25, s[{rH}:{rH+3}], s55 offen\nL_l_nopf:")
    if o.get("tlb"):
        A.c("first touch of the workspace pages (padding words, values unused)")
        A("s_cmp_lg_u32 s3, 6\ns_cbranch_scc1 L_l_notlb")
        srd(A, rM, sWS, 0, 16 << 20)
        A(f"v_lshlrev_b32 v21, {o['tlb']}, v2\nv_add_u32 v21, {64*8192 if o['tlb'] > 19 else 0}, v21\nbuffer_load_dword v31, v21, s[{rM}:{rM+3}], 0 offen sc1\nL_l_notlb:")
    A("s_cmp_ge_u32 s2, 224\ns_cbranch_scc1 L_l_spare")
    lb = o.get("lb1", 0)
    if lb: A("s_waitcnt lgkmcnt(0)\ns_barrier")
    ld_waddr(A, o, True)
    ld_haddr(A, True)
    if not ln2:
        A(f"s_and_b32 s56, s{sDT1}, 6\ns_and_b32 s59, s{sXCD}, 1\ns_add_u32 s56, s56, s59\ns_lshl_b32 s56, s56, 12\ns_add_u32 s56, s56, {S1_OFF}")
        A("v_lshrrev_b32 v13, 1, v2\nv_lshlrev_b32 v13, 7, v13\nv_and_b32 v14, 1, v2\nv_lshl_add_u32 v13, v14, 4, v13")
        touch_flags(A, True)
    g1k = o.get("g1pf", 0); G0 = 342 - 28*g1k
    if g1k:
        A.c("late w1 rows: one touch per wave, spread over the steps")
        A(f"s_mul_i32 s51, s{sN}, {g1k}\ns_add_u32 s51, s51, s62\ns_add_u32 s51, s51, {G0}\ns_mul_i32 s51, s51, {6*P1}")
        A(f"s_lshr_b32 s55, s{sN}, 1\ns_add_u32 s55, s55, {o.get('g1in', 3)}\ns_cmp_ge_u32 s62, {g1k}\ns_cselect_b32 s55, 0xff, s55")
    if not ln2:
        A("s_waitcnt lgkmcnt(0)")
        make_tag(A)
    ws_ = o.get("wsplit", 64)
    if ws_:
        A("s_barrier"); A.c("(b1') the h stores are queued")
        A(f"s_cmp_lt_u32 s2, {ws_}\ns_cbranch_scc1 L_l_wlate")
        for z in range(R): issue_w(A, o, True, f"s_add_u32 m0, s52, {z*32768}")
        A("s_barrier\ns_branch L_l_wdone\nL_l_wlate:")
    A("s_barrier" if lb or ln2 else "s_barrier\ns_barrier"); A.c("(b2)")
    for z in range(R): issue_w(A, o, True, f"s_add_u32 m0, s52, {z*32768}")
    A("L_l_wdone:")
    pl = f"buffer_load_dwordx4 v[16:19], v13, s[{rF}:{rF+3}], s56 offen sc1"
    if not o.get("early"): stamp(A, o, 1)
    A.c(f"hand-off 1: the producers of the first {prog} stages now, the others before their stages are requested")
    A("s_mov_b32 s57, 0xff\ns_mov_b32 s63, 0xff\ns_cmp_lg_u32 s3, 4\ns_cbranch_scc1 L_l_s1seen")
    poll(A, "L_l_p1", pl, [16, 17, 18, 19], mask=(1 << (2*prog)) - 1)
    stamp(A, o, 2)
    if o.get("stamp"): A("s_sub_u32 s84, 0x200000, s59")
    A(f"s_mov_b32 s57, {prog-4}\ns_mov_b32 s63, {prog-6}")
    A("L_l_s1seen:\ns_barrier"); A.c("(b3)")
    def chk1():
        A("s_cmp_lg_u32 s53, s57\ns_cbranch_scc1 L_l_nochk1")
        poll(A, "L_l_p1b", pl, [16, 17, 18, 19], pre=16)
        A.c("every workgroup has read the generation word by now: advance it")
        A("s_cmp_lg_u32 s2, 0\ns_cbranch_scc1 L_l_nochk1")
        A(f"v_mov_b32 v16, s{sTAG}\nv_mov_b32 v17, 0\ns_mov_b64 exec, 1\nbuffer_store_dword v16, v17, s[{rF}:{rF+3}], 0 offen offset:{GEN_OFF} sc1\ns_mov_b64 exec, -1")
        A("L_l_nochk1:")
    def iss1(): A(f"s_cmp_lg_u32 s53, s63\ns_cbranch_scc1 L_l_noiss1\n{pl}\nL_l_noiss1:")
    def aft1(): A(f"s_cmp_lg_u32 s53, s55\ns_cbranch_scc1 L_l_nolate1\nbuffer_load_dword v31, v25, s[{rH}:{rH+3}], s51 offen\nL_l_nolate1:")
    ld_main(A, o, True, chk1, iss1, aft1 if g1k else None)
    A.c("tail of GEMM1: the freed slots take the first weight stages of GEMM2")
    ld_waddr(A, o, False)
    for z, c in enumerate((16, 12, 8, None)):
        if c is not None: A(f"s_waitcnt vmcnt({c})")
        A("s_barrier")
        issue_w(A, o, False, f"s_add_u32 m0, s52, {z*32768}")
    if o.get("b4early"): A("s_barrier")
    A("L_l_g2:")
    ld_haddr(A, False)
    A.c("lines of the final hand-over (own output rows, ready word) and this wave's share of the late w2 rows")
    srd(A, rS, sOUT, 0, S*D*2)
    A(f"s_lshl_b32 s58, s{sST}, 7\ns_lshr_b32 s59, s62, 1\ns_lshl_b32 s59, s59, 6\ns_add_u32 s58, s58, s59\ns_lshl_b32 s59, s{sHK}, 5\ns_add_u32 s58, s58, s59\ns_lshl_b32 s58, s58, 11")
    A(f"s_lshl_b32 s59, s{sDT2}, 8\ns_add_u32 s58, s58, s59\ns_and_b32 s59, s62, 1\ns_lshl_b32 s59, s59, 7\ns_add_u32 s58, s58, s59\nv_lshl_add_u32 v23, v2, 11, s58")
    A(f"s_lshl_b32 s58, s2, 10\ns_lshl_b32 s59, s62, 8\ns_add_u32 s58, s58, s59\ns_add_u32 s58, s58, {S3_OFF}\nv_mov_b32 v24, s58")
    if o.get("fastpf", 0):
        assert upw == 6 and half
        A.c("(the 8 workgroups per die whose weight lines get fewer L1 miss slots carry none of it)")
        A(f"s_and_b32 s48, s{sN}, 7\ns_cmp_gt_u32 s48, 3\ns_cselect_b32 s49, 2, 0\ns_sub_u32 s48, s48, s49\ns_lshr_b32 s49, s{sN}, 3\ns_mul_i32 s49, s49, 6\ns_add_u32 s48, s48, s49")
        A(f"s_mul_i32 s55, s48, 11\ns_lshr_b32 s55, s55, 4\ns_add_u32 s55, s55, {o.get('in0', 2)}\ns_and_b32 s49, s{sST}, 3\ns_cmp_eq_u32 s49, 1\ns_cselect_b32 s55, 0xff, s55")
        A("s_lshl_b32 s48, s48, 5\ns_lshl_b32 s49, s62, 3\ns_add_u32 s49, s49, s48")
        w2unit(A, 29, 49, 64*(28 - 4*upw) + 32, 8, True)
    else:
        A(f"s_mul_i32 s48, s{sN}, {4*upw}\ns_mul_i32 s49, s62, {upw}\ns_add_u32 s49, s49, s48")
        if half: w2unit(A, 29, 49, 64*(28 - 4*upw) + 32, upw, True)
        else: w2unit(A, 29, 49, 1792 - 128*upw, upw, False)
        A(f"s_lshr_b32 s55, s{sN}, 1\ns_add_u32 s55, s55, {o.get('in0', 2)}")
    s2set(A, 56)
    A("v_lshlrev_b32 v13, 7, v2")
    if not o.get("b4early"): A("s_cmp_ge_u32 s2, 224\ns_cbranch_scc1 L_l_nob4\ns_barrier"); A.c("(b4)")
    A("L_l_nob4:")
    if not o.get("early"): stamp(A, o, 4)
    A("s_mov_b32 s57, 0xff\ns_mov_b32 s63, 0xff\ns_cmp_lg_u32 s3, 4\ns_cbranch_scc1 L_l_s2seen")
    p2 = f"buffer_load_dword v16, v13, s[{rF}:{rF+3}], s56 offen sc1" if WL else pl
    r2 = [16] if WL else [16, 17, 18, 19]; m2 = "s[50:51]" if WL else (1 << 14) - 1
    if WL: A("s_mov_b32 s50, -1\ns_mov_b32 s51, 0xffffff")
    poll(A, "L_l_p2", p2, r2, mask=m2)
    if not o.get("early"): stamp(A, o, 5)
    if o.get("stamp"): A("s_sub_u32 s86, 0x200000, s59")
    if half: A("s_mov_b32 s57, 10\ns_mov_b32 s63, 8\ns_add_u32 s56, s56, " + str(8192 if WL else 2048))
    A("L_l_s2seen:\ns_barrier"); A.c("(b5)")
    def chk2():
        A("s_cmp_lg_u32 s53, s57\ns_cbranch_scc1 L_l_nochk2")
        poll(A, "L_l_p2b", p2, r2, pre=16, mask=m2)
        A("L_l_nochk2:")
    def iss2(): A(f"s_cmp_lg_u32 s53, s63\ns_cbranch_scc1 L_l_noiss2\ns_mov_b64 exec, {m2}\n{p2}\ns_mov_b64 exec, -1\nL_l_noiss2:")
    def aft2():
        if half: A(f"s_cmp_eq_u32 s53, 9\ns_cselect_b32 s58, {(14*128 - 32)*P2}, 0\ns_sub_u32 s64, s64, s58\ns_subb_u32 s65, s65, 0")
        A(f"s_cmp_lg_u32 s53, s55\ns_cbranch_scc1 L_l_nolate\nbuffer_load_dword v31, v29, s[{rW}:{rW+3}], 0 offen\nL_l_nolate:")
    ld_main(A, o, False, chk2 if half else None, iss2 if half else None, aft2)
    A(f"s_mov_b32 exec_hi, 0\nbuffer_load_dword v31, v23, s[{rS}:{rS+3}], 0 offen sc1\ns_mov_b64 exec, 1\nbuffer_load_dword v31, v24, s[{rF}:{rF+3}], 0 offen sc1\ns_mov_b64 exec, -1")
    A("s_waitcnt vmcnt(10)\ns_barrier\ns_waitcnt vmcnt(2)\ns_barrier\ns_barrier")
    if o.get("stamp"):
        A(f"s_cmp_lg_u32 s3, {o.get('stw', 4)}\ns_cbranch_scc1 L_end")
        stamp_flush(A, o, range(1, 9), 2)
    A("s_endpgm")
    A("L_l_spare:")
    A.c("==== the 32 workgroups without a GEMM1 tile pull the weights from HBM ahead of their use")
    if lb: A("s_waitcnt lgkmcnt(0)\ns_barrier")
    if not ln2: touch_flags(A, False)
    ld_waddr(A, o, False)
    if not ln2:
        A("s_waitcnt lgkmcnt(0)")
        make_tag(A)
    if ws_: A("s_barrier")
    A("s_barrier" if lb or ln2 else "s_barrier\ns_barrier"); A.c("(b2)")
    A("s_cmp_lg_u32 s3, 4\ns_cbranch_scc1 L_l_spw")
    A("s_sub_u32 s48, s2, 224\nv_and_b32 v14, 31, v2\nv_lshlrev_b32 v14, 7, v14\nv_lshrrev_b32 v7, 5, v2\nv_mul_u32_u24 v7, 1792, v7\nv_add_u32 v7, s48, v7\nv_lshl_add_u32 v14, v7, 12, v14")
    def sp_w2(lab, r0_, r1_, st):
        if r0_ < r1_: A(f"s_mov_b32 s48, {r0_*P2}\n{lab}:\nbuffer_load_dword v31, v14, s[{rW}:{rW+3}], s48 offen\ns_add_u32 s48, s48, {st*P2}\ns_cmp_lt_u32 s48, {r1_*P2}\ns_cbranch_scc1 {lab}")
    if half:
        if not o.get("sp0late", 0): sp_w2("L_l_sp0", 0, 512, 64)
    else: sp_w2("L_l_sp0", 0, 256, 32)
    X = o.get("dupx", S); late0 = o.get("sp0late", 0)
    if X < S: X = 192*nr + (X - 192*nr) // 24 * 24
    A(f"s_add_u32 s48, s{sN}, {32*nr - 28}\ns_mul_i32 s48, s48, {6*P1}\nL_l_sp1:\nbuffer_load_dword v31, v25, s[{rH}:{rH+3}], s48 offen\ns_add_u32 s48, s48, {24*P1}\ns_cmp_lt_u32 s48, {min(X, 6*G0)*P1}\ns_cbranch_scc1 L_l_sp1")
    if late0: sp_w2("L_l_sp0", 0, 512, 64)
    if X < S:
        A(f"v_mul_u32_u24 v13, 4682, v2\nv_lshrrev_b32 v13, 16, v13\nv_mul_u32_u24 v15, 14, v13\nv_sub_u32 v15, v2, v15\nv_cmp_gt_u32 vcc, 4, v13")
        A(f"s_and_b32 s58, s{sXCD}, 3\ns_mul_i32 s58, s58, 14\ns_lshr_b32 s59, s{sXCD}, 2\nv_add_u32 v15, s58, v15\nv_lshl_add_u32 v13, v13, 1, s59\nv_mul_u32_u24 v13, {P1}, v13\nv_lshl_add_u32 v13, v15, 7, v13\nv_mov_b32 v15, {OOB}\nv_cndmask_b32 v13, v15, v13, vcc")
        A(f"s_sub_u32 s48, s{sN}, 28\ns_lshl_b32 s48, s48, 3\ns_add_u32 s48, s48, {X}\ns_mul_i32 s48, s48, {P1}\nL_l_sp1b:\nbuffer_load_dword v31, v13, s[{rH}:{rH+3}], s48 offen\ns_add_u32 s48, s48, {32*P1}\ns_cmp_lt_u32 s48, {S*P1}\ns_cbranch_scc1 L_l_sp1b")
    for z in range(R): issue_w(A, o, False, f"s_add_u32 m0, s52, {z*32768}")
    A(f"s_sub_u32 s48, s{sN}, 28\ns_lshl_b32 s48, s48, 3")
    w2unit(A, 14, 48, 0, 8, False)
    if half:
        sp_w2("L_l_sp2", 512, 1792, 64); sp_w2("L_l_sp3", 32, 64*(28 - 4*upw) + 32, 64)
    else: sp_w2("L_l_sp2", 256, 1792 - 128*upw, 32)
    if o.get("stamp") and o.get("spst"):
        A("s_waitcnt vmcnt(0)"); stamp(A, o, 0); stamp_flush(A, o, [0], 1); A("s_mov_b64 exec, -1")
    A("s_branch L_l_g2")
    A("L_l_spw:")
    for z in range(R): issue_w(A, o, False, f"s_add_u32 m0, s52, {z*32768}")
    A("s_branch L_l_g2")

HEAD = open(__file__.replace("gen3.py", "head.txt")).read()
DOC = """; One launch, 256 workgroups (one per CU) of 8 waves: waves 0-3 do LayerNorm / MFMA / epilogues, waves 4-7 load.
; Hand-offs between workgroups use write-through stores and words tagged per launch (generation word in d_ws)."""
def build(o):
    global WL, HF
    HF = o.get('hf', 'sc1')
    WL = o.get('wl', 0)
    A = Asm()
    A.L.append(HEAD.rstrip("\n")); A.L.append(DOC)
    if o.get("tail_e"):
        A(f"; @launch kernel={NAME} grid=(256,1,1) block=(512,1,1) lds={LDS_LN + 256}")
        A("; @launch kernel=empty_kernel grid=(256,1,1) block=(64,1,1) lds=0")
    else: A(f"; @launch grid=(256,1,1) block=(512,1,1) lds={LDS_LN + 256}")
    A('.amdgcn_target "amdgcn-amd-amdhsa--gfx950"\n.text')
    A(f".globl {NAME}\n.p2align 8\n.type {NAME},@function\n{NAME}:")
    A("s_cmp_ge_u32 s2, 256\ns_cbranch_scc1 L_end")
    stamp(A, o, 0)
    A("s_load_dwordx16 s[4:19], s[0:1], 0")
    A("v_readfirstlane_b32 s3, v0\ns_nop 0\ns_lshr_b32 s3, s3, 6\ns_cmp_ge_u32 s3, 4\ns_cbranch_scc1 L_loader")
    (gen_ln2 if o.get('ln2', 2) else gen_ln)(A, o)
    A("s_cmp_ge_u32 s2, 224\ns_cbranch_scc1 L_c_g2")
    cons_prologue(A, o, True)
    cons_loop(A, o)
    cons_epi1(A, o)
    A("L_c_g2:\ns_waitcnt vmcnt(0)\ns_barrier"); A.c("(b5)")
    A("L_c_g2p:")
    cons_prologue(A, o, False)
    A("s_branch L_c_main")
    cons_epi2(A, o)
    gen_loader(A, o)
    A("L_end:\ns_endpgm")
    def desc(name, v):
        A(f".p2align 6\n.amdhsa_kernel {name}\n  .amdhsa_next_free_vgpr {v}\n  .amdhsa_next_free_sgpr 102\n  .amdhsa_accum_offset {v}\n"
          "  .amdhsa_group_segment_fixed_size 0\n  .amdhsa_kernarg_size 64\n  .amdhsa_user_sgpr_count 2\n"
          "  .amdhsa_user_sgpr_kernarg_segment_ptr 1\n  .amdhsa_system_sgpr_workgroup_id_x 1\n.end_amdhsa_kernel")
    if o.get("tail_e"):
        A(".globl empty_kernel\n.p2align 8\n.type empty_kernel,@function\nempty_kernel:")
        A("s_cmp_ge_u32 s2, 256\ns_cbranch_scc1 L_em_end\ns_memrealtime s[70:71]\ns_load_dwordx2 s[18:19], s[0:1], 56")
        stamp_flush(A, o, [0], 3)
        A("L_em_end:\ns_endpgm")
    A('.section .rodata,"a"')
    desc(NAME, 196)
    if o.get("tail_e"): desc("empty_kernel", 32)
    return A.text()

if __name__ == "__main__":
    o = {}
    for kv in sys.argv[2:]:
        k, v = kv.split("=", 1)
        o[k] = int(v) if v.lstrip("-").isdigit() else v
    open(sys.argv[1], "w").write(build(o))
```

```python
import sys, struct, math
S, D, F = 2048, 1024, 3584
NAME = "standalone__mixer_token_mlp__prompt_kernel"
WS_H, WS_U, WS_FLG, WS_STAMP = 0, 6 << 20, 20 << 20, 24 << 20
HSTR, USTR = 64*8192 + 8192, 112*8192 + 8192
H_BYTES, U_BYTES = 8*HSTR, 8*USTR
GEN_OFF, S1_OFF, S2_OFF, S3_OFF = 0, 65536, 131072, 393216
FLG_BYTES = S3_OFF + 256*1024
R = 4
LDS_LN = R*32768
N1, N2 = 32, 28
P1, P2 = F*2, S*2
GC0 = -2.0*math.sqrt(2.0/math.pi)*math.log2(math.e); GC1 = GC0*0.044715
GS = (-GC1) ** (1.0/3.0); GK = -GC0/GS
OOB = 0x7fffffff

def f32(x): return "0x%08x" % struct.unpack("<I", struct.pack("<f", x))[0]
class Asm:
    def __init__(self): self.L = []
    def __call__(self, s):
        for l in s.split("\n"):
            l = l.strip()
            if l: self.L.append(l if (l.endswith(":") or l.startswith(".") or l.startswith(";")) else "    " + l)
    def c(self, s): self.L.append("    ; " + s)
    def text(self): return "\n".join(self.L) + "\n"

sX, sW1, sB1, sW2, sB2, sOUT, sDBG, sWS = 4, 6, 8, 10, 12, 14, 16, 18
sTAG, sXCD, sN, sFT, sDT1, sST, sDT2, sHK = 20, 21, 22, 23, 24, 25, 26, 27
rW, rH, rF, rM, rS = 28, 32, 36, 40, 44
sPH, sN7 = 68, 69
ACC, WB, HB = 32, 96, (128, 160)
VWA, VHA = 8, 16

def srd(A, r, base, off, nbytes):
    if off: A(f"s_add_u32 s{r}, s{base}, {off}\ns_addc_u32 s{r+1}, s{base+1}, 0")
    else: A(f"s_mov_b32 s{r}, s{base}\ns_mov_b32 s{r+1}, s{base+1}")
    A(f"s_mov_b32 s{r+2}, {nbytes}\ns_mov_b32 s{r+3}, 0x20000")
def stamp(A, o, i, cyc=None):
    if o.get("stamp"):
        A(f"s_memrealtime s[{70+2*i}:{71+2*i}]")
        if cyc is not None: A(f"s_memtime s[{94+2*cyc}:{95+2*cyc}]")
def stamp_flush(A, o, lst, slot=0):
    A("s_waitcnt lgkmcnt(0)")
    A(f"s_add_u32 s92, s{sWS}, {WS_STAMP + slot*16384}\ns_addc_u32 s93, s{sWS+1}, 0\nv_mov_b32 v28, s2\nv_lshlrev_b32 v28, 6, v28\ns_mov_b64 exec, 1")
    for i in lst: A(f"v_mov_b32 v1, s{70+2*i}\nglobal_store_dword v28, v1, s[92:93] offset:{4*i}")

def poll(A, label, load, regs, mask=None, pre=None):
    A("s_mov_b32 s59, 0x80000")
    if mask is not None: A(f"s_mov_b64 exec, {mask}")
    if pre is not None: A(f"s_waitcnt vmcnt({pre})\ns_branch {label}_c")
    A(f"{label}:\n{load}\ns_sub_u32 s59, s59, 1\ns_cbranch_scc1 {label}_x\ns_waitcnt vmcnt(0)\n{label}_c:")
    A(f"v_cmp_ne_u32 vcc, s{sTAG}, v{regs[0]}")
    for r_ in regs[1:]: A(f"v_cmp_ne_u32 s[60:61], s{sTAG}, v{r_}\ns_or_b64 vcc, vcc, s[60:61]")
    A(f"s_cmp_lg_u64 vcc, 0\ns_cbranch_scc1 {label}\n{label}_x:")
    if mask is not None: A("s_mov_b64 exec, -1")

def common_setup(A):
    A.c("hand-off area, generation word, tile coordinates (id%8 groups share a die under round-robin placement: speed only)")
    A(f"s_add_u32 s{rF}, s{sWS}, {WS_FLG}\ns_addc_u32 s{rF+1}, s{sWS+1}, 0\ns_mov_b32 s{rF+2}, {FLG_BYTES}\ns_mov_b32 s{rF+3}, 0x20000")
    A(f"s_load_dword s{sTAG}, s[{rF}:{rF+1}], {GEN_OFF}")
    A(f"s_and_b32 s{sXCD}, s2, 7\ns_lshr_b32 s{sN}, s2, 3")
    A(f"s_mul_i32 s66, s{sN}, 37\ns_lshr_b32 s66, s66, 8\ns_mul_i32 s67, s66, 7\ns_sub_u32 s{sN7}, s{sN}, s67")
    A(f"s_and_b32 s67, s{sXCD}, 3\ns_mul_i32 s{sFT}, s67, 7\ns_add_u32 s{sFT}, s{sFT}, s{sN7}")
    A(f"s_and_b32 s{sDT2}, s{sXCD}, 4\ns_add_u32 s{sDT1}, s{sDT2}, s66")
    A(f"s_and_b32 s{sHK}, s{sN}, 1\ns_lshl_b32 s{sST}, s67, 2\ns_bfe_u32 s66, s{sN}, 0x20001\ns_add_u32 s{sST}, s{sST}, s66")
    A(f"s_lshr_b32 s66, s{sN}, 3\ns_add_u32 s{sDT2}, s{sDT2}, s66")
def make_tag(A):
    A.c("tag of this launch's hand-off words = next value after the generation word found on entry")
    A(f"s_mul_i32 s{sTAG}, s{sTAG}, 0x9e3779b1\ns_add_u32 s{sTAG}, s{sTAG}, 0x7f4a7c15")

ROWOFF = [(16*(j//4) + j % 4) * 2048 for j in range(8)]
def ln_rowbase(A):
    A("s_lshr_b32 s48, s2, 2\ns_and_b32 s49, s2, 3")
    A("s_lshl_b32 s50, s48, 5\ns_lshl_b32 s51, s49, 2\ns_add_u32 s50, s50, s51\ns_lshl_b32 s50, s50, 11")
def gen_ln2(A, o):
    A.c("==== LayerNorm of 8 rows: s = 32*kb + 16*(j/4) + 4*g + j%4; here thread = 4 channels, the row statistics come from waves 4..7")
    ln_rowbase(A)
    via = o.get("ln2", 2) == 2
    A("v_lshlrev_b32 v1, 3, v0")
    if not via:
        for j in range(8): A(f"s_add_u32 s{52+j}, s50, {ROWOFF[j]}")
    A("s_waitcnt lgkmcnt(0)")
    if o.get("early"): stamp(A, o, 5)
    if not via:
        srd(A, rM, sX, 0, S*D*2)
        for j in range(8): A(f"buffer_load_dwordx2 v[{2+2*j}:{3+2*j}], v1, s[{rM}:{rM+3}], s{52+j} offen")
    common_setup(A)
    bm = o.get("bm", 3 if o.get("stamp") else 4)
    A.c("bias addresses (4 values per lane and 16-column block)")
    if bm < 4:
        srd(A, rM, sB2, 0, S*2)
        srd(A, rW, sB1, 0, F*2)
    A("s_lshr_b32 s63, s3, 1\ns_lshl_b32 s63, s63, 7\nv_bfe_u32 v19, v0, 4, 2\nv_lshlrev_b32 v19, 3, v19")
    A(f"s_lshl_b32 s61, s{sST}, 8\ns_add_u32 s61, s61, s63\ns_lshl_b32 s62, s{sHK}, 6\ns_add_u32 s61, s61, s62")
    A(f"s_lshl_b32 s68, s{sFT}, 8\ns_add_u32 s68, s68, s63")
    def bias2():
        for fb in range(2): A(f"buffer_load_dwordx2 v[{192+2*fb}:{193+2*fb}], v19, s[{rM}:{rM+3}], s61 offen offset:{fb*32}")
    def bias1():
        for fb in range(4): A(f"buffer_load_dwordx2 v[{104+2*fb}:{105+2*fb}], v19, s[{rW}:{rW+3}], s68 offen offset:{fb*32}")
    if bm < 2: bias2()
    if bm == 0: bias1()
    if bm == 4:
        assert not o.get("stamp")
        A.c("biases through the scalar path; lane group g picks its two dwords of every 16-column block")
        A(f"s_min_u32 s68, s68, {F*2 - 128}\ns_add_u32 s50, s{sB1}, s68\ns_addc_u32 s51, s{sB1+1}, 0\ns_add_u32 s60, s{sB2}, s61\ns_addc_u32 s61, s{sB2+1}, 0")
        A("s_load_dwordx16 s[72:87], s[50:51], 0\ns_load_dwordx8 s[88:95], s[50:51], 64\ns_load_dwordx8 s[28:35], s[50:51], 96")
        A("s_load_dwordx8 s[52:59], s[60:61], 0\ns_load_dwordx4 s[96:99], s[60:61], 32\ns_load_dwordx4 s[40:43], s[60:61], 48")
    srd(A, rS, sWS, WS_H, H_BYTES)
    A(f"v_lshrrev_b32 v62, 5, v0\nv_mul_u32_u24 v62, {HSTR}, v62")
    A("v_bfe_u32 v63, v0, 4, 1\nv_lshlrev_b32 v63, 12, v63\nv_add_u32 v62, v62, v63")
    A("v_and_b32 v63, 15, v0\nv_lshlrev_b32 v63, 4, v63\nv_add_u32 v62, v62, v63")
    A("s_lshl_b32 s48, s48, 13\ns_lshl_b32 s49, s49, 8\ns_add_u32 s48, s48, s49")
    A(f"v_mov_b32 v64, {LDS_LN}")
    A("s_waitcnt lgkmcnt(0)")
    make_tag(A)
    if bm == 4:
        src = list(range(72, 96)) + list(range(28, 36)) + list(range(52, 60)) + list(range(96, 100)) + list(range(40, 44))
        for g in range(4):
            if g: A(f"s_mov_b32 exec_lo, {0xffff0000 if g == 1 else 0}\ns_mov_b32 exec_hi, {-1 if g < 3 else 0xffff0000}")
            for blk in range(6):
                for h in range(2): A(f"v_mov_b32 v{(104 + 2*blk if blk < 4 else 192 + 2*(blk-4)) + h}, s{src[8*blk + 2*g + h]}")
        A("s_mov_b64 exec, -1")
    if o.get("early"): stamp(A, o, 6)
    def unpack(j):
        for c in range(4):
            src = 2 + 2*j + c//2; d = 70 + 4*j + c
            A(f"v_lshlrev_b32 v{d}, 16, v{src}" if c % 2 == 0 else f"v_and_b32 v{d}, 0xffff0000, v{src}")
    if not via:
        for j in range(8):
            A(f"s_waitcnt vmcnt({9-j})")
            if o.get("early") and j == 0: stamp(A, o, 9)
            unpack(j)
    stamp(A, o, 1)
    if o.get("early"): stamp(A, o, 7)
    A("s_barrier"); A.c("(b1) scale / shift of the 8 rows are in LDS")
    if o.get("early"): stamp(A, o, 8)
    if via:
        for j in range(8): A(f"ds_read_b64 v[{2+2*j}:{3+2*j}], v1 offset:{16384 + 2048*j}")
    for q in range(4): A(f"ds_read_b128 v[{20+4*q}:{23+4*q}], v64 offset:{16*q}")
    if via:
        for j in range(8):
            A(f"s_waitcnt lgkmcnt({11-j})"); unpack(j)
    A.c("h leaves in MFMA operand order: [d-tile][kb][16-channel block][lane][8 tokens], written through")
    for tp in range(2):
        for j in range(8):
            if tp == 0 and j % 2 == 0: A(f"s_waitcnt lgkmcnt({3 - j//2})")
            d = 70 + 4*j + 2*tp
            A(f"v_pk_fma_f32 v[{d}:{d+1}], v[{d}:{d+1}], v[{20+2*j}:{21+2*j}], v[{20+2*j}:{21+2*j}] op_sel:[0,0,1] op_sel_hi:[1,0,1]")
        for t in (2*tp, 2*tp + 1):
            for jj in range(4): A(f"v_cvt_pk_bf16_f32 v{44+4*t+jj}, v{70+4*(2*jj)+t}, v{70+4*(2*jj+1)+t}")
            A(f"buffer_store_dwordx4 v[{44+4*t}:{47+4*t}], v62, s[{rS}:{rS+3}], s48 offen offset:{t*1024} sc1")
    if o.get("early"): stamp(A, o, 4)
    if bm == 2: bias1(); bias2()
    gen_ln_tail(A, o, 6 if bm == 2 else 0)
    if bm == 3: bias1(); bias2()
    if bm == 1: bias1()
def ln_stat_issue(A):
    for q in range(4): A(f"buffer_load_dwordx4 v[{32+4*q}:{35+4*q}], v1, s[{rM}:{rM+3}], s50 offen offset:{1024*q}")
def ln_stat_loads(A, issue=True):
    A.c("row-wise copy of this wave's two LayerNorm rows")
    ln_rowbase(A)
    A("s_lshr_b32 s48, s62, 1\ns_lshl_b32 s48, s48, 15\ns_and_b32 s49, s62, 1\ns_lshl_b32 s49, s49, 12\ns_add_u32 s50, s50, s48\ns_add_u32 s50, s50, s49\nv_lshlrev_b32 v1, 4, v2")
    A("s_waitcnt lgkmcnt(0)")
    srd(A, rM, sX, 0, S*D*2)
    if issue: ln_stat_issue(A)
    A("v_add_u32 v76, s52, v1")
def ln_stats(A, younger, via=False):
    A.c("mean / variance of two rows (sums taken on x - first element of the row)")
    pr = lambda r_: f"v[{r_}:{r_+1}]"
    for r_ in range(2):
        A(f"s_waitcnt vmcnt({younger + 2*(1 - r_)})")
        b = 32 + 8*r_; s1 = 64 + 4*r_; s2 = 66 + 4*r_; pv = 72 + 2*r_
        if via: A(f"ds_write_b128 v76, v[{b}:{b+3}] offset:{16384 + 2048*r_}\nds_write_b128 v76, v[{b+4}:{b+7}] offset:{16384 + 2048*r_ + 1024}")
        A(f"v_readfirstlane_b32 s{58+r_}, v{b}\ns_nop 0\ns_lshl_b32 s{58+r_}, s{58+r_}, 16\nv_mov_b32 v{pv}, s{58+r_}\nv_mov_b32 v{pv+1}, s{58+r_}")
        for q in range(8):
            A(f"v_lshlrev_b32 v{48+2*q}, 16, v{b+q}\nv_and_b32 v{49+2*q}, 0xffff0000, v{b+q}")
        for q in range(8): A(f"v_pk_add_f32 {pr(48+2*q)}, {pr(48+2*q)}, {pr(pv)} neg_lo:[0,1] neg_hi:[0,1]")
        A(f"v_pk_add_f32 {pr(s1)}, {pr(48)}, {pr(50)}\nv_pk_mul_f32 {pr(s2)}, {pr(48)}, {pr(48)}\nv_pk_fma_f32 {pr(s2)}, {pr(50)}, {pr(50)}, {pr(s2)}")
        for q in range(2, 8): A(f"v_pk_add_f32 {pr(s1)}, {pr(s1)}, {pr(48+2*q)}\nv_pk_fma_f32 {pr(s2)}, {pr(48+2*q)}, {pr(48+2*q)}, {pr(s2)}")
        A(f"v_add_f32 v{s1}, v{s1}, v{s1+1}\nv_add_f32 v{s2}, v{s2}, v{s2+1}")
    A("v_cmp_gt_u32 vcc, 32, v2\ns_nop 0")
    A("v_permlane32_swap_b32 v64, v68\nv_permlane32_swap_b32 v66, v70\nv_cndmask_b32 v72, v74, v72, vcc")
    A("v_add_f32 v64, v64, v68\nv_add_f32 v66, v66, v70\nv_mov_b32 v65, v64\nv_mov_b32 v67, v66\ns_nop 1")
    A("v_permlane16_swap_b32 v64, v65\nv_permlane16_swap_b32 v66, v67\nv_add_f32 v64, v64, v65\nv_add_f32 v66, v66, v67")
    for sh in (8, 4, 2, 1):
        A("s_nop 0" if sh != 8 else "s_nop 0")
        A(f"v_add_f32_dpp v64, v64, v64 row_ror:{sh} row_mask:0xf bank_mask:0xf\nv_add_f32_dpp v66, v66, v66 row_ror:{sh} row_mask:0xf bank_mask:0xf")
    A.c("a = gs / sqrt(var + eps), b = -mean * a  (gs: constant folded out again in the GELU)")
    A(f"v_mul_f32 v64, {f32(1.0/D)}, v64\nv_mul_f32 v66, {f32(1.0/D)}, v66\nv_fma_f32 v66, -v64, v64, v66\nv_max_f32 v66, 0, v66\nv_add_f32 v66, {f32(1e-5)}, v66")
    A(f"v_rsq_f32 v66, v66\nv_add_f32 v64, v64, v72\nv_mul_f32 v66, {f32(GS)}, v66\nv_mul_f32 v67, v64, v66\nv_sub_f32 v67, 0, v67")
    A(f"v_lshrrev_b32 v65, 5, v2\nv_lshlrev_b32 v65, 3, v65\ns_lshl_b32 s58, s62, 4\ns_add_u32 s58, s58, {LDS_LN}\nv_add_u32 v65, s58, v65")
    A("ds_write_b64 v65, v[66:67]\ns_waitcnt lgkmcnt(0)")
def gen_ln(A, o):
    A.c("==== LayerNorm of 8 rows: s = 32*kb + 16*(j/4) + 4*g + j%4, thread = 4 channels")
    A("s_lshr_b32 s48, s2, 2\ns_and_b32 s49, s2, 3")
    A("s_lshl_b32 s50, s48, 5\ns_lshl_b32 s51, s49, 2\ns_add_u32 s50, s50, s51\ns_lshl_b32 s50, s50, 11")
    A("v_lshlrev_b32 v1, 3, v0")
    rowoff = [(16*(j//4) + j % 4) * 2048 for j in range(8)]
    for j in range(8): A(f"s_add_u32 s{52+j}, s50, {rowoff[j]}")
    A("s_waitcnt lgkmcnt(0)")
    if o.get("early"): stamp(A, o, 5)
    srd(A, rM, sX, 0, S*D*2)
    for j in range(8): A(f"buffer_load_dwordx2 v[{2+2*j}:{3+2*j}], v1, s[{rM}:{rM+3}], s{52+j} offen")
    if not o.get("pivearly", 1): A("s_barrier")
    A(f"s_add_u32 s50, s{sX}, s50\ns_addc_u32 s51, s{sX+1}, 0")
    A.c("pivot of each row (its first element): sums are taken on x - pivot")
    for j in range(8): A(f"s_load_dword s{52+j}, s[50:51], {rowoff[j]}")
    common_setup(A)
    if o.get("pivearly", 1): A("s_barrier"); A.c("(b0) the x loads are queued ahead of any weight traffic of this CU")
    A.c("both biases (4 values per lane and 16-column block)")
    srd(A, rM, sB2, 0, S*2)
    A("s_lshr_b32 s63, s3, 1\ns_lshl_b32 s63, s63, 7\nv_bfe_u32 v19, v0, 4, 2\nv_lshlrev_b32 v19, 3, v19")
    A(f"s_lshl_b32 s61, s{sST}, 8\ns_add_u32 s61, s61, s63\ns_lshl_b32 s62, s{sHK}, 6\ns_add_u32 s61, s61, s62")
    for fb in range(2): A(f"buffer_load_dwordx2 v[{192+2*fb}:{193+2*fb}], v19, s[{rM}:{rM+3}], s61 offen offset:{fb*32}")
    srd(A, rM, sB1, 0, F*2)
    A(f"s_lshl_b32 s61, s{sFT}, 8\ns_add_u32 s61, s61, s63")
    bl = o.get("biaslate", 0)
    if bl: A("s_mov_b32 s68, s61")
    else:
        for fb in range(4): A(f"buffer_load_dwordx2 v[{104+2*fb}:{105+2*fb}], v19, s[{rM}:{rM+3}], s61 offen offset:{fb*32}")
    srd(A, rS, sWS, WS_H, H_BYTES)
    A(f"v_lshrrev_b32 v62, 5, v0\nv_mul_u32_u24 v62, {HSTR}, v62")
    A("v_bfe_u32 v63, v0, 4, 1\nv_lshlrev_b32 v63, 12, v63\nv_add_u32 v62, v62, v63")
    A("v_and_b32 v63, 15, v0\nv_lshlrev_b32 v63, 4, v63\nv_add_u32 v62, v62, v63")
    A("s_lshl_b32 s48, s48, 13\ns_lshl_b32 s49, s49, 8\ns_add_u32 s48, s48, s49")
    A(f"v_lshrrev_b32 v64, 4, v0\nv_lshlrev_b32 v64, 4, v64\nv_add_u32 v64, {LDS_LN}, v64")
    A(f"v_and_b32 v65, 3, v0\nv_lshlrev_b32 v65, 4, v65\nv_bfe_u32 v66, v0, 2, 1\nv_lshlrev_b32 v66, 2, v66\nv_add_u32 v65, v65, v66\nv_add_u32 v65, {LDS_LN}, v65")
    A("s_waitcnt lgkmcnt(0)")
    make_tag(A)
    if o.get("early"): stamp(A, o, 6)
    for j in range(8): A(f"s_lshl_b32 s{52+j}, s{52+j}, 16")
    for j in range(8):
        A(f"s_waitcnt vmcnt({(9 if bl else 13)-j})")
        if o.get("early") and j == 0: stamp(A, o, 9)
        for c in range(4):
            src = 2 + 2*j + c//2; d = 70 + 4*j + c
            A(f"v_lshlrev_b32 v{d}, 16, v{src}" if c % 2 == 0 else f"v_and_b32 v{d}, 0xffff0000, v{src}")
        for c in range(4): A(f"v_subrev_f32 v{70+4*j+c}, s{52+j}, v{70+4*j+c}")
        b = 70 + 4*j
        A(f"v_add_f32 v{20+j}, v{b}, v{b+1}\nv_mul_f32 v{28+j}, v{b}, v{b}")
        A(f"v_add_f32 v{20+j}, v{20+j}, v{b+2}\nv_fmac_f32 v{28+j}, v{b+1}, v{b+1}")
        A(f"v_add_f32 v{20+j}, v{20+j}, v{b+3}\nv_fmac_f32 v{28+j}, v{b+2}, v{b+2}\nv_fmac_f32 v{28+j}, v{b+3}, v{b+3}")
    stamp(A, o, 1)
    A.c("16 partial sums -> wave totals (half/row swaps, then rotations inside 16 lanes)")
    A("s_nop 1")
    for p in range(8): A(f"v_permlane32_swap_b32 v{20+2*p}, v{21+2*p}")
    for p in range(8): A(f"v_add_f32 v{20+2*p}, v{20+2*p}, v{21+2*p}")
    A("s_nop 1")
    for q in range(4): A(f"v_permlane16_swap_b32 v{20+4*q}, v{22+4*q}")
    for q in range(4): A(f"v_add_f32 v{40+q}, v{20+4*q}, v{22+4*q}")
    for sh in (8, 4, 2, 1):
        A("s_nop 1")
        for q in range(4): A(f"v_add_f32_dpp v{40+q}, v{40+q}, v{40+q} row_ror:{sh} row_mask:0xf bank_mask:0xf")
    A("ds_write_b128 v64, v[40:43]")
    A("s_waitcnt lgkmcnt(0)")
    if o.get("early"): stamp(A, o, 7)
    A("s_barrier"); A.c("(b1)")
    if o.get("early"): stamp(A, o, 8)
    for w in range(4): A(f"ds_read2_b32 v[{44+2*w}:{45+2*w}], v65 offset0:{16*w} offset1:{16*w+2}")
    A("s_waitcnt lgkmcnt(0)")
    A("v_add_f32 v44, v44, v46\nv_add_f32 v45, v45, v47\nv_add_f32 v48, v48, v50\nv_add_f32 v49, v49, v51\nv_add_f32 v44, v44, v48\nv_add_f32 v45, v45, v49")
    A(f"v_mul_f32 v44, {f32(1.0/D)}, v44\nv_mul_f32 v45, {f32(1.0/D)}, v45")
    A("v_fma_f32 v45, -v44, v44, v45\nv_max_f32 v45, 0, v45")
    A.c("a = gs / sqrt(var + eps), b = -mean * a  (gs: constant folded out again in the GELU)")
    A(f"v_add_f32 v45, {f32(1e-5)}, v45\nv_rsq_f32 v45, v45\ns_nop 0\nv_mul_f32 v45, {f32(GS)}, v45\nv_mul_f32 v44, v44, v45\nv_sub_f32 v44, 0, v44")
    A("s_nop 1")
    gmap = [0, 2, 1, 3]
    for e in range(8):
        j = gmap[e % 4] + 4*(e // 4)
        A(f"v_readlane_b32 s{52+j}, v45, {e}\nv_readlane_b32 s{60+j}, v44, {e}")
    A("s_nop 1")
    for j in range(8): A(f"v_mov_b32 v{20+j}, s{60+j}")
    A.c("h leaves in MFMA operand order: [d-tile][kb][16-channel block][lane][8 tokens], written through")
    for t in range(4):
        for j in range(8): A(f"v_fma_f32 v{70+4*j+t}, v{70+4*j+t}, s{52+j}, v{20+j}")
        for jj in range(4): A(f"v_cvt_pk_bf16_f32 v{44+4*t+jj}, v{70+4*(2*jj)+t}, v{70+4*(2*jj+1)+t}")
        A(f"buffer_store_dwordx4 v[{44+4*t}:{47+4*t}], v62, s[{rS}:{rS+3}], s48 offen offset:{t*1024} sc1")
    if o.get("early"): stamp(A, o, 4)
    gen_ln_tail(A, o)
def gen_ln_tail(A, o, younger=0):
    A.c("hand-off 1: wave w wrote d-tiles 2w, 2w+1 -> word (wg) of sets (w, replica 0/1)")
    A(f"s_lshr_b32 s48, s2, 3\ns_lshl_b32 s48, s48, 7\ns_and_b32 s49, s2, 7\ns_lshl_b32 s49, s49, 2\ns_add_u32 s48, s48, s49\ns_lshl_b32 s49, s3, 13\ns_add_u32 s48, s48, s49\ns_add_u32 s48, s48, {S1_OFF}")
    A(f"v_and_b32 v2, 63, v0\nv_lshlrev_b32 v3, 12, v2\nv_mov_b32 v4, s{sTAG}")
    if o.get("wsplit", 64): A("s_barrier")
    A(f"s_waitcnt vmcnt({younger})")
    A(f"s_mov_b64 exec, 3\nbuffer_store_dword v4, v3, s[{rF}:{rF+3}], s48 offen sc1\ns_mov_b64 exec, -1")
    stamp(A, o, 2)
    A("s_barrier"); A.c("(b2)")
    A.c("the die this wave runs on (the split-K partner, id ^ 8, picks its store flavour from it)")
    A("s_and_b32 s62, s3, 1\ns_lshr_b32 s63, s3, 1")
    A(f"s_lshl_b32 s54, s2, 10\ns_lshl_b32 s55, s3, 8\ns_add_u32 s54, s54, s55\ns_add_u32 s54, s54, {S3_OFF}\ns_xor_b32 s55, s54, 0x2000")
    A(f"s_getreg_b32 s64, hwreg(HW_REG_XCC_ID, 0, 4)\ns_add_u32 s64, s64, 1\ns_add_u32 s64, s64, s{sTAG}\nv_mov_b32 v6, s64\nv_mov_b32 v7, 128")
    A(f"s_mov_b64 exec, 1\nbuffer_store_dword v6, v7, s[{rF}:{rF+3}], s54 offen sc1\ns_mov_b64 exec, -1")

def rd_w(slot, fb):
    hi = slot >= 2; base = (slot % 2) * 32768
    return [f"ds_read_b64_tr_b16 v[{WB+8*fb+4*ks+2*r_}:{WB+8*fb+4*ks+2*r_+1}], v{VWA+4*hi+fb} offset:{base + ks*8192 + r_*4096}" for ks in range(2) for r_ in range(2)]
def rd_h(slot, hb):
    hi = slot >= 2; base = (slot % 2) * 32768
    return [f"ds_read_b128 v[{hb+16*ks+4*t}:{hb+16*ks+4*t+3}], v{VHA+hi} offset:{base + 16384 + ks*8192 + t*1024}" for t in range(4) for ks in range(2)]
def step(A, slot, o={}):
    hb, hn = HB[slot % 2], HB[1 - slot % 2]
    nx = (slot + 1) % R
    first = rd_w(slot, 1) + rd_w(slot, 2) + rd_w(slot, 3)
    second = rd_w(nx, 0) + rd_h(nx, hn)
    m = 0; flip = 0
    for fb in range(4):
        if fb == 0: A("s_waitcnt lgkmcnt(0)")
        if fb == 1: A(f"s_waitcnt lgkmcnt({8 if o.get('rd2') else 4})")
        if fb == 2:
            A("s_waitcnt lgkmcnt(0)\ns_barrier")
            if slot == R - 1 and o.get("esend", 1): A("s_cmp_eq_u32 s65, s69\ns_cbranch_scc1 " + ("L_c_last" if o.get("egelu", 0) else "L_c_epi2"))
        for t in (range(4) if fb % 2 == 0 else range(3, -1, -1)):
            a = ACC + 16*fb + 4*t
            for ks in ((1, 0) if flip else (0, 1)):
                w = WB + 8*fb + 4*ks; h = hb + 16*ks + 4*t
                A(f"v_mfma_f32_16x16x32_bf16 v[{a}:{a+3}], v[{w}:{w+3}], v[{h}:{h+3}], v[{a}:{a+3}]")
                if o.get("rd2"):
                    if m < 6: A(first[2*m]); A(first[2*m+1])
                    elif 16 <= m < 22: A(second[2*(m-16)]); A(second[2*(m-16)+1])
                elif m < 12: A(first[m])
                elif 16 <= m < 28: A(second[m-16])
                m += 1
            flip ^= 1

def last_mfmas():
    o_ = []; flip = 0; hb = HB[1]
    for fb in (2, 3):
        for t in (range(4) if fb % 2 == 0 else range(3, -1, -1)):
            a = ACC + 16*fb + 4*t
            for ks in ((1, 0) if flip else (0, 1)):
                w = WB + 8*fb + 4*ks; h = hb + 16*ks + 4*t
                o_.append(f"v_mfma_f32_16x16x32_bf16 v[{a}:{a+3}], v[{w}:{w+3}], v[{h}:{h+3}], v[{a}:{a+3}]")
            flip ^= 1
    return o_
def cons_prologue(A, o, g1):
    half = o.get("half", 1)
    A.c(f"==== GEMM{1 if g1 else 2} set-up: wave = 64 weight columns x 64 channels, accumulators start from the bias")
    A("v_lshrrev_b32 v3, 4, v2\nv_and_b32 v4, 15, v2")
    nb = 4 if g1 else 2
    A.c("LDS read addresses (32-byte column blocks are XOR-swizzled with row%8)")
    A("v_lshrrev_b32 v6, 2, v4\nv_lshl_add_u32 v7, v3, 2, v6")
    A("v_and_b32 v18, 7, v7\nv_lshlrev_b32 v7, 8, v7\nv_and_b32 v19, 3, v4\nv_lshl_add_u32 v7, v19, 3, v7")
    A("s_lshl_b32 s50, s63, 2")
    if not g1: A(f"s_lshl_b32 s51, s{sHK}, 1\ns_xor_b32 s50, s50, s51\ns_xor_b32 s50, s50, 2")
    for fb in range(4):
        A(f"s_xor_b32 s51, s50, {fb}\nv_xor_b32 v19, s51, v18\nv_lshl_add_u32 v{VWA+fb}, v19, 5, v7\nv_add_u32 v{VWA+4+fb}, 0x10000, v{VWA+fb}")
    A(f"s_lshl_b32 s50, s62, 12\nv_lshl_add_u32 v{VHA}, v2, 4, s50\nv_add_u32 v{VHA+1}, 0x10000, v{VHA}")
    if g1 and o.get("bm", 3 if o.get("stamp") else 4) < 4: A("s_waitcnt vmcnt(0)")
    for fb in range(4):
        for r_ in range(4):
            a = ACC + 16*fb + r_
            if fb >= 4 - nb:
                src = (104 if g1 else 192) + 2*(fb - (4 - nb)) + r_//2
                A(f"v_lshlrev_b32 v{a}, 16, v{src}" if r_ % 2 == 0 else f"v_and_b32 v{a}, 0xffff0000, v{src}")
                if g1: A(f"v_mul_f32 v{a}, {f32(GS)}, v{a}")
            else: A(f"v_mov_b32 v{a}, 0")
            for t in range(1, 4): A(f"v_mov_b32 v{a+4*t}, v{a}")
    if g1:
        A.c("u address, GELU constants, hand-off 2 words")
        srd(A, rS, sWS, WS_U, U_BYTES)
        A(f"s_cmp_ge_u32 s{sFT}, 14\ns_cselect_b32 s52, 1, 0\ns_cselect_b32 s53, 14, 0\ns_sub_u32 s53, s{sFT}, s53")
        if half: A(f"s_mul_i32 s48, s52, 56\ns_lshl_b32 s49, s53, 1\ns_add_u32 s48, s48, s49\ns_add_u32 s48, s48, s63")
        else: A(f"s_lshl_b32 s48, s{sFT}, 2\ns_lshl_b32 s49, s63, 1\ns_add_u32 s48, s48, s49")
        A(f"s_lshl_b32 s48, s48, 13\ns_mul_i32 s49, s{sDT1}, {USTR}\ns_add_u32 s48, s48, s49")
        A(f"s_lshl_b32 s49, s62, 12\ns_add_u32 s48, s48, s49\ns_add_u32 s49, s48, {(28 if half else 1)*8192}\nv_lshlrev_b32 v4, 4, v2")
        A(f"v_mov_b32 v22, {f32(GK)}\nv_mov_b32 v23, v22\nv_mov_b32 v24, {f32(GS)}\nv_mov_b32 v25, v24")
        if o.get("wl"): A(f"s_lshl_b32 s53, s53, 9\ns_lshl_b32 s50, s{sDT1}, 1\ns_add_u32 s52, s52, s50\ns_lshl_b32 s52, s52, 14\ns_add_u32 s52, s52, s53\ns_lshl_b32 s53, s3, 7\ns_add_u32 s52, s52, s53\ns_add_u32 s52, s52, {S2_OFF}\ns_add_u32 s53, s52, 8192")
        else: A(f"s_lshl_b32 s53, s53, 7\ns_lshl_b32 s50, s{sDT1}, 1\ns_add_u32 s52, s52, s50\ns_lshl_b32 s52, s52, 12\ns_add_u32 s52, s52, s53\ns_lshl_b32 s53, s3, 2\ns_add_u32 s52, s52, s53\ns_add_u32 s52, s52, {S2_OFF}\ns_add_u32 s53, s52, 2048")
        A(f"v_mov_b32 v20, 0\nv_mov_b32 v21, s{sTAG}")
    else:
        A.c("output rows kept here (s56/s57) and rows finished by the partner (s52/s53)")
        srd(A, rS, sOUT, 0, S*D*2)
        A("v_lshlrev_b32 v3, 13, v3\nv_lshl_add_u32 v20, v4, 3, v3\nv_add_u32 v21, 4096, v20")
        A(f"s_lshl_b32 s56, s{sST}, 7\ns_lshl_b32 s57, s63, 6\ns_add_u32 s56, s56, s57\ns_lshl_b32 s57, s{sHK}, 5\ns_add_u32 s56, s56, s57\ns_lshl_b32 s56, s56, 11")
        A(f"s_lshl_b32 s57, s{sDT2}, 8\ns_add_u32 s56, s56, s57\ns_lshl_b32 s57, s62, 7\ns_add_u32 s56, s56, s57")
        A("s_xor_b32 s52, s56, 0x10000\ns_add_u32 s53, s52, 32768\ns_add_u32 s57, s56, 32768")
        A(f"v_mov_b32 v22, 0\nv_mov_b32 v23, s{sTAG}")
    A(f"s_mov_b32 s{sPH}, {1 if g1 else 2}\ns_mov_b32 s65, {(N1 if g1 else N2)//R}")
    if o.get("esend", 1): A(f"s_mov_b32 s69, {0xff if g1 and not o.get('egelu', 0) else 1}")

def cons_loop(A, o):
    A("s_barrier"); A.c("(b3) the polling wave has seen hand-off 1")
    A("L_c_main:")
    A("s_barrier"); A.c("stage 0 is in LDS")
    A(f"v_mov_b32 v5, 128\ns_cmp_eq_u32 s{sPH}, 1\ns_cbranch_scc1 L_c_noid")
    A(f"buffer_load_dword v30, v5, s[{rF}:{rF+3}], s55 offen sc1")
    if not o.get('early'): stamp(A, o, 7, 2)
    A("s_branch L_c_go\nL_c_noid:")
    stamp(A, o, 3, 0)
    A("L_c_go:")
    for x in rd_w(0, 0) + rd_h(0, HB[0]): A(x)
    A.c("==== main loop (both GEMMs): 4 steps of K=64; the barrier inside a step frees its slot and publishes the next stage")
    A(f".p2align {o.get('calign', 6)}")
    for _ in range(o.get("cpad", 0)): A("s_nop 0")
    A("L_c_loop:")
    for r_ in range(R): step(A, r_, o)
    if o.get("egelu", 0):
        A(f"s_sub_u32 s65, s65, 1\ns_branch L_c_loop\nL_c_last:\ns_cmp_eq_u32 s{sPH}, 2\ns_cbranch_scc1 L_c_epi2")
        return
    A("s_sub_u32 s65, s65, 1\ns_cmp_lg_u32 s65, 0\ns_cbranch_scc1 L_c_loop")
    A("s_waitcnt lgkmcnt(0)")
    if not o.get("esend", 1): A(f"s_cmp_eq_u32 s{sPH}, 2\ns_cbranch_scc1 L_c_epi2")

def cons_epi1(A, o):
    half = o.get("half", 1)
    A.c("==== GELU(tanh): y = gs*x is in the accumulators; gelu(x) = y / (gs + gs*2^(-y*(y*y + k)))")
    if not o.get('early'): stamp(A, o, 4, 1)
    A("s_nop 1")
    pr = lambda r_: f"v[{r_}:{r_+1}]"
    flag = lambda off: A(f"s_mov_b64 exec, 1\nbuffer_store_dword v21, v20, s[{rF}:{rF+3}], s{53 if off else 52} offen sc1\ns_mov_b64 exec, -1")
    hq = o.get("hq", 6)
    for kbl in range(2):
        for t in range(4):
            regs = [ACC + 16*(2*kbl + h) + 4*t + r_ for h in range(2) for r_ in range(4)]
            q = 4*kbl + t; tb = WB + (q % 2) * 16; d = 128 + 4*q
            ins = [f"v_pk_fma_f32 {pr(tb+e)}, {pr(regs[e])}, {pr(regs[e])}, v[22:23]" for e in range(0, 8, 2)]
            ins += [f"v_pk_mul_f32 {pr(tb+e)}, {pr(tb+e)}, {pr(regs[e])} neg_lo:[1,0] neg_hi:[1,0]" for e in range(0, 8, 2)]
            ins += [f"v_exp_f32 v{tb+e}, v{tb+e}" for e in range(8)]
            ins += [f"v_pk_fma_f32 {pr(tb+e)}, {pr(tb+e)}, v[24:25], v[24:25]" for e in range(0, 8, 2)]
            ins += [f"v_rcp_f32 v{tb+e}, v{tb+e}" for e in range(8)]
            ins += [f"v_pk_mul_f32 {pr(tb+e)}, {pr(tb+e)}, {pr(regs[e])}" for e in range(0, 8, 2)]
            ins += [f"v_cvt_pk_bf16_f32 v{d+e}, v{tb+2*e}, v{tb+2*e+1}" for e in range(4)]
            if q == 0 and o.get("egelu", 0):
                for m_ in last_mfmas():
                    A(m_); c_ = 0
                    while ins and c_ < 8:
                        x = ins.pop(0); A(x); c_ += 8 if x.startswith(("v_exp", "v_rcp")) else 4
            for x in ins: A(x)
            A(f"buffer_store_dwordx4 v[{d}:{d+3}], v4, s[{rS}:{rS+3}], s{48+kbl} offen offset:{t*1024} sc1")
            if half and q == hq:
                A.c("hand-off 2a: the first four fragments (first pass of GEMM2's K order) have landed")
                A(f"s_waitcnt vmcnt({hq-3})"); flag(0)
                if not o.get('early'): stamp(A, o, 6)
    if not o.get('early'): stamp(A, o, 5)
    gate = o.get("gate", 1)
    if half:
        if o.get("spec", 1) & 16: A("s_barrier")
        if gate == 0: A("s_barrier")
        if gate == 2: A("s_waitcnt vmcnt(1)\ns_barrier")
        A("s_waitcnt vmcnt(0)"); flag(2048)
        if gate == 1: A("s_barrier")
        A.c("(b4) the polling wave may start")
    else:
        A("s_waitcnt vmcnt(0)"); flag(0)
        stamp(A, o, 6)
        A("s_barrier"); A.c("(b4)")

def cons_epi2(A, o):
    A("L_c_epi2:")
    A.c("==== split-K pair: the half the partner finishes goes, rounded, into the partner's own output rows")
    if not o.get('early'): stamp(A, o, 8, 3)
    T, U_ = 96, 128
    def oaddr(sb, r_, base): return f"v{20 + r_//2}, s[{rS}:{rS+3}], s{base + sb} offen offset:{(r_%2)*2048}"
    es = o.get("esend", 1)
    A("s_waitcnt vmcnt(0)\nv_readfirstlane_b32 s61, v30")
    def cvts(q):
        sb, r_ = q // 4, q % 4
        a = ACC + 16*sb + r_; d = U_ + 8*sb + 2*r_
        return [f"v_cvt_pk_bf16_f32 v{d}, v{a}, v{a+4}", f"v_cvt_pk_bf16_f32 v{d+1}, v{a+8}, v{a+12}"]
    if not es:
        for q in range(8):
            for x in cvts(q): A(x)
    def send(flag):
        mf = last_mfmas() if es else []
        for q in range(8):
            sb, r_ = q // 4, q % 4; d = U_ + 8*sb + 2*r_
            if es:
                c = cvts(q)
                A(mf[2*q]); A(c[0]); A(c[1]); A(mf[2*q+1])
            A(f"buffer_store_dwordx2 v[{d}:{d+1}], {oaddr(sb, r_, 52)} {flag}")
        A("s_waitcnt vmcnt(0)")
        A(f"s_mov_b64 exec, 1\nbuffer_store_dword v23, v22, s[{rF}:{rF+3}], s54 offen {flag}")
    A.c("partner reported the same die: the shared L2 carries it; otherwise (or not yet known) write through")
    A("s_cmp_eq_u32 s61, s64\ns_cbranch_scc0 L_c_far")
    send("")
    A("s_branch L_c_sent\nL_c_far:")
    send("sc1")
    A("L_c_sent:")
    poll(A, "L_c_p3", f"buffer_load_dword v18, v22, s[{rF}:{rF+3}], s55 offen sc1", [18], mask=1)
    if not o.get('early'): stamp(A, o, 9)
    for sb in range(2):
        for r_ in range(4):
            d = T + 8*sb + 2*r_
            A(f"buffer_load_dwordx2 v[{d}:{d+1}], {oaddr(sb, r_, 56)} sc1")
    for sb in range(2):
        for r_ in range(4):
            q = 4*sb + r_
            A("s_waitcnt vmcnt(7)")
            a = ACC + 32 + 16*sb + r_; d = T + 8*sb + 2*r_; t_ = T + 16 + 4*(q % 2)
            A(f"v_lshlrev_b32 v{t_}, 16, v{d}\nv_and_b32 v{t_+1}, 0xffff0000, v{d}\nv_lshlrev_b32 v{t_+2}, 16, v{d+1}\nv_and_b32 v{t_+3}, 0xffff0000, v{d+1}")
            for t in range(4): A(f"v_add_f32 v{a+4*t}, v{a+4*t}, v{t_+t}")
            A(f"v_cvt_pk_bf16_f32 v{d}, v{a}, v{a+4}\nv_cvt_pk_bf16_f32 v{d+1}, v{a+8}, v{a+12}")
            A(f"buffer_store_dwordx2 v[{d}:{d+1}], {oaddr(sb, r_, 56)}")
    if o.get("stamp"):
        A("s_cmp_lg_u32 s3, 0\ns_cbranch_scc1 L_end\ns_waitcnt vmcnt(0)")
        stamp(A, o, 10)
        stamp_flush(A, o, range(11))
        A("s_sub_u32 s94, s96, s94\nv_mov_b32 v1, s94\nglobal_store_dword v28, v1, s[92:93] offset:56")
        A("s_sub_u32 s98, s100, s98\nv_mov_b32 v1, s98\nglobal_store_dword v28, v1, s[92:93] offset:60")
    A("s_endpgm")

def ld_waddr(A, o, g1):
    half = o.get("half", 1) and not g1
    pitch = P1 if g1 else P2
    A.c("per-lane source offsets of this wave's four 1 KB weight pieces (4 rows x 256 B, swizzled), stream base s[64:65]")
    srd(A, rW, sW1 if g1 else sW2, 0, S*F*2)
    A(f"s_mov_b32 s48, {pitch}\ns_lshl_b32 s49, s62, 4\ns_lshl_b32 s50, s{sFT if g1 else sST}, 8")
    if half: A("s_and_b32 s51, s49, 32\ns_add_u32 s49, s49, s51")
    for j in range(4):
        A(f"v_add_u32 v6, {4*(j%2)}, v3\nv_xor_b32 v6, v6, v5\nv_lshl_add_u32 v6, v6, 5, v4")
        A(f"s_add_u32 s51, s49, {4*j}\nv_add_u32 v7, s51, v3\nv_mul_lo_u32 v7, v7, s48\nv_add3_u32 v{8+j}, v7, v6, s50")
        if j: A(f"v_subrev_u32 v{8+j}, {j*1024}, v{8+j}")
    if g1: A(f"s_mov_b32 s64, s{sW1}\ns_mov_b32 s65, s{sW1+1}")
    else: A(f"s_mul_i32 s50, s{sHK}, {1792*P2}\ns_add_u32 s64, s{sW2}, s50\ns_addc_u32 s65, s{sW2+1}, 0")
def ld_haddr(A, g1):
    A(f"s_mul_i32 s48, s{sDT1 if g1 else sDT2}, {HSTR if g1 else USTR}\ns_add_u32 s48, s48, s52\nv_lshl_add_u32 v12, v2, 4, s48")
    if SPEC: A("v_and_b32 v26, 31, v2\nv_lshl_add_u32 v26, v26, 7, s48\nv_lshrrev_b32 v27, 5, v2\nv_lshl_add_u32 v26, v27, 14, v26")
    if g1: A(f"s_add_u32 s66, s{sWS}, {WS_H}\ns_addc_u32 s67, s{sWS+1}, 0")
    else: A(f"s_mul_i32 s51, s{sHK}, {N2*16384}\ns_add_u32 s51, s51, {WS_U}\ns_add_u32 s66, s{sWS}, s51\ns_addc_u32 s67, s{sWS+1}, 0")
def issue_w(A, o, g1, m0):
    A(m0 + "\ns_nop 0")
    for j in range(4): A(f"global_load_lds_dwordx4 v{8+j}, s[64:65] offset:{j*1024}")
    A(f"s_add_u32 s64, s64, {64*P1 if g1 else (128 if o.get('half', 1) else 64)*P2}\ns_addc_u32 s65, s65, 0")
def issue_h(A, m0):
    A(m0 + "\ns_nop 0")
    for j in range(4): A(f"global_load_lds_dwordx4 v12, s[66:67] offset:{j*1024} {HF}")
    A("s_add_u32 s66, s66, 16384\ns_addc_u32 s67, s67, 0")
def spec_touch(A, o, g1):
    m = o.get("spec", 1)
    if not m & (1 if g1 else 2): return
    lab = f"L_l_nsp{1 if g1 else 2}"
    if m & 4: A(f"s_cmp_eq_u32 s3, 4\ns_cbranch_scc1 {lab}")
    A("global_load_dword v31, v26, s[66:67] sc1")
    if m & 8: A("v_add_u32 v27, 0x8000, v26\nglobal_load_dword v31, v27, s[66:67] sc1")
    if m & 4:
        A(f"s_cmp_lg_u32 s3, 5\ns_cbranch_scc1 {lab}\nglobal_load_dword v31, v26, s[66:67] offset:-4096 sc1")
        if m & 8: A("global_load_dword v31, v27, s[66:67] offset:-4096 sc1")
        A(f"{lab}:")
def ld_main(A, o, g1, pre_bar, post_bar, after_issue):
    N = N1 if g1 else N2; P = "1" if g1 else "2"
    for z in range(R): issue_h(A, f"s_add_u32 m0, s52, {z*32768 + 16384}")
    A("s_waitcnt vmcnt(12)")
    if g1 or not o.get('early'): stamp(A, o, 3 if g1 else 6)
    A("s_barrier")
    for n, c in ((0, 8), (1, 12)):
        A(f"s_waitcnt vmcnt({c})\ns_barrier")
        issue_w(A, o, g1, f"s_add_u32 m0, s52, {n*32768}"); issue_h(A, "s_add_u32 m0, m0, 16384")
    A(f"s_mov_b32 s53, 2\n.p2align 6\nL_l_loop{P}:")
    A(f"s_and_b32 s54, s53, {R-1}\ns_lshl_b32 s54, s54, 15\ns_waitcnt vmcnt(16)")
    if pre_bar: pre_bar()
    A("s_barrier")
    if post_bar: post_bar()
    issue_w(A, o, g1, "s_add_u32 m0, s52, s54"); issue_h(A, "s_add_u32 m0, m0, 16384")
    if after_issue: after_issue()
    m = N - R if g1 else o.get("m2", 20)
    A(f"s_add_u32 s53, s53, 1\ns_cmp_lt_u32 s53, {m}\ns_cbranch_scc1 L_l_loop{P}")
    if g1: return
    A.c("from here on run three stages ahead instead of four")
    A(f"s_waitcnt vmcnt(16)\ns_barrier\n.p2align 6\nL_l_loopb:")
    A(f"s_and_b32 s54, s53, {R-1}\ns_lshl_b32 s54, s54, 15\ns_waitcnt vmcnt(8)\ns_barrier")
    issue_w(A, o, g1, "s_add_u32 m0, s52, s54"); issue_h(A, "s_add_u32 m0, m0, 16384")
    A(f"s_add_u32 s53, s53, 1\ns_cmp_lt_u32 s53, {N-R}\ns_cbranch_scc1 L_l_loopb")

def w2unit(A, dst, sbase, r0, cnt, skip):
    A(f"s_lshr_b32 s58, s{sXCD}, 2\ns_add_u32 s58, s58, {r0}\ns_and_b32 s59, s{sXCD}, 3\ns_lshl_b32 s59, s59, 10")
    A(f"v_and_b32 v{dst}, 7, v2\nv_lshl_add_u32 v{dst}, v{dst}, 7, s59\nv_lshrrev_b32 v6, 3, v2\nv_cmp_gt_u32 vcc, {cnt}, v6\nv_add_u32 v6, s{sbase}, v6")
    A(f"v_and_b32 v7, 1, v6\nv_mul_u32_u24 v7, 1792, v7\nv_and_b32 v6, -2, v6\nv_add3_u32 v7, v7, v6, s58")
    if skip: A("v_and_b32 v6, 0xffffffe0, v6\nv_add_u32 v7, v7, v6")
    A(f"v_lshl_add_u32 v{dst}, v7, 12, v{dst}\nv_mov_b32 v6, {OOB}\nv_cndmask_b32 v{dst}, v6, v{dst}, vcc")
def s2set(A, dst):
    A(f"s_lshl_b32 s{dst}, s{sDT2}, 1\ns_add_u32 s{dst}, s{dst}, s{sHK}\ns_lshl_b32 s{dst}, s{dst}, {14 if WL else 12}\ns_add_u32 s{dst}, s{dst}, {S2_OFF}")
def touch_flags(A, worker):
    if worker == "once":
        A.c("bring the hand-off lines into the memory-side cache early, each line once (wave 7; values unused)")
        A(f"s_lshl_b32 s48, s2, 7\ns_add_u32 s48, s48, {S1_OFF}\ns_lshl_b32 s49, s2, 8\ns_add_u32 s49, s49, {S2_OFF - 128}\ns_lshl_b32 s58, s2, 10\ns_add_u32 s58, s58, {S3_OFF - 3*128}")
        A("v_lshl_add_u32 v21, v2, 7, s58\nv_lshl_add_u32 v22, v2, 7, s49\nv_cmp_gt_u32 vcc, 3, v2\nv_mov_b32 v23, s48\ns_nop 0\nv_cndmask_b32 v21, v21, v22, vcc\nv_cmp_eq_u32 vcc, 0, v2\ns_nop 1\nv_cndmask_b32 v21, v21, v23, vcc")
        A(f"s_cmp_eq_u32 s3, 7\ns_cselect_b32 s48, 0, 0x7ff00000\ns_mov_b64 exec, 0x7ff\nbuffer_load_dword v31, v21, s[{rF}:{rF+3}], s48 offen sc1\ns_mov_b64 exec, -1")
        return
    if worker is None:
        A.c("bring the hand-off lines towards the caches early (wave 7; values unused)")
        A(f"s_cmp_eq_u32 s3, 7\ns_cselect_b32 s48, 0, 0x7ff00000\ns_add_u32 s49, s48, s56\nbuffer_load_dword v31, v13, s[{rF}:{rF+3}], s49 offen sc1")
        s2set(A, 58)
        A("v_lshl_add_u32 v21, v2, 7, s58")
        A(f"s_lshl_b32 s58, s2, 10\ns_add_u32 s58, s58, {S3_OFF - 32*128}\nv_lshl_add_u32 v22, v2, 7, s58\nv_cmp_gt_u32 vcc, 32, v2\ns_nop 1\nv_cndmask_b32 v21, v22, v21, vcc")
        A(f"s_mov_b32 exec_hi, 0xff\nbuffer_load_dword v31, v21, s[{rF}:{rF+3}], s48 offen sc1\ns_mov_b64 exec, -1")
        return
    lab = "L_l_nt" + ("w" if worker else "s")
    A.c("bring the hand-off lines towards the caches early (values unused)")
    A(f"s_cmp_lg_u32 s3, 7\ns_cbranch_scc1 {lab}")
    if worker: A(f"buffer_load_dword v31, v13, s[{rF}:{rF+3}], s56 offen sc1")
    s2set(A, 58)
    A("v_lshl_add_u32 v21, v2, 7, s58")
    if WL: A(f"buffer_load_dword v31, v21, s[{rF}:{rF+3}], 0 offen sc1\nv_add_u32 v21, 8192, v21\nbuffer_load_dword v31, v21, s[{rF}:{rF+3}], 0 offen sc1")
    A(f"s_lshl_b32 s58, s2, 10\ns_add_u32 s58, s58, {S3_OFF - 32*128}\nv_lshl_add_u32 v22, v2, 7, s58\nv_cmp_gt_u32 vcc, 32, v2\ns_nop 1\nv_cndmask_b32 v21, v22, v21, vcc")
    A(f"s_mov_b32 exec_hi, 0xff\nbuffer_load_dword v31, v21, s[{rF}:{rF+3}], 0 offen sc1\ns_mov_b64 exec, -1\n{lab}:")

def gen_loader(A, o):
    half = o.get("half", 1); nr = o.get("lnrows", 2); upw = o.get("upw", 7); prog = o.get("prog", 8)
    A("L_loader:")
    A.c("==== loader waves 4..7: all global->LDS traffic, hand-off polling, cache warming")
    A("s_sub_u32 s62, s3, 4\ns_lshl_b32 s52, s62, 12\nv_and_b32 v2, 63, v0")
    cw = o.get("cw", 2)
    if cw:
        A.c("pull this kernel's own text into L2 (read only)")
        A(f"s_cmp_ge_u32 s2, {8*cw}\ns_cbranch_scc1 L_l_ncw\ns_cmp_ge_u32 s62, 2\ns_cbranch_scc1 L_l_ncw\ns_getpc_b64 s[58:59]\nL_l_pc:")
        A(f"s_sub_u32 s58, s58, L_l_pc-{NAME}\ns_subb_u32 s59, s59, 0\ns_lshl_b32 s60, s62, 13\nv_lshl_add_u32 v21, v2, 7, s60")
        A(f"v_min_u32 v21, L_end-{NAME}, v21\nglobal_load_dword v31, v21, s[58:59]\nL_l_ncw:")
    A("v_lshrrev_b32 v3, 4, v2\nv_and_b32 v4, 15, v2\nv_lshrrev_b32 v5, 1, v4\nv_and_b32 v4, 1, v4\nv_lshlrev_b32 v4, 4, v4")
    ln2 = o.get("ln2", 2)
    p64 = o.get("p64", 64)
    if ln2 and p64:
        ln_stat_loads(A, issue=False)
        A(f"s_cmp_ge_u32 s2, {p64}\ns_cbranch_scc1 L_l_xlate")
        ln_stat_issue(A)
        A("L_l_xlate:")
    elif ln2: ln_stat_loads(A)
    else: A("s_waitcnt lgkmcnt(0)")
    common_setup(A)
    A.c("w1 warm-up pattern (v25): 3 row pairs per instruction; this die's 14 lines of the row of its parity, plus the")
    A.c("other row's lines for the tiles whose addresses get fewer L1 miss slots")
    A(f"v_mul_u32_u24 v13, 3641, v2\nv_lshrrev_b32 v13, 16, v13\nv_mul_u32_u24 v14, 18, v13\nv_sub_u32 v14, v2, v14")
    A(f"s_and_b32 s48, s{sXCD}, 3\ns_lshr_b32 s49, s{sXCD}, 2\ns_mul_i32 s58, s48, 14\ns_add_u32 s59, s48, 1\ns_and_b32 s59, s59, 3\ns_lshl_b32 s59, s59, 1")
    A("v_cmp_gt_u32 vcc, 14, v14\nv_add_u32 v16, s58, v14\nv_subrev_u32 v17, 14, v14\nv_lshrrev_b32 v18, 1, v17\nv_lshlrev_b32 v18, 3, v18\nv_and_b32 v17, 1, v17\nv_add3_u32 v17, v17, v18, s59")
    if o.get("dwrap", 1): A("v_subrev_u32 v18, 14, v17\nv_min_u32 v17, v17, v18")
    A("v_cmp_gt_u32 s[60:61], 14, v17\nv_add_u32 v17, s58, v17\nv_cndmask_b32 v16, v17, v16, vcc\ns_or_b64 s[60:61], s[60:61], vcc")
    A("s_xor_b32 s58, s49, 1\nv_mov_b32 v17, s58\nv_mov_b32 v18, s49\nv_cndmask_b32 v17, v17, v18, vcc\nv_lshl_add_u32 v17, v13, 1, v17")
    A(f"v_cmp_gt_u32 vcc, 3, v13\ns_and_b64 vcc, vcc, s[60:61]\nv_mul_u32_u24 v17, {P1}, v17\nv_lshl_add_u32 v25, v16, 7, v17\nv_mov_b32 v17, {OOB}\nv_cndmask_b32 v25, v17, v25, vcc")
    A(f"s_sub_u32 s48, s{sN}, {o.get('gperm', 0)}\ns_and_b32 s48, s48, 31\ns_mul_i32 s48, s48, {nr}\ns_add_u32 s48, s48, s62\ns_mul_i32 s55, s48, {6*P1}")
    srd(A, rH, sW1, 0, S*F*2)
    if ln2:
        pa = o.get("pfafter", 1)
        A(f"s_cmp_ge_u32 s62, {nr}\ns_cselect_b32 s55, 0x7ff00000, s55")
        if p64:
            A(f"s_cmp_lt_u32 s2, {p64}\ns_cbranch_scc1 L_l_xdone")
            if pa == 3: A(f"buffer_load_dword v31, v25, s[{rH}:{rH+3}], s55 offen\ns_mov_b32 s55, 0x7ff00000")
            ln_stat_issue(A)
            A("L_l_xdone:")
        if not pa: A(f"buffer_load_dword v31, v25, s[{rH}:{rH+3}], s55 offen")
        A(f"s_and_b32 s56, s{sDT1}, 6\ns_and_b32 s59, s{sXCD}, 1\ns_add_u32 s56, s56, s59\ns_lshl_b32 s56, s56, 12\ns_add_u32 s56, s56, {S1_OFF}")
        A("v_lshrrev_b32 v13, 1, v2\nv_lshlrev_b32 v13, 7, v13\nv_and_b32 v14, 1, v2\nv_lshl_add_u32 v13, v14, 4, v13")
        if o.get("early"): stamp(A, o, 4)
        tn = 1 if o.get("tonce", 1) else 2
        touch_flags(A, "once" if tn == 1 else None)
        if o.get("early"):
            stamp(A, o, 5); A("s_waitcnt vmcnt(3)"); stamp(A, o, 6)
        if pa: A(f"s_waitcnt vmcnt({tn + 2 if pa in (1, 3) else tn})\nbuffer_load_dword v31, v25, s[{rH}:{rH+3}], s55 offen")
        ln_stats(A, tn + 1, ln2 == 2)
        if o.get("early"): stamp(A, o, 1)
        make_tag(A)
        A("s_barrier"); A.c("(b1)")
    else:
        A("s_barrier"); A.c("(b0)")
        A(f"s_cmp_ge_u32 s62, {nr}\ns_cbranch_scc1 L_l_nopf\nbuffer_load_dword v31, v25, s[{rH}:{rH+3}], s55 offen\nL_l_nopf:")
    if o.get("tlb"):
        A.c("first touch of the workspace pages (padding words, values unused)")
        A("s_cmp_lg_u32 s3, 6\ns_cbranch_scc1 L_l_notlb")
        srd(A, rM, sWS, 0, 16 << 20)
        A(f"v_lshlrev_b32 v21, {o['tlb']}, v2\nv_add_u32 v21, {64*8192 if o['tlb'] > 19 else 0}, v21\nbuffer_load_dword v31, v21, s[{rM}:{rM+3}], 0 offen sc1\nL_l_notlb:")
    A("s_cmp_ge_u32 s2, 224\ns_cbranch_scc1 L_l_spare")
    lb = o.get("lb1", 0)
    if lb: A("s_waitcnt lgkmcnt(0)\ns_barrier")
    ld_waddr(A, o, True)
    ld_haddr(A, True)
    if not ln2:
        A(f"s_and_b32 s56, s{sDT1}, 6\ns_and_b32 s59, s{sXCD}, 1\ns_add_u32 s56, s56, s59\ns_lshl_b32 s56, s56, 12\ns_add_u32 s56, s56, {S1_OFF}")
        A("v_lshrrev_b32 v13, 1, v2\nv_lshlrev_b32 v13, 7, v13\nv_and_b32 v14, 1, v2\nv_lshl_add_u32 v13, v14, 4, v13")
        touch_flags(A, True)
    g1k = o.get("g1pf", 0); G0 = 342 - 28*g1k
    if g1k:
        A.c("late w1 rows: one touch per wave, spread over the steps")
        A(f"s_mul_i32 s51, s{sN}, {g1k}\ns_add_u32 s51, s51, s62\ns_add_u32 s51, s51, {G0}\ns_mul_i32 s51, s51, {6*P1}")
        A(f"s_lshr_b32 s55, s{sN}, 1\ns_add_u32 s55, s55, {o.get('g1in', 3)}\ns_cmp_ge_u32 s62, {g1k}\ns_cselect_b32 s55, 0xff, s55")
    if not ln2:
        A("s_waitcnt lgkmcnt(0)")
        make_tag(A)
    ws_ = o.get("wsplit", 64)
    if ws_:
        A("s_barrier"); A.c("(b1') the h stores are queued")
        A(f"s_cmp_lt_u32 s2, {ws_}\ns_cbranch_scc1 L_l_wlate")
        for z in range(R): issue_w(A, o, True, f"s_add_u32 m0, s52, {z*32768}")
        A("s_barrier\ns_branch L_l_wdone\nL_l_wlate:")
    A("s_barrier" if lb or ln2 else "s_barrier\ns_barrier"); A.c("(b2)")
    for z in range(R): issue_w(A, o, True, f"s_add_u32 m0, s52, {z*32768}")
    A("L_l_wdone:")
    pl = f"buffer_load_dwordx4 v[16:19], v13, s[{rF}:{rF+3}], s56 offen sc1"
    if not o.get("early"): stamp(A, o, 1)
    spec_touch(A, o, True)
    A.c(f"hand-off 1: the producers of the first {prog} stages now, the others before their stages are requested")
    A("s_mov_b32 s57, 0xff\ns_mov_b32 s63, 0xff\ns_cmp_lg_u32 s3, 4\ns_cbranch_scc1 L_l_s1seen")
    poll(A, "L_l_p1", pl, [16, 17, 18, 19], mask=(1 << (2*prog)) - 1)
    stamp(A, o, 2)
    if o.get("stamp"): A("s_sub_u32 s84, 0x80000, s59")
    A(f"s_mov_b32 s57, {prog-4}\ns_mov_b32 s63, {prog-6}")
    A("L_l_s1seen:\ns_barrier"); A.c("(b3)")
    def chk1():
        A("s_cmp_lg_u32 s53, s57\ns_cbranch_scc1 L_l_nochk1")
        poll(A, "L_l_p1b", pl, [16, 17, 18, 19], pre=16)
        A.c("every workgroup has read the generation word by now: advance it")
        A("s_cmp_lg_u32 s2, 0\ns_cbranch_scc1 L_l_nochk1")
        A(f"v_mov_b32 v16, s{sTAG}\nv_mov_b32 v17, 0\ns_mov_b64 exec, 1\nbuffer_store_dword v16, v17, s[{rF}:{rF+3}], 0 offen offset:{GEN_OFF} sc1\ns_mov_b64 exec, -1")
        A("L_l_nochk1:")
    def iss1(): A(f"s_cmp_lg_u32 s53, s63\ns_cbranch_scc1 L_l_noiss1\n{pl}\nL_l_noiss1:")
    def aft1(): A(f"s_cmp_lg_u32 s53, s55\ns_cbranch_scc1 L_l_nolate1\nbuffer_load_dword v31, v25, s[{rH}:{rH+3}], s51 offen\nL_l_nolate1:")
    ld_main(A, o, True, chk1, iss1, aft1 if g1k else None)
    A.c("tail of GEMM1: the freed slots take the first weight stages of GEMM2")
    ld_waddr(A, o, False)
    for z, c in enumerate((16, 12, 8, None)):
        if c is not None: A(f"s_waitcnt vmcnt({c})")
        A("s_barrier")
        issue_w(A, o, False, f"s_add_u32 m0, s52, {z*32768}")
    if o.get("b4early"): A("s_barrier")
    A("L_l_g2:")
    ld_haddr(A, False)
    A.c("lines of the final hand-over (own output rows, ready word) and this wave's share of the late w2 rows")
    srd(A, rS, sOUT, 0, S*D*2)
    A(f"s_lshl_b32 s58, s{sST}, 7\ns_lshr_b32 s59, s62, 1\ns_lshl_b32 s59, s59, 6\ns_add_u32 s58, s58, s59\ns_lshl_b32 s59, s{sHK}, 5\ns_add_u32 s58, s58, s59\ns_lshl_b32 s58, s58, 11")
    A(f"s_lshl_b32 s59, s{sDT2}, 8\ns_add_u32 s58, s58, s59\ns_and_b32 s59, s62, 1\ns_lshl_b32 s59, s59, 7\ns_add_u32 s58, s58, s59\nv_lshl_add_u32 v23, v2, 11, s58")
    A(f"s_lshl_b32 s58, s2, 10\ns_lshl_b32 s59, s62, 8\ns_add_u32 s58, s58, s59\ns_add_u32 s58, s58, {S3_OFF}\nv_mov_b32 v24, s58")
    if o.get("fastpf", 0):
        assert upw == 6 and half
        A.c("(the 8 workgroups per die whose weight lines get fewer L1 miss slots carry none of it)")
        A(f"s_and_b32 s48, s{sN}, 7\ns_cmp_gt_u32 s48, 3\ns_cselect_b32 s49, 2, 0\ns_sub_u32 s48, s48, s49\ns_lshr_b32 s49, s{sN}, 3\ns_mul_i32 s49, s49, 6\ns_add_u32 s48, s48, s49")
        A(f"s_mul_i32 s55, s48, 11\ns_lshr_b32 s55, s55, 4\ns_add_u32 s55, s55, {o.get('in0', 2)}\ns_and_b32 s49, s{sST}, 3\ns_cmp_eq_u32 s49, 1\ns_cselect_b32 s55, 0xff, s55")
        A("s_lshl_b32 s48, s48, 5\ns_lshl_b32 s49, s62, 3\ns_add_u32 s49, s49, s48")
        w2unit(A, 29, 49, 64*(28 - 4*upw) + 32, 8, True)
    else:
        A(f"s_mul_i32 s48, s{sN}, {4*upw}\ns_mul_i32 s49, s62, {upw}\ns_add_u32 s49, s49, s48")
        if half: w2unit(A, 29, 49, 64*(28 - 4*upw) + 32, upw, True)
        else: w2unit(A, 29, 49, 1792 - 128*upw, upw, False)
        A(f"s_lshr_b32 s55, s{sN}, 1\ns_add_u32 s55, s55, {o.get('in0', 2)}")
    s2set(A, 56)
    A("v_lshlrev_b32 v13, 7, v2")
    A("s_cmp_ge_u32 s2, 224\ns_cbranch_scc1 L_l_nob4")
    if o.get("spec", 1) & 16:
        A("s_barrier"); spec_touch(A, o, False)
    A("s_barrier"); A.c("(b4)")
    if not o.get("spec", 1) & 16: spec_touch(A, o, False)
    A("L_l_nob4:")
    if not o.get("early"): stamp(A, o, 4)
    A("s_mov_b32 s57, 0xff\ns_mov_b32 s63, 0xff\ns_cmp_lg_u32 s3, 4\ns_cbranch_scc1 L_l_s2seen")
    p2 = f"buffer_load_dword v16, v13, s[{rF}:{rF+3}], s56 offen sc1" if WL else pl
    r2 = [16] if WL else [16, 17, 18, 19]; m2 = "s[50:51]" if WL else (1 << 14) - 1
    if WL: A("s_mov_b32 s50, -1\ns_mov_b32 s51, 0xffffff")
    poll(A, "L_l_p2", p2, r2, mask=m2)
    if not o.get("early"): stamp(A, o, 5)
    if o.get("stamp"): A("s_sub_u32 s86, 0x80000, s59")
    if half: A("s_mov_b32 s57, 10\ns_mov_b32 s63, 8\ns_add_u32 s56, s56, " + str(8192 if WL else 2048))
    A("L_l_s2seen:\ns_barrier"); A.c("(b5)")
    def chk2():
        A("s_cmp_lg_u32 s53, s57\ns_cbranch_scc1 L_l_nochk2")
        poll(A, "L_l_p2b", p2, r2, pre=16, mask=m2)
        A("L_l_nochk2:")
    def iss2(): A(f"s_cmp_lg_u32 s53, s63\ns_cbranch_scc1 L_l_noiss2\ns_mov_b64 exec, {m2}\n{p2}\ns_mov_b64 exec, -1\nL_l_noiss2:")
    def aft2():
        if half: A(f"s_cmp_eq_u32 s53, 9\ns_cselect_b32 s58, {(14*128 - 32)*P2}, 0\ns_sub_u32 s64, s64, s58\ns_subb_u32 s65, s65, 0")
        A(f"s_cmp_lg_u32 s53, s55\ns_cbranch_scc1 L_l_nolate\nbuffer_load_dword v31, v29, s[{rW}:{rW+3}], 0 offen\nL_l_nolate:")
    ld_main(A, o, False, chk2 if half else None, iss2 if half else None, aft2)
    A(f"s_mov_b32 exec_hi, 0\nbuffer_load_dword v31, v23, s[{rS}:{rS+3}], 0 offen sc1\ns_mov_b64 exec, 1\nbuffer_load_dword v31, v24, s[{rF}:{rF+3}], 0 offen sc1\ns_mov_b64 exec, -1")
    A("s_waitcnt vmcnt(10)\ns_barrier\ns_waitcnt vmcnt(2)\ns_barrier\ns_barrier")
    if o.get("stamp"):
        A(f"s_cmp_lg_u32 s3, {o.get('stw', 4)}\ns_cbranch_scc1 L_end")
        stamp_flush(A, o, range(1, 9), 2)
    A("s_endpgm")
    A("L_l_spare:")
    A.c("==== the 32 workgroups without a GEMM1 tile pull the weights from HBM ahead of their use")
    if lb: A("s_waitcnt lgkmcnt(0)\ns_barrier")
    if not ln2: touch_flags(A, False)
    ld_waddr(A, o, False)
    if not ln2:
        A("s_waitcnt lgkmcnt(0)")
        make_tag(A)
    if ws_: A("s_barrier")
    A("s_barrier" if lb or ln2 else "s_barrier\ns_barrier"); A.c("(b2)")
    A("s_cmp_lg_u32 s3, 4\ns_cbranch_scc1 L_l_spw")
    A("s_sub_u32 s48, s2, 224\nv_and_b32 v14, 31, v2\nv_lshlrev_b32 v14, 7, v14\nv_lshrrev_b32 v7, 5, v2\nv_mul_u32_u24 v7, 1792, v7\nv_add_u32 v7, s48, v7\nv_lshl_add_u32 v14, v7, 12, v14")
    def sp_w2(lab, r0_, r1_, st):
        if r0_ < r1_: A(f"s_mov_b32 s48, {r0_*P2}\n{lab}:\nbuffer_load_dword v31, v14, s[{rW}:{rW+3}], s48 offen\ns_add_u32 s48, s48, {st*P2}\ns_cmp_lt_u32 s48, {r1_*P2}\ns_cbranch_scc1 {lab}")
    if half:
        if not o.get("sp0late", 0): sp_w2("L_l_sp0", 0, 512, 64)
    else: sp_w2("L_l_sp0", 0, 256, 32)
    X = o.get("dupx", S); late0 = o.get("sp0late", 0)
    if X < S: X = 192*nr + (X - 192*nr) // 24 * 24
    A(f"s_add_u32 s48, s{sN}, {32*nr - 28}\ns_mul_i32 s48, s48, {6*P1}\nL_l_sp1:\nbuffer_load_dword v31, v25, s[{rH}:{rH+3}], s48 offen\ns_add_u32 s48, s48, {24*P1}\ns_cmp_lt_u32 s48, {min(X, 6*G0)*P1}\ns_cbranch_scc1 L_l_sp1")
    if late0: sp_w2("L_l_sp0", 0, 512, 64)
    if X < S:
        A(f"v_mul_u32_u24 v13, 4682, v2\nv_lshrrev_b32 v13, 16, v13\nv_mul_u32_u24 v15, 14, v13\nv_sub_u32 v15, v2, v15\nv_cmp_gt_u32 vcc, 4, v13")
        A(f"s_and_b32 s58, s{sXCD}, 3\ns_mul_i32 s58, s58, 14\ns_lshr_b32 s59, s{sXCD}, 2\nv_add_u32 v15, s58, v15\nv_lshl_add_u32 v13, v13, 1, s59\nv_mul_u32_u24 v13, {P1}, v13\nv_lshl_add_u32 v13, v15, 7, v13\nv_mov_b32 v15, {OOB}\nv_cndmask_b32 v13, v15, v13, vcc")
        A(f"s_sub_u32 s48, s{sN}, 28\ns_lshl_b32 s48, s48, 3\ns_add_u32 s48, s48, {X}\ns_mul_i32 s48, s48, {P1}\nL_l_sp1b:\nbuffer_load_dword v31, v13, s[{rH}:{rH+3}], s48 offen\ns_add_u32 s48, s48, {32*P1}\ns_cmp_lt_u32 s48, {S*P1}\ns_cbranch_scc1 L_l_sp1b")
    for z in range(R): issue_w(A, o, False, f"s_add_u32 m0, s52, {z*32768}")
    A(f"s_sub_u32 s48, s{sN}, 28\ns_lshl_b32 s48, s48, 3")
    w2unit(A, 14, 48, 0, 8, False)
    if half:
        sp_w2("L_l_sp2", 512, 1792, 64); sp_w2("L_l_sp3", 32, 64*(28 - 4*upw) + 32, 64)
    else: sp_w2("L_l_sp2", 256, 1792 - 128*upw, 32)
    if o.get("stamp") and o.get("spst"):
        A("s_waitcnt vmcnt(0)"); stamp(A, o, 0); stamp_flush(A, o, [0], 1); A("s_mov_b64 exec, -1")
    A("s_branch L_l_g2")
    A("L_l_spw:")
    for z in range(R): issue_w(A, o, False, f"s_add_u32 m0, s52, {z*32768}")
    A("s_branch L_l_g2")

HEAD = open(__file__.replace("gen3.py", "head.txt")).read()
DOC = """; One launch, 256 workgroups (one per CU) of 8 waves: waves 0-3 do LayerNorm / MFMA / epilogues, waves 4-7 load.
; Hand-offs between workgroups use write-through stores and words tagged per launch (generation word in d_ws)."""
def build(o):
    global WL, HF, SPEC
    SPEC = o.get('spec', 1)
    HF = o.get('hf', 'sc1')
    WL = o.get('wl', 0)
    A = Asm()
    A.L.append(HEAD.rstrip("\n")); A.L.append(DOC)
    if o.get("tail_e"):
        A(f"; @launch kernel={NAME} grid=(256,1,1) block=(512,1,1) lds={LDS_LN + 256}")
        A("; @launch kernel=empty_kernel grid=(256,1,1) block=(64,1,1) lds=0")
    else: A(f"; @launch grid=(256,1,1) block=(512,1,1) lds={LDS_LN + 256}")
    A('.amdgcn_target "amdgcn-amd-amdhsa--gfx950"\n.text')
    A(f".globl {NAME}\n.p2align 8\n.type {NAME},@function\n{NAME}:")
    A("s_cmp_ge_u32 s2, 256\ns_cbranch_scc1 L_end")
    stamp(A, o, 0)
    A("s_load_dwordx16 s[4:19], s[0:1], 0")
    A("v_readfirstlane_b32 s3, v0\ns_nop 0\ns_lshr_b32 s3, s3, 6\ns_cmp_ge_u32 s3, 4\ns_cbranch_scc1 L_loader")
    (gen_ln2 if o.get('ln2', 2) else gen_ln)(A, o)
    A("s_cmp_ge_u32 s2, 224\ns_cbranch_scc1 L_c_g2")
    cons_prologue(A, o, True)
    cons_loop(A, o)
    cons_epi1(A, o)
    A("L_c_g2:\ns_waitcnt vmcnt(0)\ns_barrier"); A.c("(b5)")
    A("L_c_g2p:")
    cons_prologue(A, o, False)
    A("s_branch L_c_main")
    cons_epi2(A, o)
    gen_loader(A, o)
    A("L_end:\ns_endpgm")
    def desc(name, v):
        A(f".p2align 6\n.amdhsa_kernel {name}\n  .amdhsa_next_free_vgpr {v}\n  .amdhsa_next_free_sgpr 102\n  .amdhsa_accum_offset {v}\n"
          "  .amdhsa_group_segment_fixed_size 0\n  .amdhsa_kernarg_size 64\n  .amdhsa_user_sgpr_count 2\n"
          "  .amdhsa_user_sgpr_kernarg_segment_ptr 1\n  .amdhsa_system_sgpr_workgroup_id_x 1\n.end_amdhsa_kernel")
    if o.get("tail_e"):
        A(".globl empty_kernel\n.p2align 8\n.type empty_kernel,@function\nempty_kernel:")
        A("s_cmp_ge_u32 s2, 256\ns_cbranch_scc1 L_em_end\ns_memrealtime s[70:71]\ns_load_dwordx2 s[18:19], s[0:1], 56")
        stamp_flush(A, o, [0], 3)
        A("L_em_end:\ns_endpgm")
    A('.section .rodata,"a"')
    desc(NAME, 196)
    if o.get("tail_e"): desc("empty_kernel", 32)
    return A.text()

if __name__ == "__main__":
    o = {}
    for kv in sys.argv[2:]:
        k, v = kv.split("=", 1)
        o[k] = int(v) if v.lstrip("-").isdigit() else v
    open(sys.argv[1], "w").write(build(o))
```
